```python
import torch

def _softmax(x, axis=-1):
    return torch.softmax(x, dim=axis)

def _gelu(x):
    return torch.nn.functional.gelu(x, approximate='tanh')

def _silu(x):
    return torch.nn.functional.silu(x)

def _sigmoid(x):
    return torch.sigmoid(x)

def _layernorm(x, axis=-1, eps=1e-05):
    m = x.mean(dim=axis, keepdim=True)
    v = x.var(dim=axis, keepdim=True, unbiased=False)
    return (x - m) / torch.sqrt(v + eps)

def _scatter_add(tgt, idx, src, axis=0):
    return tgt.clone().index_add_(axis, idx, src)

def _segment_sum(src, seg, n):
    out = torch.zeros((n,) + src.shape[1:], dtype=src.dtype)
    return out.index_add_(0, seg, src)

def _pad(x, pw):
    flat = tuple((v for pair in reversed(pw) for v in pair))
    return torch.nn.functional.pad(x, flat)
kernel_name = 'adaLN_cond__gqa_block_cached__swiglu_ffn__decode'

def setup_inputs():

    _w = lambda a: (lambda t: t.to(torch.bfloat16) if t.is_floating_point() else t)(torch.as_tensor(a))

    def _A_setup():
        B, Sq, D = (1, 1, 512)
        Hq, Hkv, Sk, Dh = (32, 8, 32768, 128)
        assert Hq % Hkv == 0, (Hq, Hkv)
        return {'x': _w((lambda *s: torch.randn(*s, dtype=torch.bfloat16) * 0.1)(B, Sq, D)), 'k_cache': _w((lambda *s: torch.randn(*s, dtype=torch.bfloat16) * 0.8)(B, Hkv, Sk, Dh)), 'v_cache': _w((lambda *s: torch.randn(*s, dtype=torch.bfloat16) * 0.8)(B, Hkv, Sk, Dh)), 'wq': _w((lambda *s: torch.randn(*s, dtype=torch.bfloat16) * 0.8)(D, Hq * Dh) * D ** (-0.5)), 'wo': _w((lambda *s: torch.randn(*s, dtype=torch.bfloat16) * 0.8)(Hq * Dh, D) * (Hq * Dh) ** (-0.5))}
    _A_in = _A_setup()

    def _B_setup():
        B, S, D, F = (1, 1, 512, 1792)
        return {'x': _w((lambda *s: torch.randn(*s, dtype=torch.bfloat16) * 0.1)(B, S, D)), 'w_gate': _w((lambda *s: torch.randn(*s, dtype=torch.bfloat16) * 0.1)(D, F)), 'w_up': _w((lambda *s: torch.randn(*s, dtype=torch.bfloat16) * 0.1)(D, F)), 'w_down': _w((lambda *s: torch.randn(*s, dtype=torch.bfloat16) * 0.1)(F, D))}
    _B_in = _B_setup()
    return {'A_x': _A_in['x'], 'A_k_cache': _A_in['k_cache'], 'A_v_cache': _A_in['v_cache'], 'A_wq': _A_in['wq'], 'A_wo': _A_in['wo'], 'B_x': _B_in['x'], 'B_w_gate': _B_in['w_gate'], 'B_w_up': _B_in['w_up'], 'B_w_down': _B_in['w_down'], 'c': _w((lambda *s: torch.randn(*s, dtype=torch.bfloat16) * 0.4)(1, 512) * 8.0), 'w_mod': _w((lambda *s: torch.randn(*s, dtype=torch.bfloat16) * 0.4)(512, 6 * 512) * 512 ** (-0.5) * 8.0)}

def reference(A_x, A_k_cache, A_v_cache, A_wq, A_wo, B_x, B_w_gate, B_w_up, B_w_down, c, w_mod):

    def _A_ref(x, k_cache, v_cache, wq, wo):
        B, Sq, D = x.shape
        Hq, Dh = (32, 128)
        Hkv = k_cache.shape[1]
        rep = Hq // Hkv
        q = (lambda x, *d: x.permute(*d))((x @ wq).reshape(B, Sq, Hq, Dh), 0, 2, 1, 3)
        k = (lambda x, n, axis: torch.repeat_interleave(x, n, dim=axis))(k_cache, rep, axis=1)
        v = (lambda x, n, axis: torch.repeat_interleave(x, n, dim=axis))(v_cache, rep, axis=1)
        scores = torch.einsum('bhqd,bhkd->bhqk', q, k) * Dh ** (-0.5)
        p = _softmax(scores, axis=-1)
        o = torch.einsum('bhqk,bhkd->bhqd', p, v)
        return (lambda x, *d: x.permute(*d))(o, 0, 2, 1, 3).reshape(B, Sq, Hq * Dh) @ wo

    def _B_ref(x, w_gate, w_up, w_down):
        g = _silu(x @ w_gate)
        u = x @ w_up
        return g * u @ w_down
    x = A_x
    mod = (_silu(c) @ w_mod).reshape(c.shape[0], 6, 1, -1)
    sa, ca, ga, sb, cb, gb = (mod[:, 0].clone(), mod[:, 1].clone(), mod[:, 2].clone(), mod[:, 3].clone(), mod[:, 4].clone(), mod[:, 5].clone())
    h = _layernorm(x, axis=-1) * (1 + ca) + sa
    x = x + ga * _A_ref(h, A_k_cache, A_v_cache, A_wq, A_wo)
    h = _layernorm(x, axis=-1) * (1 + cb) + sb
    x = x + gb * _B_ref(h, B_w_gate, B_w_up, B_w_down)
    return x
```

```python
from kern import *

V_LANE, V_KOFF, V_VOFF, V_QOFF, V_FO2, V_T0, V_T1 = 1, 2, 3, 4, 5, 6, 7
V_Q = 8
V_S = 12
V_M, V_L = 22, 23
V_D = [24, 40]
V_O = 56
V_STG = 88
V_POP = 104
V_KV = 108
NBLK = 37
LDS_OBUF = 0
LDS_MLW = 16384
LDS_VL = 16384 + 256
def att_lds(cfg): return LDS_VL + 8 * cfg.NVL * 1024

def kv(i): return V_KV + 4 * i

def attention(e, cfg):
    e(f"""
    s_sub_u32 s82, s80, 1
    s_lshl_b32 s82, s82, 5
    s_add_u32 s82, s82, s81
    s_mov_b32 s83, {(2**32 + 27) // 28}
    s_mul_hi_u32 s84, s82, s83
    s_mul_i32 s85, s84, 28
    s_sub_u32 s85, s82, s85
    s_lshl_b32 s86, s85, 3
    s_add_u32 s86, s86, s3
    s_lshl_b32 s87, s86, 8
    s_mov_b32 s83, {(2**32 + 6) // 7}
    s_mul_hi_u32 s88, s87, s83
    s_add_u32 s87, s87, 256
    s_mul_hi_u32 s89, s87, s83
    s_sub_u32 s89, s89, s88
    s_lshl_b32 s52, s88, 10
    s_lshl_b32 s90, s84, 23
    v_bfe_u32 v{V_KOFF}, v{V_LANE}, 2, 2
    v_lshlrev_b32 v{V_KOFF}, 8, v{V_KOFF}
    v_lshrrev_b32 v{V_T0}, 4, v{V_LANE}
    v_lshlrev_b32 v{V_T0}, 6, v{V_T0}
    v_and_b32 v{V_T1}, 3, v{V_LANE}
    v_lshlrev_b32 v{V_VOFF}, 4, v{V_T1}
    v_add3_u32 v{V_KOFF}, v{V_KOFF}, v{V_T0}, v{V_VOFF}
    """)
    e("s_waitcnt lgkmcnt(0)")
    tag_setup(e)
    srd(e, 36, 10, 11, 0x800000, add="s90")
    ts(e, cfg, 60)
    D = cfg.D_ATT
    cur = [None]
    def kload(i):
        hi = (i // 4) * 4096
        if i == NBLK - 1:
            e.vmem(f"buffer_load_dwordx4 v[{kv(i)}:{kv(i)+3}], v{V_KOFF}, s[36:39], s54 offen nt", f"K{i}")
            return
        if cur[0] != hi:
            if hi == 0: e("s_mov_b32 s53, s52")
            else: e(f"s_add_u32 s53, s52, {hi}")
            cur[0] = hi
        e.vmem(f"buffer_load_dwordx4 v[{kv(i)}:{kv(i)+3}], v{V_KOFF}, s[36:39], s53 offen offset:{(i%4)*1024} nt", f"K{i}")
    for i in range(D):
        kload(i)
    srd(e, 40, 12, 13, 0x800000, add="s90")
    srd(e, 44, 34, 35, WS_SIZE)
    e(f"""
    s_add_u32 s54, s52, {(NBLK-1)*1024}
    s_cmp_eq_u32 s89, {NBLK}
    s_cselect_b32 s54, s54, {OOB}
    s_cselect_b32 s56, 0, 0xff800000
    s_lshl_b32 s55, s84, 11
    s_add_u32 s55, s55, {WS_Q}
    s_mov_b32 s57, {f32(SCALE_C)}
    s_mul_i32 s58, s84, 28
    s_add_u32 s58, s58, s85
    s_lshl_b32 s59, s58, 6
    s_add_u32 s59, s59, {WS_ML}
    s_lshl_b32 s58, s58, 11
    s_add_u32 s58, s58, {WS_PART}
    s_mov_b32 s94, 0x05040100
    s_mov_b32 s95, 0x07060302
    s_mov_b32 s99, {cfg.SPIN}
    v_lshlrev_b32 v{V_QOFF}, 9, v{V_T1}
    v_lshl_add_u32 v{V_QOFF}, v{V_T0}, 1, v{V_QOFF}
    v_bfe_u32 v{V_T0}, v{V_LANE}, 2, 2
    v_lshl_add_u32 v{V_QOFF}, v{V_T0}, 5, v{V_QOFF}
    v_lshlrev_b32 v{V_VOFF}, 4, v{V_LANE}
    v_mov_b32 v{V_S+9}, 0xff800000
    """)
    Q_AT = cfg.Q_AT
    NVL = cfg.NVL
    QR = V_D[0]
    def qloads(track):
        for k in range(2):
            t = f"buffer_load_dwordx4 v[{QR+4*k}:{QR+4*k+3}], v{V_QOFF}, s[44:47], s55 offen offset:{16*k} sc1"
            if track: e.vmem(t, f"Q{k}")
            else: e(t)
    e(f"s_mul_i32 s48, s3, {NVL*1024}\ns_add_u32 s48, s48, {LDS_VL}")
    def vdma(k):
        if k % 4 == 0:
            e(f"s_add_u32 s49, s52, {k*1024}\ns_add_u32 s50, s48, {k*1024}\ns_mov_b32 m0, s50\ns_nop 0")
        e.vmem(f"buffer_load_dwordx4 v{V_VOFF}, s[40:43], s49 offen offset:{(k%4)*1024} nt lds", f"L{k}")
    for i in range(D, NBLK + NVL):
        if i == Q_AT:
            e.wait_vm_n(D - 1)
            qloads(True)
        e.wait_vm_n(D - 1)
        if i < NBLK: kload(i)
        else: vdma(i - NBLK)
    ts(e, cfg, 61)
    e("s_waitcnt lgkmcnt(0)")
    tag_finish(e)
    e.wait_vm("Q1")
    ok = e.label("L_qok"); sp = e.label("L_qspin")
    check(e, V_T0, range(QR, QR + 8))
    e(f"s_cbranch_vccz {ok}\n{sp}:\ns_sleep 8")
    qloads(False)
    e("s_waitcnt vmcnt(0)")
    check(e, V_T0, range(QR, QR + 8))
    e(f"s_cbranch_vccz {ok}")
    spin_guard(e, sp)
    e(f"{ok}:")
    for k in range(4):
        e(f"v_cvt_pk_bf16_f32 v{V_Q+k}, v{QR+2*k}, v{QR+2*k+1}")
    ts(e, cfg, 62)
    curv = [None]
    def vload(i):
        hi = (i // 4) * 4096
        if i == NBLK - 1:
            e.vmem(f"buffer_load_dwordx4 v[{kv(i)}:{kv(i)+3}], v{V_VOFF}, s[40:43], s54 offen nt", f"V{i}")
            return
        if curv[0] != hi:
            if hi == 0: e("s_mov_b32 s53, s52")
            else: e(f"s_add_u32 s53, s52, {hi}")
            curv[0] = hi
        e.vmem(f"buffer_load_dwordx4 v[{kv(i)}:{kv(i)+3}], v{V_VOFF}, s[40:43], s53 offen offset:{(i%4)*1024} nt", f"V{i}")
    def tile_blocks(T): return list(range(4 * T, min(4 * T + 4, NBLK)))
    def reduce_tile(T, par):
        Db = V_D[par]
        S = V_S + T
        for t, blk in enumerate(tile_blocks(T)):
            for b in range(4):
                rot = (4 * (t - b)) % 16
                ctl = f"row_ror:{rot}" if rot else "quad_perm:[0,1,2,3]"
                if b == 0:
                    e(f"v_mov_b32_dpp v{S}, v{Db + 4*t + b} {ctl} row_mask:0xf bank_mask:0x{1 << t:x}")
                else:
                    e(f"v_add_f32_dpp v{S}, v{Db + 4*t + b}, v{S} {ctl} row_mask:0xf bank_mask:0x{1 << t:x}")
    NT = 10
    DV = cfg.D_V
    NVT = NVL // 4
    order = list(range(NVT, NT)) + list(range(NVT))
    vnext = [NVL]
    def v_issue_upto(n):
        while vnext[0] < min(n, NBLK):
            if len(e.vm) >= DV: e.wait_vm_n(DV - 1)
            vload(vnext[0]); vnext[0] += 1
    e(f"v_lshl_add_u32 v{V_FO2}, v{V_LANE}, 4, s48")
    prev = None
    for n, T in enumerate(order):
        bl = tile_blocks(T)
        e.wait_vm(f"K{bl[-1]}")
        for t, blk in enumerate(bl):
            Dd = V_D[n & 1] + 4 * t
            e(f"v_mfma_f32_16x16x32_bf16 v[{Dd}:{Dd+3}], v[{kv(blk)}:{kv(blk)+3}], v[{V_Q}:{V_Q+3}], 0")
        if prev is not None: reduce_tile(prev, (n - 1) & 1)
        if n < cfg.V_EARLY_TILES and T >= NVT:
            for blk in bl:
                if blk == vnext[0]:
                    vload(blk); vnext[0] += 1
        if T < NVT:
            e.wait_vm(f"L{bl[-1]}")
            for blk in bl:
                e(f"ds_read_b128 v[{kv(blk)}:{kv(blk)+3}], v{V_FO2} offset:{blk*1024}")
        prev = T
    reduce_tile(prev, (NT - 1) & 1)
    e(f"v_add_f32 v{V_S+9}, s56, v{V_S+9}")
    ts(e, cfg, 63)
    e(f"v_max3_f32 v{V_M}, v{V_S}, v{V_S+1}, v{V_S+2}")
    for k in range(3, 9, 2):
        e(f"v_max3_f32 v{V_M}, v{V_M}, v{V_S+k}, v{V_S+k+1}")
    e(f"v_max_f32 v{V_M}, v{V_M}, v{V_S+9}")
    allreduce16(e, "v_max_f32", V_M, steps=(4, 8))
    xrow(e, "v_max_f32", V_M, V_T0, 16)
    xrow(e, "v_max_f32", V_M, V_T0, 32)
    e(f"v_mul_f32 v{V_M}, s57, v{V_M}")
    for T in range(NT):
        e(f"v_fma_f32 v{V_S+T}, v{V_S+T}, s57, -v{V_M}")
    for T in range(NT):
        e(f"v_exp_f32 v{V_S+T}, v{V_S+T}")
    v_issue_upto(vnext[0] + 2)
    e(f"v_add_f32 v{V_L}, v{V_S}, v{V_S+1}")
    for T in range(2, NT):
        e(f"v_add_f32 v{V_L}, v{V_L}, v{V_S+T}")
    for g in range(5):
        e(f"v_cvt_pk_bf16_f32 v{V_S+2*g}, v{V_S+2*g}, v{V_S+2*g+1}")
    allreduce16(e, "v_add_f32", V_L, steps=(4, 8))
    xrow(e, "v_add_f32", V_L, V_T0, 16)
    xrow(e, "v_add_f32", V_L, V_T0, 32)
    e(f"""
    s_lshl_b32 s91, s3, 5
    v_lshlrev_b32 v{V_T0}, 3, v{V_LANE}
    v_add_u32 v{V_T0}, s91, v{V_T0}
    s_mov_b64 exec, 0xf
    ds_write_b64 v{V_T0}, v[{V_M}:{V_M+1}] offset:{LDS_MLW}
    s_mov_b64 exec, -1
    """)
    for g in range(5):
        last_blk = tile_blocks(min(2 * g + 1, NT - 1))[-1]
        if last_blk < NVL:
            v_issue_upto(vnext[0] + cfg.V_PER_LDS_GROUP)
            e("s_waitcnt lgkmcnt(0)")
        else:
            v_issue_upto(last_blk + 1 + DV)
            e.wait_vm(f"V{last_blk}")
        X = V_S + 2 * g
        e(f"v_mov_b32 v{V_POP}, v{X}")
        for m in range(1, 4):
            e(f"v_mov_b32_dpp v{V_POP+m}, v{X} row_shl:{4*m} row_mask:0xf bank_mask:0xf")
        for j in range(4):
            st = V_STG + 8 * (j & 1)
            for m in range(4):
                x = kv(8 * g + m) + j
                yb = 8 * g + 4 + m
                y = (kv(yb) if yb < NBLK else kv(8 * g + m)) + j
                e(f"v_perm_b32 v{st + m}, v{y}, v{x}, s94")
                e(f"v_perm_b32 v{st + 4 + m}, v{y}, v{x}, s95")
            for q in range(2):
                O = V_O + 4 * (2 * j + q)
                C = "0" if g == 0 else f"v[{O}:{O+3}]"
                e(f"v_mfma_f32_16x16x32_bf16 v[{O}:{O+3}], v[{V_POP}:{V_POP+3}], v[{st+4*q}:{st+4*q+3}], {C}")
    ts(e, cfg, 64)
    e(f"""
    s_lshl_b32 s91, s3, 11
    v_lshlrev_b32 v{V_T0}, 5, v{V_LANE}
    v_add_u32 v{V_T0}, s91, v{V_T0}
    v_add_u32 v{V_T1}, 1024, v{V_T0}
    s_mov_b64 exec, 0xffff
    """)
    for u in range(4):
        for r in range(4):
            a = V_T0 if r < 2 else V_T1
            o0 = (r & 1) * 128 + 2 * u
            e(f"ds_write2_b32 v{a}, v{V_O + 4*(2*u) + r}, v{V_O + 4*(2*u+1) + r} offset0:{o0} offset1:{o0+1}")
    e("s_mov_b64 exec, -1")
    A0, A1, AM, AP = 24, 25, 26, 27
    e(f"""
    v_lshrrev_b32 v{A1}, 2, v{V_LANE}
    s_lshl_b32 s91, s3, 4
    v_add_u32 v{A1}, s91, v{A1}
    v_lshlrev_b32 v{A1}, 4, v{A1}
    v_and_b32 v{AM}, 3, v{V_LANE}
    v_lshlrev_b32 v{A0}, 12, v{AM}
    v_add_u32 v{A0}, v{A0}, v{A1}
    v_cmp_eq_u32 vcc, 0, v{AM}
    v_mov_b32 v{AP}, {OOB}
    v_cndmask_b32 v{AP}, v{AP}, v{A1}, vcc
    s_lshr_b32 s91, s3, 1
    s_lshl_b32 s91, s91, 3
    v_lshlrev_b32 v{AM}, 6, v{AM}
    v_add_u32 v{AM}, s91, v{AM}
    v_cmp_eq_u32 vcc, 0, v{V_LANE}
    v_mov_b32 v{A1}, {OOB}
    s_lshl_b32 s91, s91, 1
    v_mov_b32 v28, s91
    v_cndmask_b32 v{A1}, v{A1}, v28, vcc
    s_waitcnt lgkmcnt(0)
    s_barrier
    ds_read_b64 v[30:31], v{AM} offset:{LDS_MLW}
    ds_read_b64 v[32:33], v{AM} offset:{LDS_MLW+32}
    ds_read_b128 v[36:39], v{A0}
    ds_read_b128 v[40:43], v{A0} offset:2048
    s_waitcnt lgkmcnt(2)
    v_max_f32 v34, v30, v32
    v_max_f32_dpp v34, v34, v34 quad_perm:[1,0,3,2] row_mask:0xf bank_mask:0xf
    v_max_f32_dpp v34, v34, v34 quad_perm:[2,3,0,1] row_mask:0xf bank_mask:0xf
    """)
    tag(e, 34)
    e(f"""
    v_sub_f32 v30, v30, v34
    v_sub_f32 v32, v32, v34
    v_exp_f32 v30, v30
    v_exp_f32 v32, v32
    v_mul_f32 v35, v30, v31
    v_fmac_f32 v35, v32, v33
    s_waitcnt lgkmcnt(0)
    """)
    for r in range(4):
        e(f"v_mul_f32 v{36+r}, v30, v{36+r}")
    for r in range(4):
        e(f"v_fmac_f32 v{36+r}, v32, v{40+r}")
    for qp in ("[1,0,3,2]", "[2,3,0,1]"):
        for r in (36, 37, 38, 39, 35):
            e(f"v_add_f32_dpp v{r}, v{r}, v{r} quad_perm:{qp} row_mask:0xf bank_mask:0xf")
    for r in (36, 37, 38, 39, 35):
        tag(e, r)
    e.vmem(f"buffer_store_dwordx4 v[36:39], v{AP}, s[44:47], s58 offen sc1", "PS")
    e("v_mov_b32 v32, v34\nv_mov_b32 v33, v35\nv_mov_b32 v30, v34\nv_mov_b32 v31, v35")
    e.vmem(f"buffer_store_dwordx4 v[30:33], v{A1}, s[44:47], s59 offen sc1", "MS")
    ts(e, cfg, 65)
    if cfg.TS:
        e.wait_vm_all()
        ts(e, cfg, 66)
        e(f"""
        s_lshl_b32 s91, s2, 3
        s_add_u32 s91, s91, s3
        s_lshl_b32 s91, s91, 5
        s_add_u32 s91, s91, {WS_TS}
        v_mov_b32 v6, {OOB}
        v_cmp_eq_u32 vcc, 0, v{V_LANE}
        v_cndmask_b32 v6, v6, 0, vcc
        """)
        for k in range(7): e(f"v_mov_b32 v{36+k}, s{60+k}")
        e("v_mov_b32 v43, s89")
        e("buffer_store_dwordx4 v[36:39], v6, s[44:47], s91 offen")
        e("buffer_store_dwordx4 v[40:43], v6, s[44:47], s91 offen offset:16")
    e("s_endpgm")
```

```python
NAME = "adaLN_cond__gqa_block_cached__swiglu_ffn__decode"
REF = f"cdna_kernels/{NAME}.s.ref"

def header_comments():
    out = []
    for l in open(REF).read().split("\n"):
        if l.startswith("; @launch"):
            break
        if l.startswith(";") and "@launch" not in l and "Override launch" not in l and "grid=ceil" not in l:
            out.append(l)
    return out

class Asm:
    def __init__(self):
        self.L = []
        self.nlabel = 0
    def __call__(self, s):
        for l in s.split("\n"):
            l = l.strip()
            if not l: continue
            if l.endswith(":"):
                self.L.append(l)
            else:
                self.L.append("    " + l)
    def label(self, base="L"):
        self.nlabel += 1
        return f"{base}_{self.nlabel}"
    def text(self):
        return "\n".join(self.L)

def wrap_single(body, grid, block, lds, vgpr, sgpr=102, accum=None):
    if accum is None: accum = min(256, (vgpr + 3) // 4 * 4)
    h = header_comments()
    s = "\n".join(h) + f"\n; @launch grid=({grid},1,1) block=({block},1,1) lds={lds}\n"
    s += f""".amdgcn_target "amdgcn-amd-amdhsa--gfx950"
.text
.globl {NAME}_kernel
.p2align 8
.type {NAME}_kernel,@function
{NAME}_kernel:
{body}
.section .rodata,"a"
.p2align 6
.amdhsa_kernel {NAME}_kernel
  .amdhsa_next_free_vgpr {vgpr}
  .amdhsa_next_free_sgpr {sgpr}
  .amdhsa_accum_offset {accum}
  .amdhsa_group_segment_fixed_size 0
  .amdhsa_kernarg_size 112
  .amdhsa_user_sgpr_count 2
  .amdhsa_user_sgpr_kernarg_segment_ptr 1
  .amdhsa_system_sgpr_workgroup_id_x 1
.end_amdhsa_kernel
"""
    return s
```

```python
import re

TRANS = ("v_exp_f32", "v_log_f32", "v_rcp_f32", "v_rsq_f32", "v_sqrt_f32", "v_sin_f32", "v_cos_f32")

def _expand(tok):
    tok = tok.strip()
    neg = tok.lstrip("-")
    m = re.fullmatch(r"(?:abs\()?([vsa])\[(\d+):(\d+)\]\)?", neg)
    if m:
        return [f"{m.group(1)}{i}" for i in range(int(m.group(2)), int(m.group(3)) + 1)]
    m = re.fullmatch(r"(?:abs\()?\|?([vsa])(\d+)\|?\)?", neg)
    if m:
        return [f"{m.group(1)}{m.group(2)}"]
    if neg in ("vcc", "vcc_lo", "vcc_hi"): return ["vcc"]
    if neg in ("exec", "exec_lo", "exec_hi"): return ["exec"]
    if neg == "m0": return ["m0"]
    return []

class Ins:
    def __init__(self, text):
        self.text = text
        body = text.split(";")[0].strip()
        parts = body.split(None, 1)
        self.mn = parts[0]
        rest = parts[1] if len(parts) > 1 else ""
        ops, depth, cur = [], 0, ""
        for ch in rest:
            if ch == "[": depth += 1
            if ch == "]": depth -= 1
            if ch == "," and depth == 0:
                ops.append(cur); cur = ""
            else:
                cur += ch
        if cur.strip(): ops.append(cur)
        self.mods = ""
        if ops:
            last = ops[-1].strip().split(None, 1)
            ops[-1] = last[0]
            self.mods = last[1] if len(last) > 1 else ""
        self.ops = [o.strip() for o in ops]
        mn = self.mn
        self.is_mfma = mn.startswith("v_mfma")
        self.is_valu = mn.startswith("v_") and not self.is_mfma
        self.is_vmem = mn.startswith(("buffer_", "global_", "flat_"))
        self.is_ds = mn.startswith("ds_")
        self.is_salu = mn.startswith("s_")
        self.is_dpp = ("_dpp" in mn) or any(k in self.mods for k in ("quad_perm", "row_shl", "row_shr", "row_ror", "row_bcast", "row_mirror", "row_half_mirror", "row_newbcast", "wave_"))
        self.is_trans = any(mn.startswith(t) for t in TRANS)
        self.is_perml = mn.startswith("v_permlane")
        self.is_rdlane = mn.startswith(("v_readlane", "v_readfirstlane"))
        self.wr, self.rd = [], []
        self.srcC, self.srcAB = [], []
        self.dpp_src = []
        self.store_data = []
        O = [_expand(o) for o in self.ops]
        if self.is_mfma:
            self.wr = O[0]; self.srcAB = O[1] + O[2]; self.srcC = O[3] if len(O) > 3 else []
            self.rd = self.srcAB + self.srcC
            self.passes = 8 if "32x32" in mn else 4
            if "4x4x4" in mn: self.passes = 2
        elif self.is_valu:
            if mn.startswith("v_cmp"):
                self.wr = O[0]; self.rd = sum(O[1:], [])
                if mn.startswith("v_cmpx"): self.wr = self.wr + ["exec"]
            elif self.is_perml and "swap" in mn:
                self.wr = O[0] + O[1]; self.rd = O[0] + O[1]
            elif mn.startswith(("v_add_co", "v_sub_co", "v_addc_co", "v_subb_co", "v_subrev_co")):
                self.wr = O[0] + O[1]; self.rd = sum(O[2:], [])
            else:
                self.wr = O[0]; self.rd = sum(O[1:], [])
                if mn.startswith(("v_fmac", "v_dot2c", "v_pk_fmac", "v_mac")): self.rd += O[0]
                if mn.startswith("v_cndmask") and len(self.ops) == 3: self.rd += ["vcc"]
                if mn.startswith("v_writelane"): self.rd += O[0]
                if "sdwa" in mn: self.rd += O[0]
                if self.is_dpp:
                    self.dpp_src = O[1]
                    self.rd += O[0]
        elif self.is_vmem:
            if "store" in mn or "atomic" in mn:
                if mn.startswith("buffer_"):
                    self.store_data = O[0]; self.rd = sum(O, [])
                else:
                    self.store_data = O[1]; self.rd = sum(O, [])
            elif mn.startswith(("buffer_inv", "buffer_wbl2")):
                pass
            elif " lds" in (" " + self.mods):
                self.rd = sum(O, [])
            else:
                self.wr = O[0]; self.rd = sum(O[1:], [])
            self.wide = ("x4" in mn or "x3" in mn)
        elif self.is_ds:
            if mn.startswith(("ds_read", "ds_bpermute", "ds_permute", "ds_swizzle")):
                self.wr = O[0]; self.rd = sum(O[1:], [])
            else:
                self.rd = sum(O, [])
        elif self.is_salu:
            if mn.startswith(("s_cmp", "s_bitcmp", "s_cbranch", "s_branch", "s_waitcnt", "s_nop", "s_barrier", "s_sleep", "s_endpgm", "s_setprio")):
                self.rd = sum(O, [])
            else:
                self.wr = O[0] if O else []; self.rd = sum(O[1:], [])
        self.states = 1
        if mn == "s_nop": self.states = int(self.ops[0], 0) + 1

def need(prod, cons):
    n = 0
    pw = set(prod.wr)
    if prod.is_valu:
        vw = {r for r in pw if r[0] == "v" and r != "vcc"}
        sw = {r for r in pw if r[0] == "s" or r == "vcc"}
        if cons.is_mfma and vw & set(cons.rd): n = max(n, 2)
        if cons.is_valu and cons.is_dpp and vw & set(cons.dpp_src): n = max(n, 2)
        if cons.is_valu and cons.is_rdlane and vw & set(cons.rd): n = max(n, 1)
        if cons.is_valu and cons.is_perml and vw & set(cons.rd): n = max(n, 2)
        if cons.is_valu and sw & set(cons.rd): n = max(n, 2)
        if cons.is_rdlane and sw & set(cons.rd): n = max(n, 4)
        if cons.is_vmem and sw & set(cons.rd): n = max(n, 5)
        if cons.is_salu and sw & set(cons.rd): n = max(n, 1)
        if prod.is_trans and cons.is_valu and vw & set(cons.rd): n = max(n, 1)
        if prod.is_trans and (cons.is_mfma) and vw & set(cons.rd): n = max(n, 2)
        if "sdwa" in prod.mn and vw & set(cons.rd): n = max(n, 1)
        if "exec" in pw:
            if cons.is_valu or cons.is_mfma: n = max(n, 5)
    if prod.is_mfma:
        d = set(prod.wr)
        p = prod.passes
        t_valu = {2: 5, 4: 8, 8: 12}[p]
        if cons.is_mfma:
            if d & set(cons.srcAB): n = max(n, t_valu)
            if d & set(cons.srcC):
                if list(cons.srcC) == list(prod.wr) and cons.passes == p: n = max(n, 2 if p == 2 else 0)
                else: n = max(n, {2: 4, 4: 6, 8: 10}[p])
            if d & set(cons.wr) and not (list(cons.srcC) == list(prod.wr)):
                n = max(n, {2: 4, 4: 6, 8: 10}[p])
        elif cons.is_valu or cons.is_vmem or cons.is_ds:
            if d & (set(cons.rd) | set(cons.wr)): n = max(n, t_valu)
        if cons.is_valu and set(prod.srcC) & set(cons.wr): n = max(n, {2: 1, 4: 3, 8: 7}[p])
    if prod.is_vmem and prod.store_data and getattr(prod, "wide", False):
        if set(prod.store_data) & set(cons.wr):
            n = max(n, 2 if cons.is_valu else 1)
    return n

class Emitter:
    def __init__(self):
        self.lines = []
        self.nlabel = 0
        self.issued = set()
        self.vm = []
    def label(self, base="L"):
        self.nlabel += 1
        return f"{base}_{self.nlabel}"
    def __call__(self, s):
        for l in s.split("\n"):
            l = l.strip()
            if not l or l.startswith(";"):
                continue
            if l.endswith(":"):
                self.lines.append(("raw", l))
            elif l.startswith("."):
                self.lines.append(("raw", l))
            else:
                self.lines.append(("ins", Ins(l)))
    def comment(self, s):
        self.lines.append(("raw", "; " + s))
    def vmem(self, text, tag=None):
        self(text)
        self.vm.append(tag)
        self.issued.add(tag)
    def wait_vm(self, tag):
        assert tag in self.issued, tag
        if tag not in self.vm: return
        idx = max(i for i, t in enumerate(self.vm) if t == tag)
        n = len(self.vm) - 1 - idx
        if n > 63: raise ValueError("vmcnt overflow")
        self(f"s_waitcnt vmcnt({n})")
        self.vm = self.vm[idx + 1:]
    def wait_vm_n(self, n):
        if len(self.vm) > n:
            self(f"s_waitcnt vmcnt({n})")
            self.vm = self.vm[len(self.vm) - n:] if n > 0 else []
    def wait_vm_all(self):
        self("s_waitcnt vmcnt(0)")
        self.vm = []
    def text(self, window=24):
        out = []
        hist = []
        for kind, x in self.lines:
            if kind == "raw":
                out.append(x if x.endswith(":") or x.startswith((".", ";")) else "    " + x)
                if x.endswith(":"):
                    pass
                continue
            req = 0
            dist = 0
            for p in reversed(hist):
                r = need(p, x)
                if r > dist: req = max(req, r - dist)
                dist += p.states
                if dist > 20: break
            while req > 0:
                k = min(req, 16)
                nop = Ins(f"s_nop {k-1}")
                out.append(f"    s_nop {k-1}")
                hist.append(nop)
                req -= k
            out.append("    " + x.text)
            hist.append(x)
            if len(hist) > 64: hist = hist[-64:]
        return "\n".join(out)
```

```python
import sys
sys.path.insert(0, "gen")
from common import *
from emit import *

WS_MODA = 0x0000
WS_MODB = 0x2000
WS_Q    = 0x4000
WS_X1P  = 0x8000
WS_FFP  = 0x10000
WS_ML   = 0x1E000
WS_PART = 0x22000
WS_END  = 0x92000
WS_TS   = 0x100000
WS_SIZE = 0x200000
S_TAU = 100
OOB = 0x10000000
SENT_GUARD = 0xFFFFFFFE
LOG2E = 1.4426950408889634
SCALE_C = (128 ** -0.5) * LOG2E

import struct
def f32(x): return "0x%08x" % struct.unpack("<I", struct.pack("<f", x))[0]

class Cfg:
    D_ATT = 4
    D_SVC = 6
    TS = False
    SPIN = 400000
    FORCE_SLOW = False
    SLEEP_A = 2

def srd(e, q, lo, hi, size, add=None):
    if add is None:
        e(f"s_mov_b32 s{q}, s{lo}\ns_mov_b32 s{q+1}, s{hi}")
    else:
        e(f"s_add_u32 s{q}, s{lo}, {add}\ns_addc_u32 s{q+1}, s{hi}, 0")
    e(f"s_mov_b32 s{q+2}, {size}\ns_mov_b32 s{q+3}, 0x20000")

def spin_guard(e, lab, cnt="s99"):
    e(f"s_sub_u32 {cnt}, {cnt}, 1\ns_cmp_gt_i32 {cnt}, 0\ns_cbranch_scc1 {lab}")

def max_tree(e, dst, regs):
    regs = list(regs)
    if len(regs) == 1:
        e(f"v_mov_b32 v{dst}, v{regs[0]}"); return
    if len(regs) % 2 == 1:
        e(f"v_max3_u32 v{dst}, v{regs[0]}, v{regs[1]}, v{regs[2]}"); k = 3
    else:
        e(f"v_max_u32 v{dst}, v{regs[0]}, v{regs[1]}"); k = 2
    while k < len(regs):
        e(f"v_max3_u32 v{dst}, v{dst}, v{regs[k]}, v{regs[k+1]}"); k += 2

def ts(e, cfg, slot):
    if cfg.TS:
        e(f"s_memrealtime s[96:97]\ns_waitcnt lgkmcnt(0)\ns_mov_b32 s{slot}, s96")

def allreduce16(e, op, v, tmp=None, steps=(1, 2, 4, 8)):
    for n in steps:
        e(f"{op}_dpp v{v}, v{v}, v{v} row_ror:{n} row_mask:0xf bank_mask:0xf")

def xrow(e, op, v, t, which):
    e(f"v_mov_b32 v{t}, v{v}")
    e(f"v_permlane{which}_swap_b32 v{v}, v{t}")
    e(f"{op} v{v}, v{v}, v{t}")

def transpose_unit(e, src, dst, ne=8):
    np_ = ne // 2
    for j in range(4):
        for m in range(np_):
            x = src + 4 * (2 * m) + j
            y = src + 4 * (2 * m + 1) + j
            e(f"v_perm_b32 v{dst + np_*(2*j) + m}, v{y}, v{x}, s94")
            e(f"v_perm_b32 v{dst + np_*(2*j+1) + m}, v{y}, v{x}, s95")

def tag_setup(e):
    e(f"s_load_dword s{S_TAU}, s[34:35], {WS_FFP}")

def tag_finish(e):
    e(f"s_and_b32 s{S_TAU}, s{S_TAU}, 0x7f\ns_add_u32 s{S_TAU}, s{S_TAU}, 1")

def tag(e, reg):
    e(f"v_mov_b32_sdwa v{reg}, s{S_TAU} dst_sel:BYTE_0 dst_unused:UNUSED_PRESERVE src0_sel:DWORD")

def check(e, dst, regs, dst2=None):
    regs = list(regs)
    if dst2 is not None and len(regs) >= 8:
        h = len(regs) // 2
        A, B = regs[:h], regs[h:]
        for k in range(max(len(A), len(B))):
            if k < len(A): e(f"v_msad_u8 v{dst}, v{A[k]}, s{S_TAU}, {'0' if k == 0 else 'v%d' % dst}")
            if k < len(B): e(f"v_msad_u8 v{dst2}, v{B[k]}, s{S_TAU}, {'0' if k == 0 else 'v%d' % dst2}")
        e(f"v_or_b32 v{dst}, v{dst}, v{dst2}")
    else:
        for k, r in enumerate(regs):
            e(f"v_msad_u8 v{dst}, v{r}, s{S_TAU}, {'0' if k == 0 else 'v%d' % dst}")
    e(f"v_cmp_ne_u32 vcc, 0, v{dst}")
```

```python
from kern import *

S_WS, S_DBG, S_X, S_C, S_WMOD, S_WQ, S_WO, S_WG, S_WU, S_WD, S_OUT = 36, 40, 44, 48, 52, 56, 4, 64, 68, 72, 84
L_SVA  = 0
L_CNT  = 1024
L_STAT = 2048
L_STA2 = 2176
L_RA1  = 2304
L_RQ   = 4352
L_RB   = 8448
L_RP1  = 10496
L_RGU  = 18688
L_X1   = 22784
L_WL   = 24832
L_STG  = 24832 + 2048
SVC_LDS = L_STG + 8 * 16384

V_LANE, V_TAU2, V_N = 1, 2, 3
T0, T1, T2, T3 = 4, 5, 6, 7
V_A = 8
P_WLW1, P_WH2, P_COL4, P_COLF4 = 12, 13, 14, 15
P_GA, P_CB1, P_SB, P_X, P_GB = 16, 17, 18, 19, 20
P_PV, P_MV, P_XV, P_FV, P_A64R, P_A128R, P_OUTV = 21, 22, 23, 24, 25, 26, 27
SC = 28
W0, W1, W2, W3, W4 = 96, 128, 160, 192, 224

def unit64_voff(e, dst, stride_bytes, t0, t1):
    e(f"""
    v_lshrrev_b32 v{t0}, 4, v{V_LANE}
    v_lshlrev_b32 v{t0}, 3, v{t0}
    v_bfe_u32 v{t1}, v{V_LANE}, 3, 1
    v_lshlrev_b32 v{t1}, 5, v{t1}
    v_add_u32 v{t0}, v{t0}, v{t1}
    v_mul_u32_u24 v{t0}, {stride_bytes}, v{t0}
    v_and_b32 v{t1}, 7, v{V_LANE}
    v_lshlrev_b32 v{t1}, 4, v{t1}
    v_add_u32 v{dst}, v{t0}, v{t1}
    """)

def unit128_voff(e, dst, stride_bytes, t0, t1):
    e(f"""
    v_lshrrev_b32 v{t0}, 4, v{V_LANE}
    v_mul_u32_u24 v{t0}, {8*stride_bytes}, v{t0}
    v_and_b32 v{t1}, 15, v{V_LANE}
    v_lshlrev_b32 v{t1}, 4, v{t1}
    v_add_u32 v{dst}, v{t0}, v{t1}
    """)

class Stream:
    def __init__(self, e, depth): self.e, self.d = e, depth
    def load(self, dst, voff, srdq, sbase, byte_off, tag):
        e = self.e
        e.wait_vm_n(self.d - 1)
        if byte_off < 4096:
            e.vmem(f"buffer_load_dwordx4 v[{dst}:{dst+3}], v{voff}, s[{srdq}:{srdq+3}], {sbase} offen offset:{byte_off} nt", tag)
        else:
            e(f"s_add_u32 s93, {sbase}, {byte_off}")
            e.vmem(f"buffer_load_dwordx4 v[{dst}:{dst+3}], v{voff}, s[{srdq}:{srdq+3}], s93 offen nt", tag)

def zsum64(e, D, Z):
    for t in range(8):
        e(f"v_add_f32_dpp v{Z+t}, v{D+4*t+1}, v{D+4*t} row_shl:8 row_mask:0xf bank_mask:0xf")

def rs4(e, a):
    e(f"v_permlane32_swap_b32 v{a}, v{a+1}")
    e(f"v_permlane32_swap_b32 v{a+2}, v{a+3}")
    e(f"v_add_f32 v{a}, v{a}, v{a+1}")
    e(f"v_add_f32 v{a+2}, v{a+2}, v{a+3}")
    e(f"v_permlane16_swap_b32 v{a}, v{a+2}")
    e(f"v_add_f32 v{a}, v{a}, v{a+2}")

def store_mode(e, text):
    lf = e.label("L_fast"); le = e.label("L_stend")
    e(f"s_cmp_eq_u32 s98, 1\ns_cbranch_scc1 {lf}")
    e(text.format(pol="sc1"))
    e(f"s_branch {le}\n{lf}:")
    e(text.format(pol=""))
    e(f"{le}:")
    e.vm.append("st")

def sts(e, cfg, k):
    if cfg.TS:
        e(f"s_memrealtime s[96:97]\ns_waitcnt lgkmcnt(0)\nv_writelane_b32 v0, s96, {k}")

def silu(e, dst, src, t):
    e(f"""
    v_mul_f32 v{t}, {f32(-LOG2E)}, v{src}
    v_exp_f32 v{t}, v{t}
    v_add_f32 v{t}, 1.0, v{t}
    v_rcp_f32 v{t}, v{t}
    v_mul_f32 v{dst}, v{src}, v{t}
    """)

def service(e, cfg):
    st = Stream(e, 60)
    WS = f"s[{S_WS}:{S_WS+3}]"
    Z = 76
    e(f"""
    v_mov_b32 v{T0}, {L_CNT}
    v_mov_b32 v{T1}, 0
    ds_write_b32 v{T0}, v{T1}
    s_waitcnt lgkmcnt(0)
    """)
    tag_setup(e)
    e("s_barrier")
    e(f"s_mov_b32 s99, {cfg.SPIN}")
    srd(e, S_C, 26, 27, 1024)
    srd(e, S_WMOD, 28, 29, 512 * 3072 * 2)
    srd(e, S_WS, 34, 35, WS_SIZE)
    srd(e, S_X, 8, 9, 1024)
    srd(e, S_WQ, 14, 15, 512 * 4096 * 2)
    sts(e, cfg, 0)
    e(f"""
    s_and_b32 s83, s81, 15
    s_lshr_b32 s60, s81, 4
    s_lshl_b32 s88, s60, 12
    s_lshl_b32 s89, s83, 8
    s_add_u32 s88, s88, s89
    s_lshl_b32 s82, s3, 8
    s_add_u32 s82, s82, {L_WL}
    s_mov_b32 s94, 0x05040100
    s_mov_b32 s95, 0x07060302
    """)
    lab_noa1 = e.label("L_noa1")
    e(f"s_cmp_lt_u32 s3, 4\ns_cbranch_scc1 {lab_noa1}")
    vm_save = list(e.vm); e.vm = []
    e("s_setprio 3")
    e(f"""
    s_lshl_b32 s61, s60, 8
    s_sub_u32 s62, s3, 4
    s_lshl_b32 s62, s62, 6
    s_add_u32 s61, s61, s62
    v_lshlrev_b32 v{T0}, 1, v{V_LANE}
    s_lshl_b32 s91, s61, 1
    """)
    e.vmem(f"buffer_load_ushort v16, v{T0}, s[{S_C}:{S_C+3}], s91 offen", "cA")
    unit64_voff(e, 18, 6144, T1, T2)
    e(f"""
    s_mul_i32 s63, s61, 6144
    s_lshl_b32 s62, s83, 7
    s_add_u32 s63, s63, s62
    """)
    AR = 96
    for ee in range(8):
        st.load(AR + 4 * ee, 18, S_WMOD, "s63", ee * 6144, f"wa{ee}")
    e("s_setprio 0")
    sts(e, cfg, 16)
    e.wait_vm("cA")
    e("v_lshlrev_b32 v16, 16, v16")
    silu(e, 16, 16, T1)
    e(f"""
    v_cvt_pk_bf16_f32 v16, v16, v16
    v_add_u32 v{T0}, s82, v{T0}
    ds_write_b16 v{T0}, v16
    v_and_b32 v{T1}, 1, v{V_LANE}
    v_lshlrev_b32 v{T1}, 6, v{T1}
    v_lshrrev_b32 v{T2}, 4, v{V_LANE}
    v_lshl_add_u32 v{T1}, v{T2}, 4, v{T1}
    v_add_u32 v{T1}, s82, v{T1}
    ds_read_b128 v[{V_A}:{V_A+3}], v{T1}
    """)
    TB, DA = 44, 128
    e.wait_vm("wa7")
    sts(e, cfg, 17)
    transpose_unit(e, AR, TB)
    e("s_waitcnt lgkmcnt(0)")
    for t in range(8):
        e(f"v_mfma_f32_16x16x32_bf16 v[{DA+4*t}:{DA+4*t+3}], v[{V_A}:{V_A+3}], v[{TB+4*t}:{TB+4*t+3}], 0")
    zsum64(e, DA, Z)
    lab = e.label("L_a1done")
    e(f"""
    s_sub_u32 s91, s3, 4
    s_lshl_b32 s91, s91, 8
    v_lshlrev_b32 v{T0}, 5, v{V_LANE}
    v_add_u32 v{T0}, s91, v{T0}
    s_mov_b64 exec, 0xff
    ds_write_b128 v{T0}, v[{Z}:{Z+3}] offset:{L_RA1}
    ds_write_b128 v{T0}, v[{Z+4}:{Z+7}] offset:{L_RA1+16}
    s_mov_b64 exec, 1
    v_mov_b32 v{T0}, {L_CNT}
    v_mov_b32 v{T1}, 1
    s_waitcnt lgkmcnt(0)
    ds_add_rtn_u32 v{T2}, v{T0}, v{T1}
    s_waitcnt lgkmcnt(0)
    v_readfirstlane_b32 s91, v{T2}
    s_mov_b64 exec, -1
    s_cmp_lg_u32 s91, 3
    s_cbranch_scc1 {lab}
    v_lshlrev_b32 v{T0}, 2, v{V_LANE}
    """)
    for v in range(4):
        e(f"ds_read_b32 v{Z+v}, v{T0} offset:{L_RA1 + 256*v}")
    e("s_waitcnt lgkmcnt(0)")
    tag_finish(e)
    e(f"""
    v_add_f32 v{Z}, v{Z}, v{Z+1}
    v_add_f32 v{Z+2}, v{Z+2}, v{Z+3}
    v_add_f32 v{Z}, v{Z}, v{Z+2}
    """)
    tag(e, Z)
    e(f"buffer_store_dword v{Z}, v{T0}, {WS}, s88 offen sc1")
    e(f"s_sub_u32 s{S_TAU}, s{S_TAU}, 1")
    sts(e, cfg, 1)
    e(f"{lab}:")
    e(f"{lab_noa1}:")
    e.vm = vm_save
    sts(e, cfg, 18)
    c, x, XA = 16, 17, 32
    e(f"""
    v_lshlrev_b32 v{T3}, 4, v{V_LANE}
    s_lshl_b32 s91, s3, 7
    v_lshlrev_b32 v{V_TAU2}, 1, v{V_LANE}
    v_add_u32 v{V_TAU2}, s91, v{V_TAU2}
    """)
    V_OQ = 18
    unit128_voff(e, V_OQ, 8192, T0, T1)
    e(f"""
    s_lshl_b32 s90, s3, 19
    s_lshl_b32 s91, s81, 8
    s_add_u32 s90, s90, s91
    """)
    def wq_load(i):
        ks, ee = divmod(i, 8)
        st.load(W3 + 4 * i, V_OQ, S_WQ, "s90", (32 * ks + ee) * 8192, f"wq{i}")
    sts(e, cfg, 19)
    wq_load(0)
    sts(e, cfg, 20)
    for i in range(1, 4): wq_load(i)
    e.vmem(f"buffer_load_dwordx4 v[{XA}:{XA+3}], v{T3}, s[{S_X}:{S_X+3}], 0 offen", "xa")
    e.vmem(f"buffer_load_ushort v{x}, v{V_TAU2}, s[{S_X}:{S_X+3}], 0 offen", "x")
    e.vmem(f"buffer_load_ushort v{c}, v{V_TAU2}, s[{S_C}:{S_C+3}], 0 offen", "c")
    sts(e, cfg, 14)
    srd(e, S_DBG, 32, 33, 256)
    srd(e, S_WO, 16, 17, 4096 * 512 * 2)
    srd(e, S_WG, 20, 21, 512 * 1792 * 2)
    srd(e, S_WU, 22, 23, 512 * 1792 * 2)
    srd(e, S_WD, 24, 25, 1792 * 512 * 2)
    srd(e, S_OUT, 30, 31, 1024)
    e("s_waitcnt lgkmcnt(0)")
    tag_finish(e)
    lab = e.label("L_xcc")
    e(f"""
    s_cmp_lg_u32 s3, 0
    s_cbranch_scc1 {lab}
    s_getreg_b32 s91, hwreg(HW_REG_XCC_ID)
    s_and_b32 s91, s91, 15
    s_add_u32 s91, s91, 1
    v_mov_b32 v{T1}, s91
    s_lshl_b32 s92, s81, 2
    v_mov_b32 v{T2}, s92
    s_mov_b64 exec, 1
    buffer_store_dword v{T1}, v{T2}, s[{S_DBG}:{S_DBG+3}], 0 offen sc1
    s_mov_b64 exec, -1
    {lab}:
    """)
    e.wait_vm("c")
    U = 36
    for k in range(4):
        e(f"v_lshlrev_b32 v{U+2*k}, 16, v{XA+k}\nv_and_b32 v{U+2*k+1}, 0xffff0000, v{XA+k}")
    e(f"v_add_f32 v{V_A}, v{U}, v{U+1}\nv_mul_f32 v{V_A+1}, v{U}, v{U}\nv_fmac_f32 v{V_A+1}, v{U+1}, v{U+1}")
    for k in range(2, 8):
        e(f"v_add_f32 v{V_A}, v{V_A}, v{U+k}\nv_fmac_f32 v{V_A+1}, v{U+k}, v{U+k}")
    e(f"v_permlane32_swap_b32 v{V_A}, v{V_A+1}\nv_add_f32 v{V_A}, v{V_A}, v{V_A+1}")
    xrow(e, "v_add_f32", V_A, T0, 16)
    allreduce16(e, "v_add_f32", V_A)
    e(f"""
    v_lshlrev_b32 v{c}, 16, v{c}
    v_lshlrev_b32 v{x}, 16, v{x}
    v_readlane_b32 s91, v{V_A}, 0
    v_readlane_b32 s92, v{V_A}, 32
    """)
    silu(e, c, c, T0)
    e(f"""
    v_mov_b32 v{T0}, {f32(1/512)}
    v_mul_f32 v{T1}, s91, v{T0}
    v_mul_f32 v{T2}, s92, v{T0}
    v_fma_f32 v{T2}, -v{T1}, v{T1}, v{T2}
    v_add_f32 v{T2}, {f32(1e-5)}, v{T2}
    v_rsq_f32 v{T2}, v{T2}
    v_sub_f32 v{V_N}, v{x}, v{T1}
    v_mul_f32 v{V_N}, v{V_N}, v{T2}
    v_cvt_pk_bf16_f32 v{c}, v{c}, v{c}
    v_lshl_add_u32 v{T0}, v{V_LANE}, 1, s82
    ds_write_b16 v{T0}, v{c} offset:128
    """)
    for i in range(4, 16): wq_load(i)
    sts(e, cfg, 15)
    FO = 20
    e(f"""
    v_lshlrev_b32 v{FO}, 1, v{V_TAU2}
    s_mov_b32 s92, 4096
    """)
    def moda_loads(track):
        for k, (so, im) in enumerate((("0", 0), ("s92", 0), ("0", 2048), ("s92", 2048))):
            t = f"buffer_load_dword v{Z+k}, v{FO}, {WS}, {so} offen offset:{im} sc1"
            if track: e.vmem(t, f"MA{k}")
            else: e(t)
    e.wait_vm(f"wq{cfg.MODA_AFTER}")
    moda_loads(True)
    V_OB = 19
    unit64_voff(e, V_OB, 6144, T0, T1)
    e(f"""
    s_mul_i32 s90, s3, {64*6144}
    s_lshl_b32 s91, s81, 7
    s_add_u32 s90, s90, s91
    s_add_u32 s90, s90, 2048
    """)
    for ee in range(8):
        st.load(W1 + 4 * ee, V_OB, S_WMOD, "s90", ee * 6144, f"wb{ee}")
    V_OG, V_ODN = 21, 17
    unit64_voff(e, V_OG, 3584, T0, T1)
    e(f"""
    s_mul_i32 s61, s3, {64*3584}
    s_lshl_b32 s91, s81, 7
    s_add_u32 s61, s61, s91
    s_lshl_b32 s62, s81, 16
    s_lshl_b32 s91, s3, 7
    s_add_u32 s62, s62, s91
    s_cmp_lt_u32 s81, 28
    s_cselect_b32 s61, s61, {OOB}
    s_cselect_b32 s62, s62, {OOB}
    """)
    e.wait_vm("wq7")
    transpose_unit(e, W3, W2)
    e.wait_vm("wq15")
    transpose_unit(e, W4, W3)
    for ee in range(8): st.load(W4 + 4 * ee, V_OG, S_WG, "s61", ee * 3584, f"wg{ee}")
    e.wait_vm("MA3")
    sp = e.label("L_moda"); ok = e.label("L_modaok")
    check(e, T1, range(Z, Z + 4))
    e(f"s_cbranch_vccz {ok}\n{sp}:\ns_sleep 2")
    moda_loads(False)
    e("s_waitcnt vmcnt(0)")
    check(e, T1, range(Z, Z + 4))
    e(f"s_cbranch_vccz {ok}")
    spin_guard(e, sp)
    e(f"{ok}:")
    sts(e, cfg, 13)
    e(f"""
    v_add_f32 v{Z}, v{Z}, v{Z+1}
    v_add_f32 v{Z+2}, v{Z+2}, v{Z+3}
    v_add_f32 v{Z+2}, 1.0, v{Z+2}
    v_fma_f32 v{Z}, v{V_N}, v{Z+2}, v{Z}
    v_cvt_pk_bf16_f32 v{Z}, v{Z}, v{Z}
    v_lshl_add_u32 v{T0}, v{V_LANE}, 1, s82
    ds_write_b16 v{T0}, v{Z}
    v_lshrrev_b32 v{T0}, 4, v{V_LANE}
    v_lshl_add_u32 v{T0}, v{T0}, 4, s82
    ds_read_b128 v[{V_A}:{V_A+3}], v{T0}
    ds_read_b128 v[{V_A+4}:{V_A+7}], v{T0} offset:64
    s_waitcnt lgkmcnt(0)
    """)
    DQ = 44
    for t in range(8):
        e(f"v_mfma_f32_16x16x32_bf16 v[{DQ+4*t}:{DQ+4*t+3}], v[{V_A}:{V_A+3}], v[{W2+4*t}:{W2+4*t+3}], 0")
    for t in range(8):
        e(f"v_mfma_f32_16x16x32_bf16 v[{DQ+4*t}:{DQ+4*t+3}], v[{V_A+4}:{V_A+7}], v[{W3+4*t}:{W3+4*t+3}], v[{DQ+4*t}:{DQ+4*t+3}]")
    e(f"""
    s_lshl_b32 s91, s3, 9
    s_add_u32 s91, s91, {L_RQ}
    v_lshlrev_b32 v{T0}, 5, v{V_LANE}
    v_add_u32 v{T0}, s91, v{T0}
    s_mov_b64 exec, 0xffff
    """)
    for u in range(4):
        e(f"ds_write2_b32 v{T0}, v{DQ+8*u}, v{DQ+8*u+4} offset0:{2*u} offset1:{2*u+1}")
    e("s_mov_b64 exec, -1\ns_waitcnt lgkmcnt(0)\ns_barrier")
    lab = e.label("L_qpub")
    e(f"""
    s_cmp_lg_u32 s3, 0
    s_cbranch_scc1 {lab}
    v_lshlrev_b32 v{T0}, 3, v{V_LANE}
    """)
    for v in range(8):
        e(f"ds_read_b64 v[{Z+2*v}:{Z+2*v+1}], v{T0} offset:{L_RQ + 512*v}")
    e("s_waitcnt lgkmcnt(0)")
    e(f"v_add_f32 v{Z}, v{Z}, v{Z+2}\nv_add_f32 v{Z+1}, v{Z+1}, v{Z+3}")
    for v in range(2, 8):
        e(f"v_add_f32 v{Z}, v{Z}, v{Z+2*v}\nv_add_f32 v{Z+1}, v{Z+1}, v{Z+2*v+1}")
    tag(e, Z); tag(e, Z + 1)
    e(f"""
    s_lshl_b32 s91, s81, 9
    s_add_u32 s91, s91, {WS_Q}
    buffer_store_dwordx2 v[{Z}:{Z+1}], v{T0}, {WS}, s91 offen sc1
    {lab}:
    """)
    sts(e, cfg, 3)
    V_OW = 18
    unit128_voff(e, V_OW, 1024, T0, T1)
    unit64_voff(e, V_ODN, 1024, T0, T1)
    e(f"""
    s_lshr_b32 s60, s81, 1
    s_and_b32 s89, s81, 1
    s_lshl_b32 s90, s60, 8
    s_lshl_b32 s63, s3, 5
    s_add_u32 s90, s90, s63
    s_lshl_b32 s90, s90, 10
    s_lshl_b32 s63, s89, 9
    s_add_u32 s90, s90, s63
    s_mul_i32 s63, s3, 16384
    s_add_u32 s63, s63, {L_STG}
    """)
    def wo_load(i):
        cb, ee = divmod(i, 8)
        st.load(W2 + 4 * i, V_OW, S_WO, "s90", cb * 256 + ee * 1024, f"wo{i}")
    def dma(voff, srdq, sbase, byte_off, lds_off, tag):
        e(f"s_add_u32 s93, {sbase}, {byte_off}\ns_add_u32 s92, s63, {lds_off}\ns_mov_b32 m0, s92\ns_nop 0")
        e.vmem(f"buffer_load_dwordx4 v{voff}, s[{srdq}:{srdq+3}], s93 offen nt lds", tag)
    for i in range(16): wo_load(i)
    for ee in range(8): dma(V_OG, S_WU, "s61", ee * 3584, ee * 1024, f"wu{ee}")
    for ee in range(8): dma(V_ODN, S_WD, "s62", ee * 1024, 8192 + ee * 1024, f"wd{ee}")
    e("s_mov_b32 s61, s89")
    e.wait_vm("wb7")
    transpose_unit(e, W1, W0)
    e(f"""
    v_and_b32 v{T0}, 1, v{V_LANE}
    v_lshlrev_b32 v{T0}, 6, v{T0}
    v_lshrrev_b32 v{T1}, 4, v{V_LANE}
    v_lshlrev_b32 v{T1}, 4, v{T1}
    v_add_u32 v{T0}, v{T0}, v{T1}
    v_mov_b32 v{P_A64R}, v{T0}
    v_add_u32 v{T0}, s82, v{T0}
    ds_read_b128 v[{V_A}:{V_A+3}], v{T0} offset:128
    s_waitcnt lgkmcnt(0)
    """)
    DB = 44
    for t in range(8):
        e(f"v_mfma_f32_16x16x32_bf16 v[{DB+4*t}:{DB+4*t+3}], v[{V_A}:{V_A+3}], v[{W0+4*t}:{W0+4*t+3}], 0")
    zsum64(e, DB, Z)
    e(f"""
    s_lshl_b32 s91, s3, 8
    v_lshlrev_b32 v{T0}, 5, v{V_LANE}
    v_add_u32 v{T0}, s91, v{T0}
    s_mov_b64 exec, 0xff
    ds_write_b128 v{T0}, v[{Z}:{Z+3}] offset:{L_RB}
    ds_write_b128 v{T0}, v[{Z+4}:{Z+7}] offset:{L_RB+16}
    s_mov_b64 exec, -1
    s_waitcnt lgkmcnt(0)
    s_barrier
    """)
    lab = e.label("L_bpub")
    e(f"""
    s_cmp_lg_u32 s3, 0
    s_cbranch_scc1 {lab}
    v_lshlrev_b32 v{T0}, 2, v{V_LANE}
    """)
    for v in range(8):
        e(f"ds_read_b32 v{Z+v}, v{T0} offset:{L_RB + 256*v}")
    e("s_waitcnt lgkmcnt(0)")
    e(f"v_add_f32 v{Z}, v{Z}, v{Z+1}")
    for v in range(2, 8): e(f"v_add_f32 v{Z}, v{Z}, v{Z+v}")
    tag(e, Z)
    e(f"""
    s_lshl_b32 s91, s81, 8
    s_add_u32 s91, s91, {WS_MODB}
    buffer_store_dword v{Z}, v{T0}, s[{S_WS}:{S_WS+3}], s91 offen sc1
    {lab}:
    """)
    UR = 44
    e.wait_vm("wo7")
    transpose_unit(e, W2, W0)
    e.wait_vm("wo15")
    transpose_unit(e, W3, W1)
    transpose_unit(e, W4, W2)
    e(f"v_lshl_add_u32 v{T0}, v{V_LANE}, 4, s63")
    e.wait_vm("wu7")
    for ee in range(8): e(f"ds_read_b128 v[{UR+4*ee}:{UR+4*ee+3}], v{T0} offset:{ee*1024}")
    e("s_waitcnt lgkmcnt(0)")
    transpose_unit(e, UR, W3)
    e.wait_vm("wd7")
    for ee in range(8): e(f"ds_read_b128 v[{UR+4*ee}:{UR+4*ee+3}], v{T0} offset:{8192 + ee*1024}")
    e("s_waitcnt lgkmcnt(0)")
    transpose_unit(e, UR, W4)
    sts(e, cfg, 4)
    post_chain(e, cfg)
    yield "done"


def post_chain(e, cfg):
    Z = 76
    WS = f"s[{S_WS}:{S_WS+3}]"
    e(f"""
    v_lshrrev_b32 v{T0}, 4, v{V_LANE}
    v_and_b32 v{T1}, 1, v{T0}
    v_lshlrev_b32 v{T1}, 1, v{T1}
    v_lshrrev_b32 v{T2}, 1, v{T0}
    v_or_b32 v{T2}, v{T2}, v{T1}
    s_lshl_b32 s16, s3, 8
    s_add_u32 s16, s16, {L_WL}
    v_lshlrev_b32 v{P_A128R}, 4, v{T0}
    v_add_u32 v{P_A128R}, s16, v{P_A128R}
    v_add_u32 v{P_A64R}, s16, v{P_A64R}
    v_and_b32 v{T1}, 7, v{V_LANE}
    v_lshl_add_u32 v{T1}, v{T1}, 2, v{T2}
    v_lshlrev_b32 v{T1}, 1, v{T1}
    v_add_u32 v{P_WLW1}, s16, v{T1}
    v_and_b32 v{T1}, 15, v{V_LANE}
    v_lshl_add_u32 v{T1}, v{T1}, 2, v{T2}
    v_lshlrev_b32 v{T3}, 1, v{T1}
    v_add_u32 v{P_WH2}, s16, v{T3}
    s_lshl_b32 s91, s3, 6
    v_add_u32 v{T1}, s91, v{T1}
    v_lshlrev_b32 v{P_COL4}, 2, v{T1}
    v_lshlrev_b32 v{T3}, 1, v{T1}
    v_and_b32 v{T1}, 3, v{V_LANE}
    v_lshl_add_u32 v{T1}, v{T1}, 2, v{T2}
    s_lshl_b32 s91, s81, 4
    v_add_u32 v{T1}, s91, v{T1}
    v_lshlrev_b32 v{P_COLF4}, 2, v{T1}
    v_lshlrev_b32 v{T1}, 1, v{T1}
    v_and_b32 v{T0}, 12, v{V_LANE}
    v_cmp_eq_u32 vcc, 0, v{T0}
    v_mov_b32 v{P_OUTV}, {OOB}
    v_cndmask_b32 v{P_OUTV}, v{P_OUTV}, v{T1}, vcc
    s_mov_b32 s91, {WS_MODB}
    s_mov_b32 s92, {WS_MODB + 4096}
    v_and_b32 v{T1}, 31, v{V_LANE}
    v_lshlrev_b32 v{T1}, 2, v{T1}
    """)
    sp = e.label("L_modb"); ok = e.label("L_modbok")
    e(f"""
    {sp}:
    buffer_load_dword v{P_GA}, v{P_COL4}, {WS}, s91 offen sc1
    buffer_load_dword v{P_SB}, v{P_COL4}, {WS}, s91 offen offset:2048 sc1
    buffer_load_dword v{P_CB1}, v{P_COL4}, {WS}, s92 offen sc1
    buffer_load_dword v{P_GB}, v{P_COLF4}, {WS}, s92 offen offset:2048 sc1
    buffer_load_ushort v{P_X}, v{T3}, s[{S_X}:{S_X+3}], 0 offen
    buffer_load_dword v{T2}, v{T1}, s[{S_DBG}:{S_DBG+3}], 0 offen sc1
    s_waitcnt vmcnt(0)
    """)
    check(e, T0, [P_GA, P_SB, P_CB1, P_GB])
    e(f"v_cmp_eq_u32 s[82:83], 0, v{T2}\ns_or_b64 vcc, vcc, s[82:83]\ns_cbranch_vccz {ok}\ns_sleep 2")
    spin_guard(e, sp)
    e(f"{ok}:")
    e.vm = []
    e(f"""
    v_readfirstlane_b32 s91, v{T2}
    s_nop 1
    v_cmp_ne_u32 vcc, s91, v{T2}
    s_nop 1
    s_cmp_eq_u64 vcc, 0
    s_cselect_b32 s98, {0 if cfg.FORCE_SLOW else 1}, 0
    """)
    e(f"v_add_f32 v{P_CB1}, 1.0, v{P_CB1}\nv_lshlrev_b32 v{P_X}, 16, v{P_X}")
    e(f"""
    s_lshr_b32 s62, s60, 1
    s_mul_i32 s62, s62, 112
    s_and_b32 s63, s60, 1
    s_lshl_b32 s63, s63, 1
    s_add_u32 s62, s62, s63
    s_lshr_b32 s63, s3, 2
    s_add_u32 s62, s62, s63
    s_lshl_b32 s88, s62, 4
    s_add_u32 s88, s88, {WS_ML}
    s_lshl_b32 s62, s62, 9
    s_and_b32 s63, s3, 3
    s_lshl_b32 s63, s63, 7
    s_add_u32 s62, s62, s63
    s_add_u32 s62, s62, {WS_PART}
    s_add_u32 s63, s62, 16384
    s_add_u32 s89, s62, 32768
    s_add_u32 s90, s62, 49152
    v_lshrrev_b32 v{T0}, 3, v{V_LANE}
    v_and_b32 v{T1}, 7, v{V_LANE}
    v_lshlrev_b32 v{T1}, 4, v{T1}
    v_lshl_add_u32 v{P_PV}, v{T0}, 11, v{T1}
    v_lshlrev_b32 v{P_MV}, 6, v{T0}
    v_lshrrev_b32 v{T0}, 4, v{V_LANE}
    v_and_b32 v{T1}, 15, v{V_LANE}
    v_lshlrev_b32 v{T1}, 4, v{T1}
    v_lshl_add_u32 v{P_XV}, v{T0}, 11, v{T1}
    s_lshl_b32 s91, s3, 8
    v_add_u32 v{P_XV}, s91, v{P_XV}
    v_lshrrev_b32 v{T0}, 2, v{V_LANE}
    v_and_b32 v{T1}, 3, v{V_LANE}
    v_lshlrev_b32 v{T1}, 4, v{T1}
    s_lshl_b32 s91, s81, 6
    v_add_u32 v{T1}, s91, v{T1}
    v_lshl_add_u32 v{P_FV}, v{T0}, 11, v{T1}
    s_lshl_b32 s8, s3, 10
    s_add_u32 s8, s8, {L_RP1}
    s_lshl_b32 s9, s60, 11
    s_lshl_b32 s91, s61, 10
    s_add_u32 s9, s9, s91
    s_add_u32 s9, s9, {WS_X1P}
    s_lshl_b32 s10, s3, 3
    s_add_u32 s10, s10, {L_STA2}
    s_lshl_b32 s11, s3, 9
    s_add_u32 s11, s11, {L_RGU}
    s_lshl_b32 s12, s81, 11
    s_lshl_b32 s91, s3, 8
    s_add_u32 s12, s12, s91
    s_add_u32 s12, s12, {WS_FFP}
    s_mov_b32 s13, {WS_X1P}
    s_mov_b32 s17, {WS_X1P + 8192}
    s_mov_b32 s18, {WS_X1P + 16384}
    s_mov_b32 s19, {WS_X1P + 24576}
    s_mov_b32 s14, {WS_FFP}
    s_mov_b32 s15, {WS_FFP + 32768}
    """)
    DT, ML = 28, 44
    for r in range(4): e(f"v_mov_b32 v{DT+12+r}, s{S_TAU}")
    e(f"v_mov_b32 v{ML+12}, 0xff7fff00\nv_mov_b32 v{ML+13}, s{S_TAU}\nv_mov_b32 v{ML+14}, s{S_TAU}\nv_mov_b32 v{ML+15}, s{S_TAU}")
    tag(e, ML + 12)
    sts(e, cfg, 5)
    sp = e.label("L_hopA"); ok = e.label("L_hopAok")
    e(f"{sp}:")
    for i, sb in enumerate(("s62", "s63", "s89")):
        e(f"buffer_load_dwordx4 v[{DT+4*i}:{DT+4*i+3}], v{P_PV}, {WS}, {sb} offen sc1")
    for i in range(3):
        e(f"buffer_load_dwordx4 v[{ML+4*i}:{ML+4*i+3}], v{P_MV}, {WS}, s88 offen offset:{512*i} sc1")
    e(f"""
    s_mov_b32 exec_hi, 0
    buffer_load_dwordx4 v[{DT+12}:{DT+15}], v{P_PV}, {WS}, s90 offen sc1
    buffer_load_dwordx4 v[{ML+12}:{ML+15}], v{P_MV}, {WS}, s88 offen offset:1536 sc1
    s_mov_b32 exec_hi, -1
    s_waitcnt vmcnt(0)
    """)
    check(e, T0, range(DT, DT + 32), T1)
    e(f"s_cbranch_vccz {ok}")
    if cfg.SLEEP_A: e(f"s_sleep {cfg.SLEEP_A}")
    spin_guard(e, sp)
    e(f"{ok}:")
    sts(e, cfg, 6)
    m = [ML + 4 * i for i in range(4)]
    e(f"""
    v_max3_f32 v{T0}, v{m[0]}, v{m[1]}, v{m[2]}
    v_max_f32 v{T0}, v{T0}, v{m[3]}
    v_max_f32_dpp v{T0}, v{T0}, v{T0} row_ror:8 row_mask:0xf bank_mask:0xf
    """)
    xrow(e, "v_max_f32", T0, T1, 16)
    xrow(e, "v_max_f32", T0, T1, 32)
    for i in range(4): e(f"v_sub_f32 v{m[i]}, v{m[i]}, v{T0}")
    for i in range(4): e(f"v_exp_f32 v{m[i]}, v{m[i]}")
    AC = 60
    e(f"v_mul_f32 v{T2}, v{m[0]}, v{m[0]+1}")
    for r in range(4): e(f"v_mul_f32 v{AC+r}, v{m[0]}, v{DT+r}")
    for i in range(1, 4):
        e(f"v_fmac_f32 v{T2}, v{m[i]}, v{m[i]+1}")
        for r in range(4): e(f"v_fmac_f32 v{AC+r}, v{m[i]}, v{DT+4*i+r}")
    e(f"v_add_f32_dpp v{T2}, v{T2}, v{T2} row_ror:8 row_mask:0xf bank_mask:0xf")
    rs4(e, AC)
    xrow(e, "v_add_f32", T2, T1, 16)
    e(f"v_add_f32_dpp v{AC}, v{AC}, v{AC} row_ror:8 row_mask:0xf bank_mask:0xf")
    xrow(e, "v_add_f32", T2, T1, 32)
    e(f"""
    v_rcp_f32 v{T2}, v{T2}
    v_mul_f32 v{AC}, v{AC}, v{T2}
    v_cvt_pk_bf16_f32 v{AC}, v{AC}, v{AC}
    ds_write_b16 v{P_WLW1}, v{AC}
    ds_read_b128 v[{V_A}:{V_A+3}], v{P_A128R}
    v_lshl_add_u32 v{T0}, v{V_LANE}, 5, s8
    s_waitcnt lgkmcnt(0)
    """)
    DP = 32
    for cb in range(2):
        for t in range(8):
            d = DP + 4 * (8 * cb + t); b = W0 + 32 * cb + 4 * t
            e(f"v_mfma_f32_16x16x32_bf16 v[{d}:{d+3}], v[{V_A}:{V_A+3}], v[{b}:{b+3}], 0")
    e("s_mov_b64 exec, 0xffff")
    for cb in range(2):
        for u in range(4):
            d = DP + 4 * (8 * cb + 2 * u)
            e(f"ds_write2_b32 v{T0}, v{d}, v{d+4} offset0:{128*cb+2*u} offset1:{128*cb+2*u+1}")
    e("s_mov_b64 exec, -1\ns_waitcnt lgkmcnt(0)\ns_barrier")
    lab = e.label("L_p1pub")
    e(f"""
    s_cmp_lg_u32 s3, 0
    s_cbranch_scc1 {lab}
    v_lshlrev_b32 v{T0}, 4, v{V_LANE}
    """)
    for v in range(8):
        e(f"ds_read_b128 v[{32+4*v}:{32+4*v+3}], v{T0} offset:{L_RP1 + 1024*v}")
    e("s_waitcnt lgkmcnt(4)")
    for v in (1, 2, 3):
        for r in range(4): e(f"v_add_f32 v{32+r}, v{32+r}, v{32+4*v+r}")
    e("s_waitcnt lgkmcnt(0)")
    for v in (4, 5, 6, 7):
        for r in range(4): e(f"v_add_f32 v{32+r}, v{32+r}, v{32+4*v+r}")
    for r in range(4): tag(e, 32 + r)
    store_mode(e, f"buffer_store_dwordx4 v[32:35], v{T0}, {WS}, s9 offen {{pol}}")
    e(f"{lab}:")
    sts(e, cfg, 7)
    XD = 28
    sp = e.label("L_hopB"); ok = e.label("L_hopBok")
    e(f"{sp}:")
    for i, sb in enumerate(("s13", "s17", "s18", "s19")):
        e(f"buffer_load_dwordx4 v[{XD+4*i}:{XD+4*i+3}], v{P_XV}, {WS}, {sb} offen sc1")
    e("s_waitcnt vmcnt(0)")
    check(e, T0, range(XD, XD + 16), T1)
    e(f"s_cbranch_vccz {ok}")
    spin_guard(e, sp)
    e(f"{ok}:")
    e.vm = []
    sts(e, cfg, 8)
    for r in range(4):
        e(f"v_add_f32 v{XD+r}, v{XD+r}, v{XD+4+r}\nv_add_f32 v{XD+8+r}, v{XD+8+r}, v{XD+12+r}")
    for r in range(4): e(f"v_add_f32 v{XD+r}, v{XD+r}, v{XD+8+r}")
    rs4(e, XD)
    X1 = 44
    e(f"""
    v_fma_f32 v{X1}, v{P_GA}, v{XD}, v{P_X}
    v_mov_b32 v{T0}, v{X1}
    v_mul_f32 v{T1}, v{X1}, v{X1}
    ds_write_b32 v{P_COL4}, v{X1} offset:{L_X1}
    v_permlane32_swap_b32 v{T0}, v{T1}
    v_add_f32 v{T0}, v{T0}, v{T1}
    """)
    xrow(e, "v_add_f32", T0, T1, 16)
    allreduce16(e, "v_add_f32", T0)
    e(f"""
    v_lshrrev_b32 v{T1}, 5, v{V_LANE}
    v_lshl_add_u32 v{T1}, v{T1}, 2, s10
    s_mov_b32 exec_lo, 1
    s_mov_b32 exec_hi, 1
    ds_write_b32 v{T1}, v{T0}
    s_mov_b64 exec, -1
    v_mov_b32 v{T2}, 0
    s_waitcnt lgkmcnt(0)
    s_barrier
    """)
    SZ = 28
    for k in range(4):
        e(f"ds_read_b128 v[{SZ+4*k}:{SZ+4*k+3}], v{T2} offset:{L_STA2+16*k}")
    e(f"ds_read_b32 v46, v{P_COLF4} offset:{L_X1}")
    e("s_waitcnt lgkmcnt(1)")
    e(f"v_add_f32 v{T0}, v{SZ}, v{SZ+2}\nv_add_f32 v{T2}, v{SZ+1}, v{SZ+3}")
    for k in range(4, 16, 4):
        e(f"v_add_f32 v{SZ+k}, v{SZ+k}, v{SZ+k+2}\nv_add_f32 v{SZ+k+1}, v{SZ+k+1}, v{SZ+k+3}")
    for k in range(4, 16, 4):
        e(f"v_add_f32 v{T0}, v{T0}, v{SZ+k}\nv_add_f32 v{T2}, v{T2}, v{SZ+k+1}")
    e(f"""
    v_mul_f32 v{T0}, {f32(1/512)}, v{T0}
    v_mul_f32 v{T2}, {f32(1/512)}, v{T2}
    v_fma_f32 v{T2}, -v{T0}, v{T0}, v{T2}
    v_add_f32 v{T2}, {f32(1e-5)}, v{T2}
    v_rsq_f32 v{T2}, v{T2}
    v_sub_f32 v{T1}, v{X1}, v{T0}
    v_mul_f32 v{T1}, v{T1}, v{T2}
    v_fma_f32 v{T1}, v{T1}, v{P_CB1}, v{P_SB}
    v_cvt_pk_bf16_f32 v{T1}, v{T1}, v{T1}
    s_cmp_ge_u32 s81, 28
    s_cbranch_scc1 L_final
    ds_write_b16 v{P_WH2}, v{T1} offset:64
    ds_read_b128 v[{V_A}:{V_A+3}], v{P_A64R} offset:64
    s_waitcnt lgkmcnt(0)
    """)
    DG = W0
    for t in range(8):
        e(f"v_mfma_f32_16x16x32_bf16 v[{DG+4*t}:{DG+4*t+3}], v[{V_A}:{V_A+3}], v[{W2+4*t}:{W2+4*t+3}], 0")
    for t in range(8):
        e(f"v_mfma_f32_16x16x32_bf16 v[{DG+32+4*t}:{DG+32+4*t+3}], v[{V_A}:{V_A+3}], v[{W3+4*t}:{W3+4*t+3}], 0")
    ZG = 48
    e(f"v_lshl_add_u32 v{T0}, v{V_LANE}, 5, s11")
    zsum64(e, DG, ZG)
    zsum64(e, DG + 32, ZG + 8)
    e(f"""
    s_mov_b64 exec, 0xff
    ds_write_b128 v{T0}, v[{ZG}:{ZG+3}]
    ds_write_b128 v{T0}, v[{ZG+4}:{ZG+7}] offset:16
    ds_write_b128 v{T0}, v[{ZG+8}:{ZG+11}] offset:256
    ds_write_b128 v{T0}, v[{ZG+12}:{ZG+15}] offset:272
    s_mov_b64 exec, -1
    v_lshlrev_b32 v{T0}, 2, v{V_LANE}
    v_add_u32 v{T0}, {L_RGU}, v{T0}
    s_waitcnt lgkmcnt(0)
    s_barrier
    """)
    GU = 64
    for v in range(8):
        e(f"ds_read2st64_b32 v[{GU+2*v}:{GU+2*v+1}], v{T0} offset0:{2*v} offset1:{2*v+1}")
    e(f"v_lshlrev_b32 v{T1}, 1, v{V_LANE}\nv_add_u32 v{T1}, s16, v{T1}")
    e("s_waitcnt lgkmcnt(0)")
    for v in range(0, 8, 2):
        e(f"v_add_f32 v{GU+2*v}, v{GU+2*v}, v{GU+2*v+2}\nv_add_f32 v{GU+2*v+1}, v{GU+2*v+1}, v{GU+2*v+3}")
    e(f"v_add_f32 v{GU}, v{GU}, v{GU+4}\nv_add_f32 v{GU+1}, v{GU+1}, v{GU+5}")
    e(f"v_add_f32 v{GU+8}, v{GU+8}, v{GU+12}\nv_add_f32 v{GU+9}, v{GU+9}, v{GU+13}")
    e(f"v_add_f32 v{GU}, v{GU}, v{GU+8}\nv_add_f32 v{GU+1}, v{GU+1}, v{GU+9}")
    e(f"""
    v_mul_f32 v{T0}, {f32(-LOG2E)}, v{GU}
    v_exp_f32 v{T0}, v{T0}
    v_mul_f32 v{GU}, v{GU}, v{GU+1}
    v_add_f32 v{T0}, 1.0, v{T0}
    v_rcp_f32 v{T0}, v{T0}
    v_mul_f32 v{T0}, v{GU}, v{T0}
    v_cvt_pk_bf16_f32 v{T0}, v{T0}, v{T0}
    ds_write_b16 v{T1}, v{T0} offset:128
    ds_read_b128 v[{V_A}:{V_A+3}], v{P_A64R} offset:128
    s_waitcnt lgkmcnt(0)
    """)
    DD = 48
    for t in range(8):
        e(f"v_mfma_f32_16x16x32_bf16 v[{DD+4*t}:{DD+4*t+3}], v[{V_A}:{V_A+3}], v[{W4+4*t}:{W4+4*t+3}], 0")
    ZD = 80
    e(f"v_lshlrev_b32 v{T0}, 5, v{V_LANE}")
    zsum64(e, DD, ZD)
    for r in range(8): tag(e, ZD + r)
    e("s_mov_b64 exec, 0xff")
    store_mode(e, f"buffer_store_dwordx4 v[{ZD}:{ZD+3}], v{T0}, {WS}, s12 offen {{pol}}\nbuffer_store_dwordx4 v[{ZD+4}:{ZD+7}], v{T0}, {WS}, s12 offen offset:16 {{pol}}")
    e("s_mov_b64 exec, -1")
    e("L_final:")
    e("s_waitcnt lgkmcnt(0)")
    sts(e, cfg, 9)
    lab_end = e.label("L_svc_end")
    e(f"s_cmp_lg_u32 s3, 0\ns_cbranch_scc1 {lab_end}")
    FD = 28
    for r in range(4): e(f"v_mov_b32 v{FD+4+r}, s{S_TAU}")
    sp = e.label("L_hopC"); ok = e.label("L_hopCok")
    e(f"""
    {sp}:
    buffer_load_dwordx4 v[{FD}:{FD+3}], v{P_FV}, {WS}, s14 offen sc1
    s_mov_b32 exec_hi, 0xffff
    buffer_load_dwordx4 v[{FD+4}:{FD+7}], v{P_FV}, {WS}, s15 offen sc1
    s_mov_b32 exec_hi, -1
    s_waitcnt vmcnt(0)
    """)
    check(e, T0, range(FD, FD + 8), T1)
    e(f"s_cbranch_vccz {ok}")
    spin_guard(e, sp)
    e(f"{ok}:")
    sts(e, cfg, 10)
    for r in range(4): e(f"v_add_f32 v{FD+r}, v{FD+r}, v{FD+4+r}")
    rs4(e, FD)
    e(f"""
    v_add_f32_dpp v{FD}, v{FD}, v{FD} row_ror:4 row_mask:0xf bank_mask:0xf
    v_add_f32_dpp v{FD}, v{FD}, v{FD} row_ror:8 row_mask:0xf bank_mask:0xf
    v_fma_f32 v{FD}, v{P_GB}, v{FD}, v46
    v_cvt_pk_bf16_f32 v{FD}, v{FD}, v{FD}
    buffer_store_short v{FD}, v{P_OUTV}, s[{S_OUT}:{S_OUT+3}], 0 offen
    """)
    sts(e, cfg, 11)
    e(f"{lab_end}:")
    if cfg.TS:
        e(f"""
        s_lshl_b32 s91, s81, 3
        s_add_u32 s91, s91, s3
        s_lshl_b32 s91, s91, 7
        s_add_u32 s91, s91, {WS_TS + 0x10000}
        v_lshlrev_b32 v{T0}, 2, v{V_LANE}
        s_mov_b32 exec_hi, 0
        buffer_store_dword v0, v{T0}, {WS}, s91 offen
        """)
    e("s_endpgm")
```

```python
import sys
sys.path.insert(0, "gen")
from kern import *
import att, svc

def build(cfg):
    e = Emitter()
    e(f"""
    L_entry:
    s_getpc_b64 s[76:77]
    L_pc:
    s_load_dwordx16 s[8:23], s[0:1], 0
    s_load_dwordx4 s[32:35], s[0:1], 96
    s_load_dwordx8 s[24:31], s[0:1], 64
    s_cmp_ge_u32 s2, 256
    s_cbranch_scc1 L_exit
    s_mov_b32 s78, L_code_end-L_pc
    s_mov_b32 s79, 0x20000
    v_lshlrev_b32 v3, 4, v0
    s_cmp_ge_u32 s2, {cfg.PF_WGS}
    s_cbranch_scc1 L_nopf0
    s_movk_i32 s80, 0x2000
    buffer_load_dwordx4 v[248:251], v3, s[76:79], 0 offen
    buffer_load_dwordx4 v[252:255], v3, s[76:79], s80 offen
    L_nopf0:
    v_lshrrev_b32 v2, 6, v0
    v_and_b32 v1, 63, v0
    s_and_b32 s80, s2, 7
    s_lshr_b32 s81, s2, 3
    v_readfirstlane_b32 s3, v2
    s_cmp_lg_u32 s80, 0
    s_cbranch_scc1 L_attention
    v_mov_b32 v4, 0
    v_mov_b32 v5, 0x200000
    s_waitcnt lgkmcnt(0)
    global_load_dword v240, v4, s[14:15]
    global_load_dword v241, v4, s[28:29]
    global_load_dword v242, v5, s[14:15]
    global_load_dword v243, v5, s[28:29]
    global_load_dword v244, v4, s[8:9]
    global_load_dword v245, v4, s[26:27]
    global_load_dword v246, v4, s[34:35]
    s_branch L_service
    L_attention:
    """)
    att.attention(e, cfg)
    e.vm = []
    e("L_service:")
    for _ in svc.service(e, cfg): pass
    e("L_exit:\ns_endpgm\nL_code_end:")
    lds = max(att.att_lds(cfg), svc.SVC_LDS)
    lds = (lds + 255) // 256 * 256
    return wrap_single(e.text(), 256, 512, lds, 256)

def mkcfg(**kw):
    c = Cfg()
    c.Q_AT = 45
    c.NVL = 16
    c.MODA_AFTER = 12
    c.D_V = 4
    c.V_EARLY_TILES = 1
    c.V_PER_LDS_GROUP = 2
    c.NQ1 = 2
    c.PF_WGS = 64
    for k, v in kw.items(): setattr(c, k, v)
    return c

if __name__ == "__main__":
    out = sys.argv[1] if len(sys.argv) > 1 else "k0.s"
    kw = {}
    for a in sys.argv[2:]:
        k, v = a.split("=")
        kw[k] = int(v) if v.lstrip("-").isdigit() else (v == "True")
    open(out, "w").write(build(mkcfg(**kw)))
    print("wrote", out)
```

```python
from kern import *

V_LANE, V_KOFF, V_VOFF, V_QOFF, V_FO2, V_T0, V_T1 = 1, 2, 3, 4, 5, 6, 7
V_Q = 8
V_S = 12
V_M, V_L = 22, 23
V_D = [24, 40]
V_O = 56
V_STG = 88
V_POP = 104
V_KV = 108
NBLK = 37
LDS_OBUF = 0
LDS_MLW = 16384
LDS_VL = 16384 + 256
def att_lds(cfg): return LDS_VL + 8 * cfg.NVL * 1024

def kv(i): return V_KV + 4 * i

def attention(e, cfg):
    e(f"""
    s_sub_u32 s82, s80, 1
    s_lshl_b32 s82, s82, 5
    s_add_u32 s82, s82, s81
    s_mov_b32 s83, {(2**32 + 27) // 28}
    s_mul_hi_u32 s84, s82, s83
    s_mul_i32 s85, s84, 28
    s_sub_u32 s85, s82, s85
    s_lshl_b32 s86, s85, 3
    s_add_u32 s86, s86, s3
    s_lshl_b32 s87, s86, 8
    s_mov_b32 s83, {(2**32 + 6) // 7}
    s_mul_hi_u32 s88, s87, s83
    s_add_u32 s87, s87, 256
    s_mul_hi_u32 s89, s87, s83
    s_sub_u32 s89, s89, s88
    s_lshl_b32 s52, s88, 10
    s_lshl_b32 s90, s84, 23
    v_bfe_u32 v{V_KOFF}, v{V_LANE}, 2, 2
    v_lshlrev_b32 v{V_KOFF}, 8, v{V_KOFF}
    v_lshrrev_b32 v{V_T0}, 4, v{V_LANE}
    v_lshlrev_b32 v{V_T0}, 6, v{V_T0}
    v_and_b32 v{V_T1}, 3, v{V_LANE}
    v_lshlrev_b32 v{V_VOFF}, 4, v{V_T1}
    v_add3_u32 v{V_KOFF}, v{V_KOFF}, v{V_T0}, v{V_VOFF}
    """)
    e("s_waitcnt lgkmcnt(0)")
    tag_setup(e)
    srd(e, 36, 10, 11, 0x800000, add="s90")
    ts(e, cfg, 60)
    D = cfg.D_ATT
    DE = cfg.D_ATT_EVEN
    def throttle(dodd, deven):
        if deven < dodd and len(e.vm) >= deven:
            lab = e.label("L_th")
            e(f"s_cbranch_vccz {lab}\ns_waitcnt vmcnt({deven-1})\n{lab}:")
        e.wait_vm_n(dodd - 1)
    def set_parity():
        e("s_getreg_b32 s51, hwreg(HW_REG_XCC_ID)\ns_bitcmp1_b32 s51, 0\ns_cselect_b64 vcc, 0, -1")
    cur = [None]
    def kload(i):
        hi = (i // 4) * 4096
        if i == NBLK - 1:
            e.vmem(f"buffer_load_dwordx4 v[{kv(i)}:{kv(i)+3}], v{V_KOFF}, s[36:39], s54 offen nt", f"K{i}")
            return
        if cur[0] != hi:
            if hi == 0: e("s_mov_b32 s53, s52")
            else: e(f"s_add_u32 s53, s52, {hi}")
            cur[0] = hi
        e.vmem(f"buffer_load_dwordx4 v[{kv(i)}:{kv(i)+3}], v{V_KOFF}, s[36:39], s53 offen offset:{(i%4)*1024} nt", f"K{i}")
    D0 = min(D, DE)
    for i in range(D0):
        kload(i)
    srd(e, 40, 12, 13, 0x800000, add="s90")
    srd(e, 44, 34, 35, WS_SIZE)
    e(f"""
    s_add_u32 s54, s52, {(NBLK-1)*1024}
    s_cmp_eq_u32 s89, {NBLK}
    s_cselect_b32 s54, s54, {OOB}
    s_cselect_b32 s56, 0, 0xff800000
    s_lshl_b32 s55, s84, 11
    s_add_u32 s55, s55, {WS_Q}
    s_mov_b32 s57, {f32(SCALE_C)}
    s_mul_i32 s58, s84, 28
    s_add_u32 s58, s58, s85
    s_lshl_b32 s59, s58, 6
    s_add_u32 s59, s59, {WS_ML}
    s_lshl_b32 s58, s58, 11
    s_add_u32 s58, s58, {WS_PART}
    s_mov_b32 s94, 0x05040100
    s_mov_b32 s95, 0x07060302
    s_mov_b32 s99, {cfg.SPIN}
    v_lshlrev_b32 v{V_QOFF}, 9, v{V_T1}
    v_lshl_add_u32 v{V_QOFF}, v{V_T0}, 1, v{V_QOFF}
    v_bfe_u32 v{V_T0}, v{V_LANE}, 2, 2
    v_lshl_add_u32 v{V_QOFF}, v{V_T0}, 5, v{V_QOFF}
    v_lshlrev_b32 v{V_VOFF}, 4, v{V_LANE}
    v_mov_b32 v{V_S+9}, 0xff800000
    """)
    Q_AT = cfg.Q_AT
    NVL = cfg.NVL
    QR = V_D[0]
    def qloads(track):
        for k in range(2):
            t = f"buffer_load_dwordx4 v[{QR+4*k}:{QR+4*k+3}], v{V_QOFF}, s[44:47], s55 offen offset:{16*k} sc1"
            if track: e.vmem(t, f"Q{k}")
            else: e(t)
    e(f"s_mul_i32 s48, s3, {NVL*1024}\ns_add_u32 s48, s48, {LDS_VL}")
    def vdma(k):
        if k % 4 == 0:
            e(f"s_add_u32 s49, s52, {k*1024}\ns_add_u32 s50, s48, {k*1024}\ns_mov_b32 m0, s50\ns_nop 0")
        e.vmem(f"buffer_load_dwordx4 v{V_VOFF}, s[40:43], s49 offen offset:{(k%4)*1024} nt lds", f"L{k}")
    set_parity()
    for i in range(D0, NBLK + NVL):
        if i == Q_AT:
            throttle(D, DE)
            qloads(True)
        throttle(D, DE)
        if i < NBLK: kload(i)
        else: vdma(i - NBLK)
    ts(e, cfg, 61)
    e("s_waitcnt lgkmcnt(0)")
    tag_finish(e)
    e.wait_vm("Q1")
    ok = e.label("L_qok"); sp = e.label("L_qspin")
    check(e, V_T0, range(QR, QR + 8))
    e(f"s_cbranch_vccz {ok}\n{sp}:\ns_sleep 8")
    qloads(False)
    e("s_waitcnt vmcnt(0)")
    check(e, V_T0, range(QR, QR + 8))
    e(f"s_cbranch_vccz {ok}")
    spin_guard(e, sp)
    e(f"{ok}:")
    for k in range(4):
        e(f"v_cvt_pk_bf16_f32 v{V_Q+k}, v{QR+2*k}, v{QR+2*k+1}")
    ts(e, cfg, 62)
    curv = [None]
    def vload(i):
        hi = (i // 4) * 4096
        if i == NBLK - 1:
            e.vmem(f"buffer_load_dwordx4 v[{kv(i)}:{kv(i)+3}], v{V_VOFF}, s[40:43], s54 offen nt", f"V{i}")
            return
        if curv[0] != hi:
            if hi == 0: e("s_mov_b32 s53, s52")
            else: e(f"s_add_u32 s53, s52, {hi}")
            curv[0] = hi
        e.vmem(f"buffer_load_dwordx4 v[{kv(i)}:{kv(i)+3}], v{V_VOFF}, s[40:43], s53 offen offset:{(i%4)*1024} nt", f"V{i}")
    def tile_blocks(T): return list(range(4 * T, min(4 * T + 4, NBLK)))
    def reduce_tile(T, par):
        Db = V_D[par]
        S = V_S + T
        for t, blk in enumerate(tile_blocks(T)):
            for b in range(4):
                rot = (4 * (t - b)) % 16
                ctl = f"row_ror:{rot}" if rot else "quad_perm:[0,1,2,3]"
                if b == 0:
                    e(f"v_mov_b32_dpp v{S}, v{Db + 4*t + b} {ctl} row_mask:0xf bank_mask:0x{1 << t:x}")
                else:
                    e(f"v_add_f32_dpp v{S}, v{Db + 4*t + b}, v{S} {ctl} row_mask:0xf bank_mask:0x{1 << t:x}")
    NT = 10
    DV = cfg.D_V
    DVE = cfg.D_V_EVEN
    set_parity()
    NVT = NVL // 4
    order = list(range(NVT, NT)) + list(range(NVT))
    vnext = [NVL]
    def v_issue_upto(n):
        while vnext[0] < min(n, NBLK):
            throttle(DV, DVE)
            vload(vnext[0]); vnext[0] += 1
    e(f"v_lshl_add_u32 v{V_FO2}, v{V_LANE}, 4, s48")
    prev = None
    for n, T in enumerate(order):
        bl = tile_blocks(T)
        e.wait_vm(f"K{bl[-1]}")
        for t, blk in enumerate(bl):
            Dd = V_D[n & 1] + 4 * t
            e(f"v_mfma_f32_16x16x32_bf16 v[{Dd}:{Dd+3}], v[{kv(blk)}:{kv(blk)+3}], v[{V_Q}:{V_Q+3}], 0")
        if prev is not None: reduce_tile(prev, (n - 1) & 1)
        if n < cfg.V_EARLY_TILES and T >= NVT:
            for blk in bl:
                if blk == vnext[0]:
                    vload(blk); vnext[0] += 1
        if T < NVT:
            e.wait_vm(f"L{bl[-1]}")
            for blk in bl:
                e(f"ds_read_b128 v[{kv(blk)}:{kv(blk)+3}], v{V_FO2} offset:{blk*1024}")
        prev = T
    reduce_tile(prev, (NT - 1) & 1)
    e(f"v_add_f32 v{V_S+9}, s56, v{V_S+9}")
    ts(e, cfg, 63)
    e(f"v_max3_f32 v{V_M}, v{V_S}, v{V_S+1}, v{V_S+2}")
    for k in range(3, 9, 2):
        e(f"v_max3_f32 v{V_M}, v{V_M}, v{V_S+k}, v{V_S+k+1}")
    e(f"v_max_f32 v{V_M}, v{V_M}, v{V_S+9}")
    allreduce16(e, "v_max_f32", V_M, steps=(4, 8))
    xrow(e, "v_max_f32", V_M, V_T0, 16)
    xrow(e, "v_max_f32", V_M, V_T0, 32)
    e(f"v_mul_f32 v{V_M}, s57, v{V_M}")
    for T in range(NT):
        e(f"v_fma_f32 v{V_S+T}, v{V_S+T}, s57, -v{V_M}")
    for T in range(NT):
        e(f"v_exp_f32 v{V_S+T}, v{V_S+T}")
    v_issue_upto(vnext[0] + 2)
    e(f"v_add_f32 v{V_L}, v{V_S}, v{V_S+1}")
    for T in range(2, NT):
        e(f"v_add_f32 v{V_L}, v{V_L}, v{V_S+T}")
    for g in range(5):
        e(f"v_cvt_pk_bf16_f32 v{V_S+2*g}, v{V_S+2*g}, v{V_S+2*g+1}")
    allreduce16(e, "v_add_f32", V_L, steps=(4, 8))
    xrow(e, "v_add_f32", V_L, V_T0, 16)
    xrow(e, "v_add_f32", V_L, V_T0, 32)
    e(f"""
    s_lshl_b32 s91, s3, 5
    v_lshlrev_b32 v{V_T0}, 3, v{V_LANE}
    v_add_u32 v{V_T0}, s91, v{V_T0}
    s_mov_b64 exec, 0xf
    ds_write_b64 v{V_T0}, v[{V_M}:{V_M+1}] offset:{LDS_MLW}
    s_mov_b64 exec, -1
    """)
    for g in range(5):
        last_blk = tile_blocks(min(2 * g + 1, NT - 1))[-1]
        if last_blk < NVL:
            v_issue_upto(vnext[0] + cfg.V_PER_LDS_GROUP)
            e("s_waitcnt lgkmcnt(0)")
        else:
            v_issue_upto(last_blk + 1 + DV)
            e.wait_vm(f"V{last_blk}")
        X = V_S + 2 * g
        e(f"v_mov_b32 v{V_POP}, v{X}")
        for m in range(1, 4):
            e(f"v_mov_b32_dpp v{V_POP+m}, v{X} row_shl:{4*m} row_mask:0xf bank_mask:0xf")
        for j in range(4):
            st = V_STG + 8 * (j & 1)
            for m in range(4):
                x = kv(8 * g + m) + j
                yb = 8 * g + 4 + m
                y = (kv(yb) if yb < NBLK else kv(8 * g + m)) + j
                e(f"v_perm_b32 v{st + m}, v{y}, v{x}, s94")
                e(f"v_perm_b32 v{st + 4 + m}, v{y}, v{x}, s95")
            for q in range(2):
                O = V_O + 4 * (2 * j + q)
                C = "0" if g == 0 else f"v[{O}:{O+3}]"
                e(f"v_mfma_f32_16x16x32_bf16 v[{O}:{O+3}], v[{V_POP}:{V_POP+3}], v[{st+4*q}:{st+4*q+3}], {C}")
    ts(e, cfg, 64)
    e(f"""
    s_lshl_b32 s91, s3, 11
    v_lshlrev_b32 v{V_T0}, 5, v{V_LANE}
    v_add_u32 v{V_T0}, s91, v{V_T0}
    v_add_u32 v{V_T1}, 1024, v{V_T0}
    s_mov_b64 exec, 0xffff
    """)
    for u in range(4):
        for r in range(4):
            a = V_T0 if r < 2 else V_T1
            o0 = (r & 1) * 128 + 2 * u
            e(f"ds_write2_b32 v{a}, v{V_O + 4*(2*u) + r}, v{V_O + 4*(2*u+1) + r} offset0:{o0} offset1:{o0+1}")
    e("s_mov_b64 exec, -1")
    A0, A1, AM, AP = 24, 25, 26, 27
    e(f"""
    v_lshrrev_b32 v{A1}, 2, v{V_LANE}
    s_lshl_b32 s91, s3, 4
    v_add_u32 v{A1}, s91, v{A1}
    v_lshlrev_b32 v{A1}, 4, v{A1}
    v_and_b32 v{AM}, 3, v{V_LANE}
    v_lshlrev_b32 v{A0}, 12, v{AM}
    v_add_u32 v{A0}, v{A0}, v{A1}
    v_cmp_eq_u32 vcc, 0, v{AM}
    v_mov_b32 v{AP}, {OOB}
    v_cndmask_b32 v{AP}, v{AP}, v{A1}, vcc
    s_lshr_b32 s91, s3, 1
    s_lshl_b32 s91, s91, 3
    v_lshlrev_b32 v{AM}, 6, v{AM}
    v_add_u32 v{AM}, s91, v{AM}
    v_cmp_eq_u32 vcc, 0, v{V_LANE}
    v_mov_b32 v{A1}, {OOB}
    s_lshl_b32 s91, s91, 1
    v_mov_b32 v28, s91
    v_cndmask_b32 v{A1}, v{A1}, v28, vcc
    s_waitcnt lgkmcnt(0)
    s_barrier
    ds_read_b64 v[30:31], v{AM} offset:{LDS_MLW}
    ds_read_b64 v[32:33], v{AM} offset:{LDS_MLW+32}
    ds_read_b128 v[36:39], v{A0}
    ds_read_b128 v[40:43], v{A0} offset:2048
    s_waitcnt lgkmcnt(2)
    v_max_f32 v34, v30, v32
    v_max_f32_dpp v34, v34, v34 quad_perm:[1,0,3,2] row_mask:0xf bank_mask:0xf
    v_max_f32_dpp v34, v34, v34 quad_perm:[2,3,0,1] row_mask:0xf bank_mask:0xf
    """)
    tag(e, 34)
    e(f"""
    v_sub_f32 v30, v30, v34
    v_sub_f32 v32, v32, v34
    v_exp_f32 v30, v30
    v_exp_f32 v32, v32
    v_mul_f32 v35, v30, v31
    v_fmac_f32 v35, v32, v33
    s_waitcnt lgkmcnt(0)
    """)
    for r in range(4):
        e(f"v_mul_f32 v{36+r}, v30, v{36+r}")
    for r in range(4):
        e(f"v_fmac_f32 v{36+r}, v32, v{40+r}")
    for qp in ("[1,0,3,2]", "[2,3,0,1]"):
        for r in (36, 37, 38, 39, 35):
            e(f"v_add_f32_dpp v{r}, v{r}, v{r} quad_perm:{qp} row_mask:0xf bank_mask:0xf")
    for r in (36, 37, 38, 39, 35):
        tag(e, r)
    e.vmem(f"buffer_store_dwordx4 v[36:39], v{AP}, s[44:47], s58 offen sc1", "PS")
    e("v_mov_b32 v32, v34\nv_mov_b32 v33, v35\nv_mov_b32 v30, v34\nv_mov_b32 v31, v35")
    e.vmem(f"buffer_store_dwordx4 v[30:33], v{A1}, s[44:47], s59 offen sc1", "MS")
    ts(e, cfg, 65)
    if cfg.TS:
        e.wait_vm_all()
        ts(e, cfg, 66)
        e(f"""
        s_lshl_b32 s91, s2, 3
        s_add_u32 s91, s91, s3
        s_lshl_b32 s91, s91, 5
        s_add_u32 s91, s91, {WS_TS}
        v_mov_b32 v6, {OOB}
        v_cmp_eq_u32 vcc, 0, v{V_LANE}
        v_cndmask_b32 v6, v6, 0, vcc
        """)
        for k in range(7): e(f"v_mov_b32 v{36+k}, s{60+k}")
        e("v_mov_b32 v43, s89")
        e("buffer_store_dwordx4 v[36:39], v6, s[44:47], s91 offen")
        e("buffer_store_dwordx4 v[40:43], v6, s[44:47], s91 offen offset:16")
    e("s_endpgm")
```

```python
import sys
sys.path.insert(0, "gen")
from common import *
from emit import *

WS_MODA = 0x0000
WS_MODB = 0x2000
WS_Q    = 0x98000
WS_X1P  = 0x8000
WS_FFP  = 0x10000
WS_ML   = 0x1E000
WS_PART = 0x25000
WS_END  = 0x95000
WS_TS   = 0x100000
WS_SIZE = 0x200000
S_TAU = 100
OOB = 0x10000000
SENT_GUARD = 0xFFFFFFFE
LOG2E = 1.4426950408889634
SCALE_C = (128 ** -0.5) * LOG2E

import struct
def f32(x): return "0x%08x" % struct.unpack("<I", struct.pack("<f", x))[0]

class Cfg:
    D_ATT = 4
    D_SVC = 7
    TS = False
    SPIN = 100000
    FORCE_SLOW = False
    SLEEP_A = 0
    SLEEP_B = 0
    SLEEP_C = 0

def srd(e, q, lo, hi, size, add=None):
    if add is None:
        e(f"s_mov_b32 s{q}, s{lo}\ns_mov_b32 s{q+1}, s{hi}")
    else:
        e(f"s_add_u32 s{q}, s{lo}, {add}\ns_addc_u32 s{q+1}, s{hi}, 0")
    e(f"s_mov_b32 s{q+2}, {size}\ns_mov_b32 s{q+3}, 0x20000")

def spin_guard(e, lab, cnt="s99"):
    e(f"s_sub_u32 {cnt}, {cnt}, 1\ns_cmp_gt_i32 {cnt}, 0\ns_cbranch_scc1 {lab}")

def max_tree(e, dst, regs):
    regs = list(regs)
    if len(regs) == 1:
        e(f"v_mov_b32 v{dst}, v{regs[0]}"); return
    if len(regs) % 2 == 1:
        e(f"v_max3_u32 v{dst}, v{regs[0]}, v{regs[1]}, v{regs[2]}"); k = 3
    else:
        e(f"v_max_u32 v{dst}, v{regs[0]}, v{regs[1]}"); k = 2
    while k < len(regs):
        e(f"v_max3_u32 v{dst}, v{dst}, v{regs[k]}, v{regs[k+1]}"); k += 2

def ts(e, cfg, slot):
    if cfg.TS:
        e(f"s_memrealtime s[96:97]\ns_waitcnt lgkmcnt(0)\ns_mov_b32 s{slot}, s96")

def allreduce16(e, op, v, tmp=None, steps=(1, 2, 4, 8)):
    for n in steps:
        e(f"{op}_dpp v{v}, v{v}, v{v} row_ror:{n} row_mask:0xf bank_mask:0xf")

def xrow(e, op, v, t, which):
    e(f"v_mov_b32 v{t}, v{v}")
    e(f"v_permlane{which}_swap_b32 v{v}, v{t}")
    e(f"{op} v{v}, v{v}, v{t}")

def transpose_unit(e, src, dst, ne=8):
    np_ = ne // 2
    for j in range(4):
        for m in range(np_):
            x = src + 4 * (2 * m) + j
            y = src + 4 * (2 * m + 1) + j
            e(f"v_perm_b32 v{dst + np_*(2*j) + m}, v{y}, v{x}, s94")
            e(f"v_perm_b32 v{dst + np_*(2*j+1) + m}, v{y}, v{x}, s95")

def tag_setup(e):
    e(f"s_load_dword s{S_TAU}, s[34:35], {WS_FFP}")

def tag_finish(e):
    e(f"s_and_b32 s{S_TAU}, s{S_TAU}, 0x7f\ns_add_u32 s{S_TAU}, s{S_TAU}, 1")

def tag(e, reg):
    e(f"v_mov_b32_sdwa v{reg}, s{S_TAU} dst_sel:BYTE_0 dst_unused:UNUSED_PRESERVE src0_sel:DWORD")

def check(e, dst, regs, dst2=None):
    regs = list(regs)
    if dst2 is not None and len(regs) >= 8:
        h = len(regs) // 2
        A, B = regs[:h], regs[h:]
        for k in range(max(len(A), len(B))):
            if k < len(A): e(f"v_msad_u8 v{dst}, v{A[k]}, s{S_TAU}, {'0' if k == 0 else 'v%d' % dst}")
            if k < len(B): e(f"v_msad_u8 v{dst2}, v{B[k]}, s{S_TAU}, {'0' if k == 0 else 'v%d' % dst2}")
        e(f"v_or_b32 v{dst}, v{dst}, v{dst2}")
    else:
        for k, r in enumerate(regs):
            e(f"v_msad_u8 v{dst}, v{r}, s{S_TAU}, {'0' if k == 0 else 'v%d' % dst}")
    e(f"v_cmp_ne_u32 vcc, 0, v{dst}")
```

```python
from kern import *

S_WS, S_DBG, S_X, S_C, S_WMOD, S_WQ, S_WO, S_WG, S_WU, S_WD, S_OUT = 36, 40, 44, 48, 52, 56, 4, 64, 68, 72, 84
L_SVA  = 0
L_CNT  = 1024
L_STAT = 2048
L_STA2 = 2176
L_RA1  = 2304
L_RQ   = 4352
L_RB   = 8448
L_RP1  = 10496
L_RGU  = 18688
L_X1   = 22784
L_WL   = 24832
L_STG  = 24832 + 4096
SVC_LDS = L_STG + 8 * 16384

V_LANE, V_TAU2, V_N = 1, 2, 3
T0, T1, T2, T3 = 4, 5, 6, 7
V_A = 8
P_WLW1, P_WH2, P_COL4, P_COLF4 = 12, 13, 14, 15
P_GA, P_CB1, P_SB, P_X, P_GB = 16, 17, 18, 19, 20
P_PV, P_MV, P_XV, P_FV, P_A64R, P_A128R, P_OUTV = 21, 22, 23, 24, 25, 26, 27
SC = 28
W0, W1, W2, W3, W4 = 96, 128, 160, 192, 224

def unit64_voff(e, dst, stride_bytes, t0, t1):
    e(f"""
    v_lshrrev_b32 v{t0}, 4, v{V_LANE}
    v_lshlrev_b32 v{t0}, 3, v{t0}
    v_bfe_u32 v{t1}, v{V_LANE}, 3, 1
    v_lshlrev_b32 v{t1}, 5, v{t1}
    v_add_u32 v{t0}, v{t0}, v{t1}
    v_mul_u32_u24 v{t0}, {stride_bytes}, v{t0}
    v_and_b32 v{t1}, 7, v{V_LANE}
    v_lshlrev_b32 v{t1}, 4, v{t1}
    v_add_u32 v{dst}, v{t0}, v{t1}
    """)

def unit128_voff(e, dst, stride_bytes, t0, t1):
    e(f"""
    v_lshrrev_b32 v{t0}, 4, v{V_LANE}
    v_mul_u32_u24 v{t0}, {8*stride_bytes}, v{t0}
    v_and_b32 v{t1}, 15, v{V_LANE}
    v_lshlrev_b32 v{t1}, 4, v{t1}
    v_add_u32 v{dst}, v{t0}, v{t1}
    """)

class Stream:
    def __init__(self, e, depth): self.e, self.d = e, depth
    def load(self, dst, voff, srdq, sbase, byte_off, tag):
        e = self.e
        e.wait_vm_n(self.d - 1)
        if byte_off < 4096:
            e.vmem(f"buffer_load_dwordx4 v[{dst}:{dst+3}], v{voff}, s[{srdq}:{srdq+3}], {sbase} offen offset:{byte_off} nt", tag)
        else:
            e(f"s_add_u32 s93, {sbase}, {byte_off}")
            e.vmem(f"buffer_load_dwordx4 v[{dst}:{dst+3}], v{voff}, s[{srdq}:{srdq+3}], s93 offen nt", tag)

def zsum64(e, D, Z):
    for t in range(8):
        e(f"v_add_f32_dpp v{Z+t}, v{D+4*t+1}, v{D+4*t} row_shl:8 row_mask:0xf bank_mask:0xf")

def rs4(e, a):
    e(f"v_permlane32_swap_b32 v{a}, v{a+1}")
    e(f"v_permlane32_swap_b32 v{a+2}, v{a+3}")
    e(f"v_add_f32 v{a}, v{a}, v{a+1}")
    e(f"v_add_f32 v{a+2}, v{a+2}, v{a+3}")
    e(f"v_permlane16_swap_b32 v{a}, v{a+2}")
    e(f"v_add_f32 v{a}, v{a}, v{a+2}")

def store_mode(e, text):
    lf = e.label("L_fast"); le = e.label("L_stend")
    e(f"s_cmp_eq_u32 s98, 1\ns_cbranch_scc1 {lf}")
    e(text.format(pol="sc1"))
    e(f"s_branch {le}\n{lf}:")
    e(text.format(pol=""))
    e(f"{le}:")
    e.vm.append("st")

def sts(e, cfg, k):
    if cfg.TS:
        e(f"s_memrealtime s[96:97]\ns_waitcnt lgkmcnt(0)\nv_writelane_b32 v0, s96, {k}")

def silu(e, dst, src, t):
    e(f"""
    v_mul_f32 v{t}, {f32(-LOG2E)}, v{src}
    v_exp_f32 v{t}, v{t}
    v_add_f32 v{t}, 1.0, v{t}
    v_rcp_f32 v{t}, v{t}
    v_mul_f32 v{dst}, v{src}, v{t}
    """)

def persist_setup(e, cfg):
    WS = f"s[{S_WS}:{S_WS+3}]"
    e(f"""
    v_lshrrev_b32 v{T0}, 4, v{V_LANE}
    v_and_b32 v{T1}, 1, v{T0}
    v_lshlrev_b32 v{T1}, 1, v{T1}
    v_lshrrev_b32 v{T2}, 1, v{T0}
    v_or_b32 v{T2}, v{T2}, v{T1}
    s_lshl_b32 s16, s3, 9
    s_add_u32 s16, s16, {L_WL}
    v_lshlrev_b32 v{P_A128R}, 4, v{T0}
    v_add_u32 v{P_A128R}, s16, v{P_A128R}
    v_and_b32 v{P_A64R}, 1, v{V_LANE}
    v_lshlrev_b32 v{P_A64R}, 6, v{P_A64R}
    v_add3_u32 v{P_A64R}, v{P_A64R}, v{P_A128R}, 0
    v_and_b32 v{T1}, 7, v{V_LANE}
    v_lshl_add_u32 v{T1}, v{T1}, 2, v{T2}
    v_lshlrev_b32 v{T1}, 1, v{T1}
    v_add_u32 v{P_WLW1}, s16, v{T1}
    v_and_b32 v{T1}, 15, v{V_LANE}
    v_lshl_add_u32 v{T1}, v{T1}, 2, v{T2}
    v_lshlrev_b32 v{T3}, 1, v{T1}
    v_add_u32 v{P_WH2}, s16, v{T3}
    s_lshl_b32 s91, s3, 6
    v_add_u32 v{T1}, s91, v{T1}
    v_lshlrev_b32 v{P_COL4}, 2, v{T1}
    v_lshlrev_b32 v{T3}, 1, v{T1}
    v_and_b32 v{T1}, 3, v{V_LANE}
    v_lshl_add_u32 v{T1}, v{T1}, 2, v{T2}
    s_lshl_b32 s91, s81, 4
    v_add_u32 v{T1}, s91, v{T1}
    v_lshlrev_b32 v{P_COLF4}, 2, v{T1}
    v_lshlrev_b32 v{T1}, 1, v{T1}
    v_and_b32 v{T0}, 12, v{V_LANE}
    v_cmp_eq_u32 vcc, 0, v{T0}
    v_mov_b32 v{P_OUTV}, {OOB}
    v_cndmask_b32 v{P_OUTV}, v{P_OUTV}, v{T1}, vcc
    s_mov_b32 s8, {WS_MODB}
    s_mov_b32 s9, {WS_MODB + 4096}
    v_mov_b32 v2, v{T3}
    v_and_b32 v92, 31, v{V_LANE}
    v_lshlrev_b32 v92, 2, v92
    """)

def modb_loads(e, track):
    WS = f"s[{S_WS}:{S_WS+3}]"
    L = [f"buffer_load_dword v{P_GA}, v{P_COL4}, {WS}, s8 offen sc1",
         f"buffer_load_dword v{P_SB}, v{P_COL4}, {WS}, s8 offen offset:2048 sc1",
         f"buffer_load_dword v{P_CB1}, v{P_COL4}, {WS}, s9 offen sc1",
         f"buffer_load_dword v{P_GB}, v{P_COLF4}, {WS}, s9 offen offset:2048 sc1",
         f"buffer_load_ushort v{P_X}, v2, s[{S_X}:{S_X+3}], 0 offen",
         f"buffer_load_dword v3, v92, s[{S_DBG}:{S_DBG+3}], 0 offen sc1"]
    for k, t in enumerate(L):
        if track: e.vmem(t, f"MB{k}")
        else: e(t)

def counter_last(e, off, n, lab):
    e(f"""
    s_mov_b64 exec, 1
    v_mov_b32 v{T1}, {L_CNT + off}
    v_mov_b32 v{T2}, 1
    s_waitcnt lgkmcnt(0)
    ds_add_rtn_u32 v{T3}, v{T1}, v{T2}
    s_waitcnt lgkmcnt(0)
    v_readfirstlane_b32 s91, v{T3}
    s_mov_b64 exec, -1
    s_cmp_lg_u32 s91, {n}
    s_cbranch_scc1 {lab}
    """)

def service(e, cfg):
    D = cfg.D_SVC
    WS = f"s[{S_WS}:{S_WS+3}]"
    Z = 76
    pend = []
    def pump(upto_tag):
        while True:
            tag_, fn = pend.pop(0)
            e.wait_vm_n(D - 1)
            fn()
            if tag_ == upto_tag: break
    def rload(dst, voff, srdq, sbase, byte_off, tag_):
        def fn():
            if byte_off < 4096:
                e.vmem(f"buffer_load_dwordx4 v[{dst}:{dst+3}], v{voff}, s[{srdq}:{srdq+3}], {sbase} offen offset:{byte_off} nt", tag_)
            else:
                e(f"s_add_u32 s93, {sbase}, {byte_off}")
                e.vmem(f"buffer_load_dwordx4 v[{dst}:{dst+3}], v{voff}, s[{srdq}:{srdq+3}], s93 offen nt", tag_)
        pend.append((tag_, fn))
    def dma(voff, srdq, sbase, byte_off, lds_off, tag_):
        def fn():
            e(f"s_add_u32 s93, {sbase}, {byte_off}\ns_add_u32 s92, s63, {lds_off}\ns_mov_b32 m0, s92\ns_nop 0")
            e.vmem(f"buffer_load_dwordx4 v{voff}, s[{srdq}:{srdq+3}], s93 offen nt lds", tag_)
        pend.append((tag_, fn))
    e(f"""
    v_mov_b32 v4, {L_CNT}
    v_mov_b32 v6, 0
    v_mov_b32 v7, 0
    ds_write_b64 v4, v[6:7]
    ds_write_b64 v4, v[6:7] offset:8
    s_waitcnt lgkmcnt(0)
    """)
    tag_setup(e)
    e("s_barrier")
    e(f"s_mov_b32 s99, {cfg.SPIN}")
    srd(e, S_C, 26, 27, 1024)
    srd(e, S_WMOD, 28, 29, 512 * 3072 * 2)
    srd(e, S_WS, 34, 35, WS_SIZE)
    srd(e, S_X, 8, 9, 1024)
    srd(e, S_WQ, 14, 15, 512 * 4096 * 2)
    sts(e, cfg, 0)
    e(f"""
    s_and_b32 s83, s81, 15
    s_lshr_b32 s60, s81, 4
    s_lshl_b32 s88, s60, 12
    s_lshl_b32 s89, s83, 8
    s_add_u32 s88, s88, s89
    s_lshl_b32 s82, s3, 9
    s_add_u32 s82, s82, {L_WL}
    s_mov_b32 s94, 0x05040100
    s_mov_b32 s95, 0x07060302
    """)
    lab_noa1 = e.label("L_noa1i")
    e(f"s_cmp_ge_u32 s3, 4\ns_cbranch_scc1 {lab_noa1}")
    e(f"""
    s_lshl_b32 s61, s60, 8
    s_lshl_b32 s62, s3, 6
    s_add_u32 s61, s61, s62
    v_lshlrev_b32 v{T0}, 1, v{V_LANE}
    s_lshl_b32 s91, s61, 1
    buffer_load_ushort v22, v{T0}, s[{S_C}:{S_C+3}], s91 offen
    """)
    unit64_voff(e, 18, 6144, T1, T2)
    e(f"""
    s_mul_i32 s63, s61, 6144
    s_lshl_b32 s62, s83, 7
    s_add_u32 s63, s63, s62
    """)
    AR = 96
    for ee in range(8):
        if ee: e(f"s_add_u32 s63, s63, 6144")
        e(f"buffer_load_dwordx4 v[{AR+4*ee}:{AR+4*ee+3}], v18, s[{S_WMOD}:{S_WMOD+3}], s63 offen nt")
    sts(e, cfg, 16)
    e(f"{lab_noa1}:")
    sts(e, cfg, 18)
    c, x, XA = 16, 17, 32
    V_OQ, V_OB, V_OG, V_ODN, V_OW, FO = 18, 19, 21, 23, 24, 20
    e(f"""
    v_lshlrev_b32 v{T3}, 4, v{V_LANE}
    s_lshl_b32 s91, s3, 7
    v_lshlrev_b32 v{V_TAU2}, 1, v{V_LANE}
    v_add_u32 v{V_TAU2}, s91, v{V_TAU2}
    """)
    unit128_voff(e, V_OQ, 8192, T0, T1)
    e(f"""
    s_lshl_b32 s90, s3, 19
    s_lshl_b32 s91, s81, 8
    s_add_u32 s90, s90, s91
    """)
    e.vmem(f"buffer_load_dwordx4 v[{XA}:{XA+3}], v{T3}, s[{S_X}:{S_X+3}], 0 offen", "xa")
    e.vmem(f"buffer_load_ushort v{x}, v{V_TAU2}, s[{S_X}:{S_X+3}], 0 offen", "x")
    e.vmem(f"buffer_load_ushort v{c}, v{V_TAU2}, s[{S_C}:{S_C+3}], 0 offen", "c")
    for i in range(16):
        ks, ee = divmod(i, 8)
        rload(W3 + 4 * i, V_OQ, S_WQ, "s90", (32 * ks + ee) * 8192, f"wq{i}")
    pump("wq3")
    sts(e, cfg, 14)
    lab = e.label("L_a1done")
    e(f"s_cmp_ge_u32 s3, 4\ns_cbranch_scc1 {lab}")
    e("s_waitcnt vmcnt(7)")
    sts(e, cfg, 17)
    e("v_lshlrev_b32 v22, 16, v22")
    silu(e, 22, 22, T1)
    e(f"""
    v_cvt_pk_bf16_f32 v22, v22, v22
    v_lshl_add_u32 v{T0}, v{V_LANE}, 1, s82
    ds_write_b16 v{T0}, v22
    v_and_b32 v{T1}, 1, v{V_LANE}
    v_lshlrev_b32 v{T1}, 6, v{T1}
    v_lshrrev_b32 v{T2}, 4, v{V_LANE}
    v_lshl_add_u32 v{T1}, v{T2}, 4, v{T1}
    v_add_u32 v{T1}, s82, v{T1}
    ds_read_b128 v[{V_A}:{V_A+3}], v{T1}
    """)
    TB, DA = 44, 128
    transpose_unit(e, AR, TB)
    e("s_waitcnt lgkmcnt(0)")
    for t in range(8):
        e(f"v_mfma_f32_16x16x32_bf16 v[{DA+4*t}:{DA+4*t+3}], v[{V_A}:{V_A+3}], v[{TB+4*t}:{TB+4*t+3}], 0")
    zsum64(e, DA, Z)
    e(f"""
    s_lshl_b32 s91, s3, 8
    v_lshlrev_b32 v{T0}, 5, v{V_LANE}
    v_add_u32 v{T0}, s91, v{T0}
    s_mov_b64 exec, 0xff
    ds_write_b128 v{T0}, v[{Z}:{Z+3}] offset:{L_RA1}
    ds_write_b128 v{T0}, v[{Z+4}:{Z+7}] offset:{L_RA1+16}
    """)
    counter_last(e, 0, 3, lab)
    e(f"v_lshlrev_b32 v{T0}, 2, v{V_LANE}")
    for v in range(4):
        e(f"ds_read_b32 v{Z+v}, v{T0} offset:{L_RA1 + 256*v}")
    e("s_waitcnt lgkmcnt(0)")
    tag_finish(e)
    e(f"""
    v_add_f32 v{Z}, v{Z}, v{Z+1}
    v_add_f32 v{Z+2}, v{Z+2}, v{Z+3}
    v_add_f32 v{Z}, v{Z}, v{Z+2}
    """)
    tag(e, Z)
    e(f"buffer_store_dword v{Z}, v{T0}, {WS}, s88 offen sc1")
    e(f"s_sub_u32 s{S_TAU}, s{S_TAU}, 1")
    sts(e, cfg, 1)
    e(f"{lab}:")
    pump("wq7")
    srd(e, S_DBG, 32, 33, 256)
    srd(e, S_WO, 16, 17, 4096 * 512 * 2)
    srd(e, S_WG, 20, 21, 512 * 1792 * 2)
    srd(e, S_WU, 22, 23, 512 * 1792 * 2)
    srd(e, S_WD, 24, 25, 1792 * 512 * 2)
    srd(e, S_OUT, 30, 31, 1024)
    e("s_waitcnt lgkmcnt(0)")
    tag_finish(e)
    lab = e.label("L_xcc")
    e(f"""
    s_cmp_lg_u32 s3, 0
    s_cbranch_scc1 {lab}
    s_getreg_b32 s91, hwreg(HW_REG_XCC_ID)
    s_and_b32 s91, s91, 15
    s_add_u32 s91, s91, 1
    v_mov_b32 v{T1}, s91
    s_lshl_b32 s92, s81, 2
    v_mov_b32 v{T2}, s92
    s_mov_b64 exec, 1
    buffer_store_dword v{T1}, v{T2}, s[{S_DBG}:{S_DBG+3}], 0 offen sc1
    s_mov_b64 exec, -1
    {lab}:
    """)
    e.wait_vm("c")
    U = 36
    for k in range(4):
        e(f"v_lshlrev_b32 v{U+2*k}, 16, v{XA+k}\nv_and_b32 v{U+2*k+1}, 0xffff0000, v{XA+k}")
    e(f"v_add_f32 v{V_A}, v{U}, v{U+1}\nv_mul_f32 v{V_A+1}, v{U}, v{U}\nv_fmac_f32 v{V_A+1}, v{U+1}, v{U+1}")
    for k in range(2, 8):
        e(f"v_add_f32 v{V_A}, v{V_A}, v{U+k}\nv_fmac_f32 v{V_A+1}, v{U+k}, v{U+k}")
    e(f"v_permlane32_swap_b32 v{V_A}, v{V_A+1}\nv_add_f32 v{V_A}, v{V_A}, v{V_A+1}")
    xrow(e, "v_add_f32", V_A, T0, 16)
    allreduce16(e, "v_add_f32", V_A)
    e(f"""
    v_lshlrev_b32 v{c}, 16, v{c}
    v_lshlrev_b32 v{x}, 16, v{x}
    v_readlane_b32 s91, v{V_A}, 0
    v_readlane_b32 s92, v{V_A}, 32
    """)
    silu(e, c, c, T0)
    e(f"""
    v_mov_b32 v{T0}, {f32(1/512)}
    v_mul_f32 v{T1}, s91, v{T0}
    v_mul_f32 v{T2}, s92, v{T0}
    v_fma_f32 v{T2}, -v{T1}, v{T1}, v{T2}
    v_add_f32 v{T2}, {f32(1e-5)}, v{T2}
    v_rsq_f32 v{T2}, v{T2}
    v_sub_f32 v{V_N}, v{x}, v{T1}
    v_mul_f32 v{V_N}, v{V_N}, v{T2}
    v_cvt_pk_bf16_f32 v{c}, v{c}, v{c}
    v_lshl_add_u32 v{T0}, v{V_LANE}, 1, s82
    ds_write_b16 v{T0}, v{c} offset:128
    """)
    pump("wq15")
    sts(e, cfg, 15)
    e(f"v_lshlrev_b32 v{FO}, 1, v{V_TAU2}\ns_mov_b32 s89, 4096")
    def moda_loads(track):
        for k, (so, im) in enumerate((("0", 0), ("s89", 0), ("0", 2048), ("s89", 2048))):
            t = f"buffer_load_dword v{Z+k}, v{FO}, {WS}, {so} offen offset:{im} sc1"
            if track: e.vmem(t, f"MA{k}")
            else: e(t)
    e.wait_vm_n(D - 4)
    moda_loads(True)
    unit64_voff(e, V_OB, 6144, T0, T1)
    unit64_voff(e, V_OG, 3584, T0, T1)
    unit64_voff(e, V_ODN, 1024, T0, T1)
    unit128_voff(e, V_OW, 1024, T0, T1)
    e(f"""
    s_mul_i32 s90, s3, {64*6144}
    s_lshl_b32 s91, s81, 7
    s_add_u32 s90, s90, s91
    s_add_u32 s90, s90, 2048
    s_mul_i32 s61, s3, {64*3584}
    s_add_u32 s61, s61, s91
    s_lshl_b32 s62, s81, 16
    s_lshl_b32 s91, s3, 7
    s_add_u32 s62, s62, s91
    s_cmp_lt_u32 s81, 28
    s_cselect_b32 s61, s61, {OOB}
    s_cselect_b32 s62, s62, {OOB}
    s_lshr_b32 s60, s81, 1
    s_lshl_b32 s10, s60, 8
    s_lshl_b32 s63, s3, 5
    s_add_u32 s10, s10, s63
    s_lshl_b32 s10, s10, 10
    s_and_b32 s11, s81, 1
    s_lshl_b32 s63, s11, 9
    s_add_u32 s10, s10, s63
    s_mul_i32 s63, s3, 16384
    s_add_u32 s63, s63, {L_STG}
    """)
    if getattr(cfg, "NOBULK", 0):
        e(f"s_mov_b32 s61, {OOB}\ns_mov_b32 s62, {OOB}\ns_mov_b32 s10, {OOB}")
    for ee in range(8): rload(W1 + 4 * ee, V_OB, S_WMOD, "s90", ee * 6144, f"wb{ee}")
    for ee in range(8):
        for cb in range(2): rload(W2 + 32 * cb + 4 * ee, V_OW, S_WO, "s10", cb * 256 + ee * 1024, f"wo{cb}_{ee}")
    for ee in range(8): rload(W4 + 4 * ee, V_OG, S_WG, "s61", ee * 3584, f"wg{ee}")
    for ee in range(8): dma(V_OG, S_WU, "s61", ee * 3584, ee * 1024, f"wu{ee}")
    for ee in range(8): dma(V_ODN, S_WD, "s62", ee * 1024, 8192 + ee * 1024, f"wd{ee}")
    e.wait_vm("wq7")
    transpose_unit(e, W3, W2)
    pump("wb2")
    e.wait_vm("wq15")
    sts(e, cfg, 19)
    transpose_unit(e, W4, W3)
    e.wait_vm("MA3")
    sp = e.label("L_moda"); ok = e.label("L_modaok")
    check(e, T1, range(Z, Z + 4))
    e(f"s_cbranch_vccz {ok}\n{sp}:\ns_sleep 2")
    moda_loads(False)
    e("s_waitcnt vmcnt(0)")
    check(e, T1, range(Z, Z + 4))
    e(f"s_cbranch_vccz {ok}")
    spin_guard(e, sp)
    e(f"{ok}:")
    sts(e, cfg, 13)
    e(f"""
    v_add_f32 v{Z}, v{Z}, v{Z+1}
    v_add_f32 v{Z+2}, v{Z+2}, v{Z+3}
    v_add_f32 v{Z+2}, 1.0, v{Z+2}
    v_fma_f32 v{Z}, v{V_N}, v{Z+2}, v{Z}
    v_cvt_pk_bf16_f32 v{Z}, v{Z}, v{Z}
    v_lshl_add_u32 v{T0}, v{V_LANE}, 1, s82
    ds_write_b16 v{T0}, v{Z}
    v_lshrrev_b32 v{T0}, 4, v{V_LANE}
    v_lshl_add_u32 v{T0}, v{T0}, 4, s82
    ds_read_b128 v[{V_A}:{V_A+3}], v{T0}
    ds_read_b128 v[{V_A+4}:{V_A+7}], v{T0} offset:64
    s_waitcnt lgkmcnt(0)
    """)
    DQ = 44
    for t in range(8):
        e(f"v_mfma_f32_16x16x32_bf16 v[{DQ+4*t}:{DQ+4*t+3}], v[{V_A}:{V_A+3}], v[{W2+4*t}:{W2+4*t+3}], 0")
    for t in range(8):
        e(f"v_mfma_f32_16x16x32_bf16 v[{DQ+4*t}:{DQ+4*t+3}], v[{V_A+4}:{V_A+7}], v[{W3+4*t}:{W3+4*t+3}], v[{DQ+4*t}:{DQ+4*t+3}]")
    pump("wb5")
    e(f"""
    s_lshl_b32 s91, s3, 9
    s_add_u32 s91, s91, {L_RQ}
    v_lshlrev_b32 v{T0}, 5, v{V_LANE}
    v_add_u32 v{T0}, s91, v{T0}
    s_mov_b64 exec, 0xffff
    """)
    for u in range(4):
        e(f"ds_write2_b32 v{T0}, v{DQ+8*u}, v{DQ+8*u+4} offset0:{2*u} offset1:{2*u+1}")
    lab = e.label("L_qpub")
    counter_last(e, 4, 7, lab)
    e(f"v_lshlrev_b32 v{T0}, 3, v{V_LANE}")
    for v in range(8):
        e(f"ds_read_b64 v[{Z+2*v}:{Z+2*v+1}], v{T0} offset:{L_RQ + 512*v}")
    e("s_waitcnt lgkmcnt(0)")
    e(f"v_add_f32 v{Z}, v{Z}, v{Z+2}\nv_add_f32 v{Z+1}, v{Z+1}, v{Z+3}")
    for v in range(2, 8):
        e(f"v_add_f32 v{Z}, v{Z}, v{Z+2*v}\nv_add_f32 v{Z+1}, v{Z+1}, v{Z+2*v+1}")
    tag(e, Z); tag(e, Z + 1)
    e(f"""
    s_lshl_b32 s91, s81, 9
    s_add_u32 s91, s91, {WS_Q}
    buffer_store_dwordx2 v[{Z}:{Z+1}], v{T0}, {WS}, s91 offen sc1
    {lab}:
    """)
    sts(e, cfg, 3)
    persist_setup(e, cfg)
    pump("wo0_3")
    e.wait_vm("wb7")
    transpose_unit(e, W1, W0)
    e(f"""
    ds_read_b128 v[{V_A}:{V_A+3}], v{P_A64R} offset:128
    s_waitcnt lgkmcnt(0)
    """)
    DB = 44
    for t in range(8):
        e(f"v_mfma_f32_16x16x32_bf16 v[{DB+4*t}:{DB+4*t+3}], v[{V_A}:{V_A+3}], v[{W0+4*t}:{W0+4*t+3}], 0")
    pump("wo0_5")
    zsum64(e, DB, Z)
    e(f"""
    s_lshl_b32 s91, s3, 8
    v_lshlrev_b32 v{T0}, 5, v{V_LANE}
    v_add_u32 v{T0}, s91, v{T0}
    s_mov_b64 exec, 0xff
    ds_write_b128 v{T0}, v[{Z}:{Z+3}] offset:{L_RB}
    ds_write_b128 v{T0}, v[{Z+4}:{Z+7}] offset:{L_RB+16}
    """)
    lab = e.label("L_bpub")
    counter_last(e, 8, 7, lab)
    e(f"v_lshlrev_b32 v{T0}, 2, v{V_LANE}")
    for v in range(8):
        e(f"ds_read_b32 v{Z+v}, v{T0} offset:{L_RB + 256*v}")
    e("s_waitcnt lgkmcnt(0)")
    e(f"v_add_f32 v{Z}, v{Z}, v{Z+1}")
    for v in range(2, 8): e(f"v_add_f32 v{Z}, v{Z}, v{Z+v}")
    tag(e, Z)
    e(f"""
    s_lshl_b32 s91, s81, 8
    s_add_u32 s91, s91, {WS_MODB}
    buffer_store_dword v{Z}, v{T0}, {WS}, s91 offen sc1
    {lab}:
    """)
    UR = 44
    pump("wg6")
    e.wait_vm("wo1_7")
    transpose_unit(e, W2, W0)
    transpose_unit(e, W3, W1)
    pump("wu6")
    e.wait_vm("wg7")
    transpose_unit(e, W4, W2)
    pump("wd6")
    e(f"v_lshl_add_u32 v{T0}, v{V_LANE}, 4, s63")
    e.wait_vm("wu7")
    for ee in range(8): e(f"ds_read_b128 v[{UR+4*ee}:{UR+4*ee+3}], v{T0} offset:{ee*1024}")
    pump("wd7")
    e.wait_vm_n(2)
    modb_loads(e, True)
    e("s_waitcnt lgkmcnt(0)")
    transpose_unit(e, UR, W3)
    e.wait_vm("wd7")
    for ee in range(8): e(f"ds_read_b128 v[{UR+4*ee}:{UR+4*ee+3}], v{T0} offset:{8192 + ee*1024}")
    e("s_waitcnt lgkmcnt(0)")
    transpose_unit(e, UR, W4)
    e("s_mov_b32 s61, s11")
    sts(e, cfg, 4)
    post_chain(e, cfg)
    yield "done"

def post_chain(e, cfg):
    Z = 76
    WS = f"s[{S_WS}:{S_WS+3}]"
    sp = e.label("L_modb"); ok = e.label("L_modbok")
    e.wait_vm("MB5")
    check(e, T0, [P_GA, P_SB, P_CB1, P_GB])
    e(f"v_cmp_eq_u32 s[82:83], 0, v3\ns_or_b64 vcc, vcc, s[82:83]\ns_cbranch_vccz {ok}\n{sp}:\ns_sleep 2")
    modb_loads(e, False)
    e("s_waitcnt vmcnt(0)")
    check(e, T0, [P_GA, P_SB, P_CB1, P_GB])
    e(f"v_cmp_eq_u32 s[82:83], 0, v3\ns_or_b64 vcc, vcc, s[82:83]\ns_cbranch_vccz {ok}")
    spin_guard(e, sp)
    e(f"{ok}:")
    e.vm = []
    e(f"""
    v_readfirstlane_b32 s91, v3
    s_nop 1
    v_cmp_ne_u32 vcc, s91, v3
    s_nop 1
    s_cmp_eq_u64 vcc, 0
    s_cselect_b32 s98, {0 if cfg.FORCE_SLOW else 1}, 0
    """)
    e(f"v_add_f32 v{P_CB1}, 1.0, v{P_CB1}\nv_lshlrev_b32 v{P_X}, 16, v{P_X}")
    e(f"""
    s_lshr_b32 s62, s60, 1
    s_mul_i32 s62, s62, 112
    s_and_b32 s63, s60, 1
    s_lshl_b32 s63, s63, 1
    s_add_u32 s62, s62, s63
    s_lshr_b32 s63, s3, 2
    s_add_u32 s62, s62, s63
    s_lshl_b32 s88, s62, 4
    s_add_u32 s88, s88, {WS_ML}
    s_lshl_b32 s62, s62, 9
    s_and_b32 s63, s3, 3
    s_lshl_b32 s63, s63, 7
    s_add_u32 s62, s62, s63
    s_add_u32 s62, s62, {WS_PART}
    s_add_u32 s63, s62, 16384
    s_add_u32 s89, s62, 32768
    s_add_u32 s90, s62, 49152
    v_lshrrev_b32 v{T0}, 3, v{V_LANE}
    v_and_b32 v{T1}, 7, v{V_LANE}
    v_lshlrev_b32 v{T1}, 4, v{T1}
    v_lshl_add_u32 v{P_PV}, v{T0}, 11, v{T1}
    v_lshlrev_b32 v{P_MV}, 6, v{T0}
    v_lshrrev_b32 v{T0}, 4, v{V_LANE}
    v_and_b32 v{T1}, 15, v{V_LANE}
    v_lshlrev_b32 v{T1}, 4, v{T1}
    v_lshl_add_u32 v{P_XV}, v{T0}, 11, v{T1}
    s_lshl_b32 s91, s3, 8
    v_add_u32 v{P_XV}, s91, v{P_XV}
    v_lshrrev_b32 v{T0}, 2, v{V_LANE}
    v_and_b32 v{T1}, 3, v{V_LANE}
    v_lshlrev_b32 v{T1}, 4, v{T1}
    s_lshl_b32 s91, s81, 6
    v_add_u32 v{T1}, s91, v{T1}
    v_lshl_add_u32 v{P_FV}, v{T0}, 11, v{T1}
    s_lshl_b32 s8, s3, 10
    s_add_u32 s8, s8, {L_RP1}
    s_lshl_b32 s9, s60, 11
    s_lshl_b32 s91, s61, 10
    s_add_u32 s9, s9, s91
    s_add_u32 s9, s9, {WS_X1P}
    s_lshl_b32 s10, s3, 3
    s_add_u32 s10, s10, {L_STA2}
    s_lshl_b32 s11, s3, 9
    s_add_u32 s11, s11, {L_RGU}
    s_lshl_b32 s12, s81, 11
    s_lshl_b32 s91, s3, 8
    s_add_u32 s12, s12, s91
    s_add_u32 s12, s12, {WS_FFP}
    s_cmp_lt_u32 s81, 28
    s_cselect_b32 s12, s12, {OOB}
    s_mov_b32 s13, {WS_X1P}
    s_mov_b32 s17, {WS_X1P + 8192}
    s_mov_b32 s18, {WS_X1P + 16384}
    s_mov_b32 s19, {WS_X1P + 24576}
    s_mov_b32 s14, {WS_FFP}
    s_mov_b32 s15, {WS_FFP + 32768}
    """)
    U1G, U2G, U1U, U2U = 2, 3, 7, 18
    e(f"""
    v_cvt_pk_bf16_f32 v{T0}, v{P_CB1}, v{P_CB1}
    v_cvt_pk_bf16_f32 v{T1}, v{P_SB}, v{P_SB}
    ds_write_b16 v{P_WH2}, v{T0} offset:64
    ds_write_b16 v{P_WH2}, v{T1} offset:192
    v_bfe_u32 v{T0}, v{V_LANE}, 1, 1
    v_lshl_add_u32 v{T0}, v{T0}, 7, v{P_A64R}
    ds_read_b128 v[{V_A}:{V_A+3}], v{T0} offset:64
    s_waitcnt lgkmcnt(0)
    """)
    for t in range(8):
        e(f"v_mfma_f32_16x16x32_bf16 v[{32+4*t}:{32+4*t+3}], v[{V_A}:{V_A+3}], v[{W2+4*t}:{W2+4*t+3}], 0")
    for t in range(8):
        e(f"v_mfma_f32_16x16x32_bf16 v[{64+4*t}:{64+4*t+3}], v[{V_A}:{V_A+3}], v[{W3+4*t}:{W3+4*t+3}], 0")
    e(f"s_mul_i32 s91, s3, 16384\ns_add_u32 s91, s91, {L_STG}\nv_lshl_add_u32 v{T0}, v{V_LANE}, 5, s91")
    for k, (D, r0) in enumerate(((32, 0), (32, 2), (64, 0), (64, 2))):
        for half in range(2):
            for t in range(4):
                tt = 4 * half + t
                e(f"v_add_f32_dpp v{28+t}, v{D+4*tt+r0+1}, v{D+4*tt+r0} row_shl:8 row_mask:0xf bank_mask:0xf")
            e(f"s_mov_b64 exec, 0xff\nds_write_b128 v{T0}, v[28:31] offset:{256*k + 16*half}\ns_mov_b64 exec, -1\ns_nop 1")
    e(f"v_lshlrev_b32 v{T0}, 2, v{V_LANE}\nv_add_u32 v{T0}, {L_STG}, v{T0}\nv_add_u32 v{T1}, 65536, v{T0}\ns_waitcnt lgkmcnt(0)\ns_barrier")
    for k, U in enumerate((U1G, U2G, U1U, U2U)):
        for v in range(8):
            e(f"ds_read_b32 v{32+v}, v{T0} offset:{(16384*v + 256*k) % 65536}" if 16384*v + 256*k < 65536 else f"ds_read_b32 v{32+v}, v{T1} offset:{16384*v + 256*k - 65536}")
        if k == 0: pass
        e("s_waitcnt lgkmcnt(0)")
        e(f"v_add_f32 v{U}, v32, v33")
        for v in range(2, 8): e(f"v_add_f32 v{U}, v{U}, v{32+v}")
    DT, ML = 28, 44
    for r in range(4): e(f"v_mov_b32 v{DT+12+r}, s{S_TAU}")
    e(f"v_mov_b32 v{ML+12}, 0xff7fff00\nv_mov_b32 v{ML+13}, s{S_TAU}\nv_mov_b32 v{ML+14}, s{S_TAU}\nv_mov_b32 v{ML+15}, s{S_TAU}")
    tag(e, ML + 12)
    sts(e, cfg, 5)
    sp = e.label("L_hopA"); ok = e.label("L_hopAok")
    e(f"{sp}:")
    for i, sb in enumerate(("s62", "s63", "s89")):
        e(f"buffer_load_dwordx4 v[{DT+4*i}:{DT+4*i+3}], v{P_PV}, {WS}, {sb} offen sc1")
    for i in range(3):
        e(f"buffer_load_dwordx4 v[{ML+4*i}:{ML+4*i+3}], v{P_MV}, {WS}, s88 offen offset:{512*i} sc1")
    e(f"""
    s_mov_b32 exec_hi, 0
    buffer_load_dwordx4 v[{DT+12}:{DT+15}], v{P_PV}, {WS}, s90 offen sc1
    buffer_load_dwordx4 v[{ML+12}:{ML+15}], v{P_MV}, {WS}, s88 offen offset:1536 sc1
    s_mov_b32 exec_hi, -1
    s_waitcnt vmcnt(0)
    """)
    check(e, T0, range(DT, DT + 32), T1)
    e(f"s_cbranch_vccz {ok}")
    if cfg.SLEEP_A: e(f"s_sleep {cfg.SLEEP_A}")
    spin_guard(e, sp)
    e(f"{ok}:")
    sts(e, cfg, 6)
    m = [ML + 4 * i for i in range(4)]
    e(f"""
    v_max3_f32 v{T0}, v{m[0]}, v{m[1]}, v{m[2]}
    v_max_f32 v{T0}, v{T0}, v{m[3]}
    v_max_f32_dpp v{T0}, v{T0}, v{T0} row_ror:8 row_mask:0xf bank_mask:0xf
    """)
    xrow(e, "v_max_f32", T0, T1, 16)
    xrow(e, "v_max_f32", T0, T1, 32)
    for i in range(4): e(f"v_sub_f32 v{m[i]}, v{m[i]}, v{T0}")
    for i in range(4): e(f"v_exp_f32 v{m[i]}, v{m[i]}")
    AC = 60
    e(f"v_mul_f32 v{T2}, v{m[0]}, v{m[0]+1}")
    for r in range(4): e(f"v_mul_f32 v{AC+r}, v{m[0]}, v{DT+r}")
    for i in range(1, 4):
        e(f"v_fmac_f32 v{T2}, v{m[i]}, v{m[i]+1}")
        for r in range(4): e(f"v_fmac_f32 v{AC+r}, v{m[i]}, v{DT+4*i+r}")
    e(f"v_add_f32_dpp v{T2}, v{T2}, v{T2} row_ror:8 row_mask:0xf bank_mask:0xf")
    rs4(e, AC)
    xrow(e, "v_add_f32", T2, T1, 16)
    e(f"v_add_f32_dpp v{AC}, v{AC}, v{AC} row_ror:8 row_mask:0xf bank_mask:0xf")
    xrow(e, "v_add_f32", T2, T1, 32)
    e(f"""
    v_rcp_f32 v{T2}, v{T2}
    v_mul_f32 v{AC}, v{AC}, v{T2}
    v_cvt_pk_bf16_f32 v{AC}, v{AC}, v{AC}
    ds_write_b16 v{P_WLW1}, v{AC}
    ds_read_b128 v[{V_A}:{V_A+3}], v{P_A128R}
    v_lshl_add_u32 v{T0}, v{V_LANE}, 5, s8
    s_waitcnt lgkmcnt(0)
    """)
    DP = 32
    for cb in range(2):
        for t in range(8):
            d = DP + 4 * (8 * cb + t); b = W0 + 32 * cb + 4 * t
            e(f"v_mfma_f32_16x16x32_bf16 v[{d}:{d+3}], v[{V_A}:{V_A+3}], v[{b}:{b+3}], 0")
    e("s_mov_b64 exec, 0xffff")
    for cb in range(2):
        for u in range(4):
            d = DP + 4 * (8 * cb + 2 * u)
            e(f"ds_write2_b32 v{T0}, v{d}, v{d+4} offset0:{128*cb+2*u} offset1:{128*cb+2*u+1}")
    e(f"""
    s_mov_b64 exec, -1
    v_lshrrev_b32 v{T0}, 3, v{V_LANE}
    v_and_b32 v{T1}, 7, v{V_LANE}
    v_lshlrev_b32 v{T1}, 4, v{T1}
    v_lshl_add_u32 v{T0}, v{T0}, 10, v{T1}
    s_lshl_b32 s91, s3, 7
    v_add_u32 v{T0}, s91, v{T0}
    v_lshrrev_b32 v{T2}, 4, v{V_LANE}
    v_and_b32 v29, 1, v{T2}
    v_lshlrev_b32 v29, 3, v29
    v_lshrrev_b32 v{T2}, 1, v{T2}
    v_lshl_add_u32 v{T2}, v{T2}, 2, v29
    v_add3_u32 v{T2}, v{T2}, v{T1}, s91
    s_waitcnt lgkmcnt(0)
    s_barrier
    ds_read_b128 v[28:31], v{T0} offset:{L_RP1}
    s_waitcnt lgkmcnt(0)
    """)
    rs4(e, 28)
    e(f"v_add_f32_dpp v28, v28, v28 row_ror:8 row_mask:0xf bank_mask:0xf")
    tag(e, 28)
    store_mode(e, f"buffer_store_dword v28, v{T2}, {WS}, s9 offen {{pol}}")
    sts(e, cfg, 7)
    XD = 28
    sp = e.label("L_hopB"); ok = e.label("L_hopBok")
    e(f"{sp}:")
    for i, sb in enumerate(("s13", "s17", "s18", "s19")):
        e(f"buffer_load_dwordx4 v[{XD+4*i}:{XD+4*i+3}], v{P_XV}, {WS}, {sb} offen sc1")
    e("s_waitcnt vmcnt(0)")
    check(e, T0, range(XD, XD + 16), T1)
    e(f"s_cbranch_vccz {ok}")
    spin_guard(e, sp)
    e(f"{ok}:")
    e.vm = []
    sts(e, cfg, 8)
    for r in range(4):
        e(f"v_add_f32 v{XD+r}, v{XD+r}, v{XD+4+r}\nv_add_f32 v{XD+8+r}, v{XD+8+r}, v{XD+12+r}")
    for r in range(4): e(f"v_add_f32 v{XD+r}, v{XD+r}, v{XD+8+r}")
    rs4(e, XD)
    X1 = 44
    e(f"""
    v_fma_f32 v{X1}, v{P_GA}, v{XD}, v{P_X}
    v_mul_f32 v{T2}, v{X1}, v{P_CB1}
    v_mov_b32 v{T0}, v{X1}
    v_mul_f32 v{T1}, v{X1}, v{X1}
    v_cvt_pk_bf16_f32 v{T2}, v{T2}, v{T2}
    ds_write_b16 v{P_WH2}, v{T2} offset:64
    ds_read_b128 v[{V_A}:{V_A+3}], v{P_A64R} offset:64
    ds_write_b32 v{P_COL4}, v{X1} offset:{L_X1}
    v_permlane32_swap_b32 v{T0}, v{T1}
    v_add_f32 v{T0}, v{T0}, v{T1}
    """)
    xrow(e, "v_add_f32", T0, T1, 16)
    e("s_waitcnt lgkmcnt(1)")
    mf = [f"v_mfma_f32_16x16x32_bf16 v[{32+4*t}:{32+4*t+3}], v[{V_A}:{V_A+3}], v[{W2+4*t}:{W2+4*t+3}], 0" for t in range(8)] + \
         [f"v_mfma_f32_16x16x32_bf16 v[{64+4*t}:{64+4*t+3}], v[{V_A}:{V_A+3}], v[{W3+4*t}:{W3+4*t+3}], 0" for t in range(8)]
    for n, steps in enumerate((1, 2, 4, 8)):
        e(mf[2 * n]); e(mf[2 * n + 1])
        e(f"v_add_f32_dpp v{T0}, v{T0}, v{T0} row_ror:{steps} row_mask:0xf bank_mask:0xf")
    for n in range(8, 16): e(mf[n])
    e(f"""
    v_lshrrev_b32 v{T1}, 5, v{V_LANE}
    v_lshl_add_u32 v{T1}, v{T1}, 2, s10
    s_mov_b32 exec_lo, 1
    s_mov_b32 exec_hi, 1
    ds_write_b32 v{T1}, v{T0}
    s_mov_b64 exec, -1
    v_lshl_add_u32 v{T0}, v{V_LANE}, 5, s11
    """)
    zsum64(e, 32, 32)
    zsum64(e, 64, 64)
    e(f"""
    s_mov_b64 exec, 0xff
    ds_write_b128 v{T0}, v[32:35]
    ds_write_b128 v{T0}, v[36:39] offset:16
    ds_write_b128 v{T0}, v[64:67] offset:256
    ds_write_b128 v{T0}, v[68:71] offset:272
    s_mov_b64 exec, -1
    v_lshlrev_b32 v{T0}, 2, v{V_LANE}
    v_add_u32 v{T0}, {L_RGU}, v{T0}
    v_mov_b32 v{T2}, 0
    s_waitcnt lgkmcnt(0)
    s_barrier
    """)
    SZ, GU = 28, 48
    for k in range(4):
        e(f"ds_read_b128 v[{SZ+4*k}:{SZ+4*k+3}], v{T2} offset:{L_STA2+16*k}")
    for v in range(8):
        e(f"ds_read2st64_b32 v[{GU+2*v}:{GU+2*v+1}], v{T0} offset0:{2*v} offset1:{2*v+1}")
    e(f"ds_read_b32 v44, v{P_COLF4} offset:{L_X1}")
    e(f"v_lshlrev_b32 v{T1}, 1, v{V_LANE}\nv_add_u32 v{T1}, s16, v{T1}")
    e("s_waitcnt lgkmcnt(9)")
    e(f"v_add_f32 v{T0}, v{SZ}, v{SZ+2}\nv_add_f32 v{T2}, v{SZ+1}, v{SZ+3}")
    for k in range(4, 16, 4):
        e(f"v_add_f32 v{SZ+k}, v{SZ+k}, v{SZ+k+2}\nv_add_f32 v{SZ+k+1}, v{SZ+k+1}, v{SZ+k+3}")
    e(f"v_add_f32 v{T0}, v{T0}, v{SZ+4}\nv_add_f32 v{T2}, v{T2}, v{SZ+5}\nv_add_f32 v{SZ+8}, v{SZ+8}, v{SZ+12}\nv_add_f32 v{SZ+9}, v{SZ+9}, v{SZ+13}")
    e(f"v_add_f32 v{T0}, v{T0}, v{SZ+8}\nv_add_f32 v{T2}, v{T2}, v{SZ+9}")
    e(f"""
    v_mul_f32 v{T0}, {f32(1/512)}, v{T0}
    v_mul_f32 v{T2}, {f32(1/512)}, v{T2}
    v_fma_f32 v{T2}, -v{T0}, v{T0}, v{T2}
    v_add_f32 v{T2}, {f32(1e-5)}, v{T2}
    v_rsq_f32 v{T2}, v{T2}
    s_waitcnt lgkmcnt(1)
    """)
    for v in range(0, 8, 2):
        e(f"v_add_f32 v{GU+2*v}, v{GU+2*v}, v{GU+2*v+2}\nv_add_f32 v{GU+2*v+1}, v{GU+2*v+1}, v{GU+2*v+3}")
    e(f"v_add_f32 v{GU}, v{GU}, v{GU+4}\nv_add_f32 v{GU+1}, v{GU+1}, v{GU+5}")
    e(f"v_add_f32 v{GU+8}, v{GU+8}, v{GU+12}\nv_add_f32 v{GU+9}, v{GU+9}, v{GU+13}")
    e(f"v_add_f32 v{GU}, v{GU}, v{GU+8}\nv_add_f32 v{GU+1}, v{GU+1}, v{GU+9}")
    e(f"""
    v_fma_f32 v{GU}, -v{T0}, v{U1G}, v{GU}
    v_fma_f32 v{GU+1}, -v{T0}, v{U1U}, v{GU+1}
    v_fma_f32 v{GU}, v{GU}, v{T2}, v{U2G}
    v_fma_f32 v{GU+1}, v{GU+1}, v{T2}, v{U2U}
    v_mul_f32 v{T0}, {f32(-LOG2E)}, v{GU}
    v_exp_f32 v{T0}, v{T0}
    v_mul_f32 v{GU}, v{GU}, v{GU+1}
    v_add_f32 v{T0}, 1.0, v{T0}
    v_rcp_f32 v{T0}, v{T0}
    v_mul_f32 v{T0}, v{GU}, v{T0}
    v_cvt_pk_bf16_f32 v{T0}, v{T0}, v{T0}
    ds_write_b16 v{T1}, v{T0} offset:320
    ds_read_b128 v[{V_A}:{V_A+3}], v{P_A64R} offset:320
    v_lshrrev_b32 v{T0}, 3, v{V_LANE}
    v_and_b32 v{T1}, 7, v{V_LANE}
    v_lshlrev_b32 v{T1}, 5, v{T1}
    v_lshl_add_u32 v{T0}, v{T0}, 4, v{T1}
    s_waitcnt lgkmcnt(0)
    """)
    DD = 64
    for t in range(8):
        e(f"v_mfma_f32_16x16x32_bf16 v[{DD+4*t}:{DD+4*t+3}], v[{V_A}:{V_A+3}], v[{W4+4*t}:{W4+4*t+3}], 0")
    zsum64(e, DD, DD)
    for r in range(4):
        e(f"v_mov_b32_dpp v{DD+r}, v{DD+4+r} row_shr:8 row_mask:0xf bank_mask:0xc")
    for r in range(4): tag(e, DD + r)
    e("s_mov_b64 exec, 0xffff")
    store_mode(e, f"buffer_store_dwordx4 v[{DD}:{DD+3}], v{T0}, {WS}, s12 offen {{pol}}")
    e("s_mov_b64 exec, -1")
    e("L_final:")
    e("s_waitcnt lgkmcnt(0)")
    sts(e, cfg, 9)
    lab_end = e.label("L_svc_end")
    e(f"s_cmp_lg_u32 s3, 0\ns_cbranch_scc1 {lab_end}")
    FD = 28
    for r in range(4): e(f"v_mov_b32 v{FD+4+r}, s{S_TAU}")
    sp = e.label("L_hopC"); ok = e.label("L_hopCok")
    e(f"""
    {sp}:
    buffer_load_dwordx4 v[{FD}:{FD+3}], v{P_FV}, {WS}, s14 offen sc1
    s_mov_b32 exec_hi, 0xffff
    buffer_load_dwordx4 v[{FD+4}:{FD+7}], v{P_FV}, {WS}, s15 offen sc1
    s_mov_b32 exec_hi, -1
    s_waitcnt vmcnt(0)
    """)
    check(e, T0, range(FD, FD + 8), T1)
    e(f"s_cbranch_vccz {ok}")
    spin_guard(e, sp)
    e(f"{ok}:")
    sts(e, cfg, 10)
    for r in range(4): e(f"v_add_f32 v{FD+r}, v{FD+r}, v{FD+4+r}")
    rs4(e, FD)
    e(f"""
    v_add_f32_dpp v{FD}, v{FD}, v{FD} row_ror:4 row_mask:0xf bank_mask:0xf
    v_add_f32_dpp v{FD}, v{FD}, v{FD} row_ror:8 row_mask:0xf bank_mask:0xf
    v_fma_f32 v{FD}, v{P_GB}, v{FD}, v44
    v_cvt_pk_bf16_f32 v{FD}, v{FD}, v{FD}
    buffer_store_short v{FD}, v{P_OUTV}, s[{S_OUT}:{S_OUT+3}], 0 offen
    """)
    sts(e, cfg, 11)
    e(f"{lab_end}:")
    if cfg.TS:
        e(f"""
        s_lshl_b32 s91, s81, 3
        s_add_u32 s91, s91, s3
        s_lshl_b32 s91, s91, 7
        s_add_u32 s91, s91, {WS_TS + 0x10000}
        v_lshlrev_b32 v{T0}, 2, v{V_LANE}
        s_mov_b32 exec_hi, 0
        buffer_store_dword v0, v{T0}, {WS}, s91 offen
        """)
    e("s_endpgm")
```

```python
import sys
sys.path.insert(0, "gen")
from kern import *
import att, svc

def build(cfg):
    e = Emitter()
    e(f"""
    L_entry:
    s_getpc_b64 s[76:77]
    L_pc:
    {"s_memrealtime s[98:99]" if getattr(cfg, "DBGT", 0) else ""}
    s_load_dwordx16 s[8:23], s[0:1], 0
    s_load_dwordx4 s[32:35], s[0:1], 96
    s_load_dwordx8 s[24:31], s[0:1], 64
    s_cmp_ge_u32 s2, 256
    s_cbranch_scc1 L_exit
    s_mov_b32 s78, L_code_end-L_pc
    s_mov_b32 s79, 0x20000
    v_lshlrev_b32 v3, 4, v0
    s_cmp_ge_u32 s2, {cfg.PF_WGS}
    s_cbranch_scc1 L_nopf0
    s_movk_i32 s80, 0x2000
    buffer_load_dwordx4 v[248:251], v3, s[76:79], 0 offen
    buffer_load_dwordx4 v[252:255], v3, s[76:79], s80 offen
    L_nopf0:
    v_lshrrev_b32 v2, 6, v0
    v_and_b32 v1, 63, v0
    s_and_b32 s80, s2, 7
    s_lshr_b32 s81, s2, 3
    v_readfirstlane_b32 s3, v2
    {"s_waitcnt lgkmcnt(0)" if getattr(cfg, "DBGT", 0) else ""}
    {"s_mov_b32 s101, s98" if getattr(cfg, "DBGT", 0) else ""}
    s_cmp_lg_u32 s80, {cfg.SVC_X}
    s_cbranch_scc1 L_attention
    v_mov_b32 v4, 0
    v_mov_b32 v5, 0x200000
    s_waitcnt lgkmcnt(0)
    global_load_dword v240, v4, s[14:15]
    global_load_dword v241, v4, s[28:29]
    global_load_dword v242, v5, s[14:15]
    global_load_dword v243, v5, s[28:29]
    global_load_dword v244, v4, s[8:9]
    global_load_dword v245, v4, s[26:27]
    global_load_dword v246, v4, s[34:35]
    s_branch L_service
    L_attention:
    """)
    att.attention(e, cfg)
    e.vm = []
    e("L_service:")
    for _ in svc.service(e, cfg): pass
    e("L_exit:\ns_endpgm\nL_code_end:")
    lds = max(att.att_lds(cfg), svc.SVC_LDS)
    lds = (lds + 255) // 256 * 256
    return wrap_single(e.text(), 256, 512, lds, 256)

def mkcfg(**kw):
    c = Cfg()
    c.Q_AT = 45
    c.NVL = 16
    c.MODA_AFTER = 12
    c.D_V = 4
    c.V_EARLY_TILES = 1
    c.V_PER_LDS_GROUP = 2
    c.NQ1 = 2
    c.NWB_EARLY = 8
    c.PF_WGS = 64
    c.KPOL = 'nt'
    c.SVC_X = 0
    c.D_ATT_EVEN = None
    c.D_V_EVEN = None
    for k, v in kw.items(): setattr(c, k, v)
    if c.D_ATT_EVEN is None: c.D_ATT_EVEN = c.D_ATT
    if c.D_V_EVEN is None: c.D_V_EVEN = c.D_V
    return c

if __name__ == "__main__":
    out = sys.argv[1] if len(sys.argv) > 1 else "k0.s"
    kw = {}
    for a in sys.argv[2:]:
        k, v = a.split("=")
        kw[k] = int(v) if v.lstrip("-").isdigit() else (v == "True" if v in ("True", "False") else v.replace("+", " "))
    open(out, "w").write(build(mkcfg(**kw)))
    print("wrote", out)
```

```python
from kern import *

V_LANE, V_KOFF, V_VOFF, V_QOFF, V_FO2, V_T0, V_T1 = 1, 2, 3, 4, 5, 6, 7
V_Q = 8
V_S = 12
V_M, V_L = 22, 23
V_D = [24, 40]
V_O = 56
V_STG = 88
V_POP = 104
V_KV = 108
NBLK = 37
LDS_OBUF = 0
LDS_MLW = 16384
LDS_VL = 16384 + 256
def att_lds(cfg): return LDS_VL + 8 * cfg.NVL * 1024

def kv(i): return V_KV + 4 * i

def attention(e, cfg):
    e(f"""
    s_sub_u32 s82, s80, 1
    s_lshl_b32 s82, s82, 5
    s_add_u32 s82, s82, s81
    s_mov_b32 s83, {(2**32 + 27) // 28}
    s_mul_hi_u32 s84, s82, s83
    s_mul_i32 s85, s84, 28
    s_sub_u32 s85, s82, s85
    s_lshl_b32 s86, s85, 3
    s_add_u32 s86, s86, s3
    s_lshl_b32 s87, s86, 8
    s_mov_b32 s83, {(2**32 + 6) // 7}
    s_mul_hi_u32 s88, s87, s83
    s_add_u32 s87, s87, 256
    s_mul_hi_u32 s89, s87, s83
    s_sub_u32 s89, s89, s88
    s_lshl_b32 s52, s88, 10
    s_lshl_b32 s90, s84, 23
    v_bfe_u32 v{V_KOFF}, v{V_LANE}, 2, 2
    v_lshlrev_b32 v{V_KOFF}, 8, v{V_KOFF}
    v_lshrrev_b32 v{V_T0}, 4, v{V_LANE}
    v_lshlrev_b32 v{V_T0}, 6, v{V_T0}
    v_and_b32 v{V_T1}, 3, v{V_LANE}
    v_lshlrev_b32 v{V_VOFF}, 4, v{V_T1}
    v_add3_u32 v{V_KOFF}, v{V_KOFF}, v{V_T0}, v{V_VOFF}
    """)
    e("s_waitcnt lgkmcnt(0)")
    tag_setup(e)
    srd(e, 36, 10, 11, 0x800000, add="s90")
    ts(e, cfg, 60)
    D = cfg.D_ATT
    DE = cfg.D_ATT_EVEN
    def throttle(dodd, deven):
        if deven < dodd and len(e.vm) >= deven:
            lab = e.label("L_th")
            e(f"s_cbranch_vccz {lab}\ns_waitcnt vmcnt({deven-1})\n{lab}:")
        e.wait_vm_n(dodd - 1)
    def set_parity():
        e("s_getreg_b32 s51, hwreg(HW_REG_XCC_ID)\ns_bitcmp1_b32 s51, 0\ns_cselect_b64 vcc, 0, -1")
    cur = [None]
    def kload(i):
        hi = (i // 4) * 4096
        if i == NBLK - 1:
            e.vmem(f"buffer_load_dwordx4 v[{kv(i)}:{kv(i)+3}], v{V_KOFF}, s[36:39], s54 offen nt", f"K{i}")
            return
        if cur[0] != hi:
            if hi == 0: e("s_mov_b32 s53, s52")
            else: e(f"s_add_u32 s53, s52, {hi}")
            cur[0] = hi
        e.vmem(f"buffer_load_dwordx4 v[{kv(i)}:{kv(i)+3}], v{V_KOFF}, s[36:39], s53 offen offset:{(i%4)*1024} nt", f"K{i}")
    D0 = min(D, DE)
    for i in range(D0):
        kload(i)
    srd(e, 40, 12, 13, 0x800000, add="s90")
    srd(e, 44, 34, 35, WS_SIZE)
    e(f"""
    s_add_u32 s54, s52, {(NBLK-1)*1024}
    s_cmp_eq_u32 s89, {NBLK}
    s_cselect_b32 s54, s54, {OOB}
    s_cselect_b32 s56, 0, 0xff800000
    s_lshl_b32 s55, s84, 11
    s_add_u32 s55, s55, {WS_Q}
    s_mov_b32 s57, {f32(SCALE_C)}
    s_mul_i32 s58, s84, 28
    s_add_u32 s58, s58, s85
    s_lshl_b32 s59, s58, 6
    s_add_u32 s59, s59, {WS_ML}
    s_lshl_b32 s58, s58, 11
    s_add_u32 s58, s58, {WS_PART}
    s_mov_b32 s94, 0x05040100
    s_mov_b32 s95, 0x07060302
    s_mov_b32 s99, {cfg.SPIN}
    v_lshlrev_b32 v{V_QOFF}, 9, v{V_T1}
    v_lshl_add_u32 v{V_QOFF}, v{V_T0}, 1, v{V_QOFF}
    v_bfe_u32 v{V_T0}, v{V_LANE}, 2, 2
    v_lshl_add_u32 v{V_QOFF}, v{V_T0}, 5, v{V_QOFF}
    v_lshlrev_b32 v{V_VOFF}, 4, v{V_LANE}
    v_mov_b32 v{V_S+9}, 0xff800000
    """)
    Q_AT = cfg.Q_AT
    NVL = cfg.NVL
    QR = V_D[0]
    def qloads(track):
        for k in range(2):
            t = f"buffer_load_dwordx4 v[{QR+4*k}:{QR+4*k+3}], v{V_QOFF}, s[44:47], s55 offen offset:{16*k} sc1"
            if track: e.vmem(t, f"Q{k}")
            else: e(t)
    e(f"s_mul_i32 s48, s3, {NVL*1024}\ns_add_u32 s48, s48, {LDS_VL}")
    def vdma(k):
        if k % 4 == 0:
            e(f"s_add_u32 s49, s52, {k*1024}\ns_add_u32 s50, s48, {k*1024}\ns_mov_b32 m0, s50\ns_nop 0")
        e.vmem(f"buffer_load_dwordx4 v{V_VOFF}, s[40:43], s49 offen offset:{(k%4)*1024} nt lds", f"L{k}")
    set_parity()
    for i in range(D0, NBLK + NVL):
        if i == Q_AT:
            throttle(D, DE)
            qloads(True)
        throttle(D, DE)
        if i < NBLK: kload(i)
        else: vdma(i - NBLK)
    ts(e, cfg, 61)
    e("s_waitcnt lgkmcnt(0)")
    tag_finish(e)
    e.wait_vm("Q1")
    ok = e.label("L_qok"); sp = e.label("L_qspin")
    check(e, V_T0, range(QR, QR + 8))
    e(f"s_cbranch_vccz {ok}\n{sp}:\ns_sleep 8")
    qloads(False)
    e("s_waitcnt vmcnt(0)")
    check(e, V_T0, range(QR, QR + 8))
    e(f"s_cbranch_vccz {ok}")
    spin_guard(e, sp)
    e(f"{ok}:")
    for k in range(4):
        e(f"v_cvt_pk_bf16_f32 v{V_Q+k}, v{QR+2*k}, v{QR+2*k+1}")
    ts(e, cfg, 62)
    curv = [None]
    def vload(i):
        hi = (i // 4) * 4096
        if i == NBLK - 1:
            e.vmem(f"buffer_load_dwordx4 v[{kv(i)}:{kv(i)+3}], v{V_VOFF}, s[40:43], s54 offen nt", f"V{i}")
            return
        if curv[0] != hi:
            if hi == 0: e("s_mov_b32 s53, s52")
            else: e(f"s_add_u32 s53, s52, {hi}")
            curv[0] = hi
        e.vmem(f"buffer_load_dwordx4 v[{kv(i)}:{kv(i)+3}], v{V_VOFF}, s[40:43], s53 offen offset:{(i%4)*1024} nt", f"V{i}")
    def tile_blocks(T): return list(range(4 * T, min(4 * T + 4, NBLK)))
    def reduce_tile(T, par):
        Db = V_D[par]
        S = V_S + T
        for t, blk in enumerate(tile_blocks(T)):
            for b in range(4):
                rot = (4 * (t - b)) % 16
                ctl = f"row_ror:{rot}" if rot else "quad_perm:[0,1,2,3]"
                if b == 0:
                    e(f"v_mov_b32_dpp v{S}, v{Db + 4*t + b} {ctl} row_mask:0xf bank_mask:0x{1 << t:x}")
                else:
                    e(f"v_add_f32_dpp v{S}, v{Db + 4*t + b}, v{S} {ctl} row_mask:0xf bank_mask:0x{1 << t:x}")
    NT = 10
    DV = cfg.D_V
    DVE = cfg.D_V_EVEN
    set_parity()
    NVT = NVL // 4
    order = list(range(NVT, NT)) + list(range(NVT))
    vnext = [NVL]
    def v_issue_upto(n):
        while vnext[0] < min(n, NBLK):
            throttle(DV, DVE)
            vload(vnext[0]); vnext[0] += 1
    e(f"v_lshl_add_u32 v{V_FO2}, v{V_LANE}, 4, s48")
    prev = None
    for n, T in enumerate(order):
        bl = tile_blocks(T)
        e.wait_vm(f"K{bl[-1]}")
        for t, blk in enumerate(bl):
            Dd = V_D[n & 1] + 4 * t
            e(f"v_mfma_f32_16x16x32_bf16 v[{Dd}:{Dd+3}], v[{kv(blk)}:{kv(blk)+3}], v[{V_Q}:{V_Q+3}], 0")
        if prev is not None: reduce_tile(prev, (n - 1) & 1)
        if n < cfg.V_EARLY_TILES and T >= NVT:
            for blk in bl:
                if blk == vnext[0]:
                    vload(blk); vnext[0] += 1
        if T < NVT:
            e.wait_vm(f"L{bl[-1]}")
            for blk in bl:
                e(f"ds_read_b128 v[{kv(blk)}:{kv(blk)+3}], v{V_FO2} offset:{blk*1024}")
        prev = T
    reduce_tile(prev, (NT - 1) & 1)
    e(f"v_add_f32 v{V_S+9}, s56, v{V_S+9}")
    ts(e, cfg, 63)
    e(f"v_max3_f32 v{V_M}, v{V_S}, v{V_S+1}, v{V_S+2}")
    for k in range(3, 9, 2):
        e(f"v_max3_f32 v{V_M}, v{V_M}, v{V_S+k}, v{V_S+k+1}")
    e(f"v_max_f32 v{V_M}, v{V_M}, v{V_S+9}")
    allreduce16(e, "v_max_f32", V_M, steps=(4, 8))
    xrow(e, "v_max_f32", V_M, V_T0, 16)
    xrow(e, "v_max_f32", V_M, V_T0, 32)
    e(f"v_mul_f32 v{V_M}, s57, v{V_M}")
    for T in range(NT):
        e(f"v_fma_f32 v{V_S+T}, v{V_S+T}, s57, -v{V_M}")
    for T in range(NT):
        e(f"v_exp_f32 v{V_S+T}, v{V_S+T}")
    v_issue_upto(vnext[0] + 2)
    e(f"v_add_f32 v{V_L}, v{V_S}, v{V_S+1}")
    for T in range(2, NT):
        e(f"v_add_f32 v{V_L}, v{V_L}, v{V_S+T}")
    for g in range(5):
        e(f"v_cvt_pk_bf16_f32 v{V_S+2*g}, v{V_S+2*g}, v{V_S+2*g+1}")
    allreduce16(e, "v_add_f32", V_L, steps=(4, 8))
    xrow(e, "v_add_f32", V_L, V_T0, 16)
    xrow(e, "v_add_f32", V_L, V_T0, 32)
    e(f"""
    s_lshl_b32 s91, s3, 5
    v_lshlrev_b32 v{V_T0}, 3, v{V_LANE}
    v_add_u32 v{V_T0}, s91, v{V_T0}
    s_mov_b64 exec, 0xf
    ds_write_b64 v{V_T0}, v[{V_M}:{V_M+1}] offset:{LDS_MLW}
    s_mov_b64 exec, -1
    """)
    for g in range(5):
        last_blk = tile_blocks(min(2 * g + 1, NT - 1))[-1]
        if last_blk < NVL:
            v_issue_upto(vnext[0] + cfg.V_PER_LDS_GROUP)
            e("s_waitcnt lgkmcnt(0)")
        else:
            v_issue_upto(last_blk + 1 + DV)
            e.wait_vm(f"V{last_blk}")
        X = V_S + 2 * g
        e(f"v_mov_b32 v{V_POP}, v{X}")
        for m in range(1, 4):
            e(f"v_mov_b32_dpp v{V_POP+m}, v{X} row_shl:{4*m} row_mask:0xf bank_mask:0xf")
        for j in range(4):
            st = V_STG + 8 * (j & 1)
            for m in range(4):
                x = kv(8 * g + m) + j
                yb = 8 * g + 4 + m
                y = (kv(yb) if yb < NBLK else kv(8 * g + m)) + j
                e(f"v_perm_b32 v{st + m}, v{y}, v{x}, s94")
                e(f"v_perm_b32 v{st + 4 + m}, v{y}, v{x}, s95")
            for q in range(2):
                O = V_O + 4 * (2 * j + q)
                C = "0" if g == 0 else f"v[{O}:{O+3}]"
                e(f"v_mfma_f32_16x16x32_bf16 v[{O}:{O+3}], v[{V_POP}:{V_POP+3}], v[{st+4*q}:{st+4*q+3}], {C}")
    ts(e, cfg, 64)
    e(f"""
    s_lshl_b32 s91, s3, 11
    v_lshlrev_b32 v{V_T0}, 5, v{V_LANE}
    v_add_u32 v{V_T0}, s91, v{V_T0}
    v_add_u32 v{V_T1}, 1024, v{V_T0}
    s_mov_b64 exec, 0xffff
    """)
    for u in range(4):
        for r in range(4):
            a = V_T0 if r < 2 else V_T1
            o0 = (r & 1) * 128 + 2 * u
            e(f"ds_write2_b32 v{a}, v{V_O + 4*(2*u) + r}, v{V_O + 4*(2*u+1) + r} offset0:{o0} offset1:{o0+1}")
    e("s_mov_b64 exec, -1")
    A0, A1, AM, AP = 24, 25, 26, 27
    e(f"""
    v_lshrrev_b32 v{A1}, 2, v{V_LANE}
    s_lshl_b32 s91, s3, 4
    v_add_u32 v{A1}, s91, v{A1}
    v_lshlrev_b32 v{A1}, 4, v{A1}
    v_and_b32 v{AM}, 3, v{V_LANE}
    v_lshlrev_b32 v{A0}, 12, v{AM}
    v_add_u32 v{A0}, v{A0}, v{A1}
    v_cmp_eq_u32 vcc, 0, v{AM}
    v_mov_b32 v{AP}, {OOB}
    v_cndmask_b32 v{AP}, v{AP}, v{A1}, vcc
    s_lshr_b32 s91, s3, 1
    s_lshl_b32 s91, s91, 3
    v_lshlrev_b32 v{AM}, 6, v{AM}
    v_add_u32 v{AM}, s91, v{AM}
    v_cmp_eq_u32 vcc, 0, v{V_LANE}
    v_mov_b32 v{A1}, {OOB}
    s_lshl_b32 s91, s91, 1
    v_mov_b32 v28, s91
    v_cndmask_b32 v{A1}, v{A1}, v28, vcc
    s_waitcnt lgkmcnt(0)
    s_barrier
    ds_read_b64 v[30:31], v{AM} offset:{LDS_MLW}
    ds_read_b64 v[32:33], v{AM} offset:{LDS_MLW+32}
    ds_read_b128 v[36:39], v{A0}
    ds_read_b128 v[40:43], v{A0} offset:2048
    s_waitcnt lgkmcnt(2)
    v_max_f32 v34, v30, v32
    v_max_f32_dpp v34, v34, v34 quad_perm:[1,0,3,2] row_mask:0xf bank_mask:0xf
    v_max_f32_dpp v34, v34, v34 quad_perm:[2,3,0,1] row_mask:0xf bank_mask:0xf
    """)
    tag(e, 34)
    e(f"""
    v_sub_f32 v30, v30, v34
    v_sub_f32 v32, v32, v34
    v_exp_f32 v30, v30
    v_exp_f32 v32, v32
    v_mul_f32 v35, v30, v31
    v_fmac_f32 v35, v32, v33
    s_waitcnt lgkmcnt(0)
    """)
    for r in range(4):
        e(f"v_mul_f32 v{36+r}, v30, v{36+r}")
    for r in range(4):
        e(f"v_fmac_f32 v{36+r}, v32, v{40+r}")
    for qp in ("[1,0,3,2]", "[2,3,0,1]"):
        for r in (36, 37, 38, 39, 35):
            e(f"v_add_f32_dpp v{r}, v{r}, v{r} quad_perm:{qp} row_mask:0xf bank_mask:0xf")
    for r in (36, 37, 38, 39, 35):
        tag(e, r)
    e.vmem(f"buffer_store_dwordx4 v[36:39], v{AP}, s[44:47], s58 offen sc1", "PS")
    e("v_mov_b32 v32, v34\nv_mov_b32 v33, v35\nv_mov_b32 v30, v34\nv_mov_b32 v31, v35")
    e.vmem(f"buffer_store_dwordx4 v[30:33], v{A1}, s[44:47], s59 offen sc1", "MS")
    ts(e, cfg, 65)
    if getattr(cfg, "DBGT", 0):
        lab = e.label("L_dbgt")
        e(f"""
        s_cmp_lg_u32 s3, 0
        s_cbranch_scc1 {lab}
        s_cmp_lg_u32 s81, 31
        s_cbranch_scc1 {lab}
        s_waitcnt vmcnt(0)
        s_memrealtime s[96:97]
        s_waitcnt lgkmcnt(0)
        s_sub_u32 s96, s96, s101
        v_mov_b32 v4, s96
        s_add_u32 s91, s80, 6
        s_lshl_b32 s91, s91, 2
        v_mov_b32 v5, s91
        s_mov_b32 s48, s32
        s_mov_b32 s49, s33
        s_mov_b32 s50, 256
        s_mov_b32 s51, 0x20000
        s_mov_b64 exec, 1
        buffer_store_dword v4, v5, s[48:51], 0 offen sc1
        {lab}:
        """)
    if cfg.TS:
        e.wait_vm_all()
        ts(e, cfg, 66)
        e(f"""
        s_lshl_b32 s91, s2, 3
        s_add_u32 s91, s91, s3
        s_lshl_b32 s91, s91, 5
        s_add_u32 s91, s91, {WS_TS}
        v_mov_b32 v6, {OOB}
        v_cmp_eq_u32 vcc, 0, v{V_LANE}
        v_cndmask_b32 v6, v6, 0, vcc
        """)
        for k in range(7): e(f"v_mov_b32 v{36+k}, s{60+k}")
        e("v_mov_b32 v43, s89")
        e("buffer_store_dwordx4 v[36:39], v6, s[44:47], s91 offen")
        e("buffer_store_dwordx4 v[40:43], v6, s[44:47], s91 offen offset:16")
    e("s_endpgm")
```

```python
from kern import *

S_WS, S_DBG, S_X, S_C, S_WMOD, S_WQ, S_WO, S_WG, S_WU, S_WD, S_OUT = 36, 40, 44, 48, 52, 56, 4, 64, 68, 72, 84
L_SVA  = 0
L_CNT  = 1024
L_STAT = 2048
L_STA2 = 2176
L_RA1  = 2304
L_RQ   = 4352
L_RB   = 8448
L_RP1  = 10496
L_RGU  = 18688
L_X1   = 22784
L_WL   = 24832
L_STG  = 24832 + 4096
SVC_LDS = L_STG + 8 * 16384

V_LANE, V_TAU2, V_N = 1, 2, 3
T0, T1, T2, T3 = 4, 5, 6, 7
V_A = 8
P_WLW1, P_WH2, P_COL4, P_COLF4 = 12, 13, 14, 15
P_GA, P_CB1, P_SB, P_X, P_GB = 16, 17, 18, 19, 20
P_PV, P_MV, P_XV, P_FV, P_A64R, P_A128R, P_OUTV = 21, 22, 23, 24, 25, 26, 27
SC = 28
W0, W1, W2, W3, W4 = 96, 128, 160, 192, 224

def unit64_voff(e, dst, stride_bytes, t0, t1):
    e(f"""
    v_lshrrev_b32 v{t0}, 4, v{V_LANE}
    v_lshlrev_b32 v{t0}, 3, v{t0}
    v_bfe_u32 v{t1}, v{V_LANE}, 3, 1
    v_lshlrev_b32 v{t1}, 5, v{t1}
    v_add_u32 v{t0}, v{t0}, v{t1}
    v_mul_u32_u24 v{t0}, {stride_bytes}, v{t0}
    v_and_b32 v{t1}, 7, v{V_LANE}
    v_lshlrev_b32 v{t1}, 4, v{t1}
    v_add_u32 v{dst}, v{t0}, v{t1}
    """)

def unit128_voff(e, dst, stride_bytes, t0, t1):
    e(f"""
    v_lshrrev_b32 v{t0}, 4, v{V_LANE}
    v_mul_u32_u24 v{t0}, {8*stride_bytes}, v{t0}
    v_and_b32 v{t1}, 15, v{V_LANE}
    v_lshlrev_b32 v{t1}, 4, v{t1}
    v_add_u32 v{dst}, v{t0}, v{t1}
    """)

class Stream:
    def __init__(self, e, depth): self.e, self.d = e, depth
    def load(self, dst, voff, srdq, sbase, byte_off, tag):
        e = self.e
        e.wait_vm_n(self.d - 1)
        if byte_off < 4096:
            e.vmem(f"buffer_load_dwordx4 v[{dst}:{dst+3}], v{voff}, s[{srdq}:{srdq+3}], {sbase} offen offset:{byte_off} nt", tag)
        else:
            e(f"s_add_u32 s93, {sbase}, {byte_off}")
            e.vmem(f"buffer_load_dwordx4 v[{dst}:{dst+3}], v{voff}, s[{srdq}:{srdq+3}], s93 offen nt", tag)

def zsum64(e, D, Z):
    for t in range(8):
        e(f"v_add_f32_dpp v{Z+t}, v{D+4*t+1}, v{D+4*t} row_shl:8 row_mask:0xf bank_mask:0xf")

def rs4(e, a):
    e(f"v_permlane32_swap_b32 v{a}, v{a+1}")
    e(f"v_permlane32_swap_b32 v{a+2}, v{a+3}")
    e(f"v_add_f32 v{a}, v{a}, v{a+1}")
    e(f"v_add_f32 v{a+2}, v{a+2}, v{a+3}")
    e(f"v_permlane16_swap_b32 v{a}, v{a+2}")
    e(f"v_add_f32 v{a}, v{a}, v{a+2}")

def store_mode(e, text):
    lf = e.label("L_fast"); le = e.label("L_stend")
    e(f"s_cmp_eq_u32 s98, 1\ns_cbranch_scc1 {lf}")
    e(text.format(pol="sc1"))
    e(f"s_branch {le}\n{lf}:")
    e(text.format(pol=""))
    e(f"{le}:")
    e.vm.append("st")

def sts(e, cfg, k):
    if cfg.TS:
        e(f"s_memrealtime s[96:97]\ns_waitcnt lgkmcnt(0)\nv_writelane_b32 v0, s96, {k}")

def silu(e, dst, src, t):
    e(f"""
    v_mul_f32 v{t}, {f32(-LOG2E)}, v{src}
    v_exp_f32 v{t}, v{t}
    v_add_f32 v{t}, 1.0, v{t}
    v_rcp_f32 v{t}, v{t}
    v_mul_f32 v{dst}, v{src}, v{t}
    """)

DBG_OFF = [0]
def persist_setup(e, cfg):
    DBG_OFF[0] = 128 if getattr(cfg, 'DBGT', 0) else 0
    WS = f"s[{S_WS}:{S_WS+3}]"
    e(f"""
    v_lshrrev_b32 v{T0}, 4, v{V_LANE}
    v_and_b32 v{T1}, 1, v{T0}
    v_lshlrev_b32 v{T1}, 1, v{T1}
    v_lshrrev_b32 v{T2}, 1, v{T0}
    v_or_b32 v{T2}, v{T2}, v{T1}
    s_lshl_b32 s16, s3, 9
    s_add_u32 s16, s16, {L_WL}
    v_lshlrev_b32 v{P_A128R}, 4, v{T0}
    v_add_u32 v{P_A128R}, s16, v{P_A128R}
    v_and_b32 v{P_A64R}, 1, v{V_LANE}
    v_lshlrev_b32 v{P_A64R}, 6, v{P_A64R}
    v_add3_u32 v{P_A64R}, v{P_A64R}, v{P_A128R}, 0
    v_and_b32 v{T1}, 7, v{V_LANE}
    v_lshl_add_u32 v{T1}, v{T1}, 2, v{T2}
    v_lshlrev_b32 v{T1}, 1, v{T1}
    v_add_u32 v{P_WLW1}, s16, v{T1}
    v_and_b32 v{T1}, 15, v{V_LANE}
    v_lshl_add_u32 v{T1}, v{T1}, 2, v{T2}
    v_lshlrev_b32 v{T3}, 1, v{T1}
    v_add_u32 v{P_WH2}, s16, v{T3}
    s_lshl_b32 s91, s3, 6
    v_add_u32 v{T1}, s91, v{T1}
    v_lshlrev_b32 v{P_COL4}, 2, v{T1}
    v_lshlrev_b32 v{T3}, 1, v{T1}
    v_and_b32 v{T1}, 3, v{V_LANE}
    v_lshl_add_u32 v{T1}, v{T1}, 2, v{T2}
    s_lshl_b32 s91, s81, 4
    v_add_u32 v{T1}, s91, v{T1}
    v_lshlrev_b32 v{P_COLF4}, 2, v{T1}
    v_lshlrev_b32 v{T1}, 1, v{T1}
    v_and_b32 v{T0}, 12, v{V_LANE}
    v_cmp_eq_u32 vcc, 0, v{T0}
    v_mov_b32 v{P_OUTV}, {OOB}
    v_cndmask_b32 v{P_OUTV}, v{P_OUTV}, v{T1}, vcc
    s_mov_b32 s8, {WS_MODB}
    s_mov_b32 s9, {WS_MODB + 4096}
    v_mov_b32 v2, v{T3}
    v_and_b32 v92, 31, v{V_LANE}
    v_lshlrev_b32 v92, 2, v92
    """)

def modb_loads(e, track):
    WS = f"s[{S_WS}:{S_WS+3}]"
    L = [f"buffer_load_dword v{P_GA}, v{P_COL4}, {WS}, s8 offen sc1",
         f"buffer_load_dword v{P_SB}, v{P_COL4}, {WS}, s8 offen offset:2048 sc1",
         f"buffer_load_dword v{P_CB1}, v{P_COL4}, {WS}, s9 offen sc1",
         f"buffer_load_dword v{P_GB}, v{P_COLF4}, {WS}, s9 offen offset:2048 sc1",
         f"buffer_load_ushort v{P_X}, v2, s[{S_X}:{S_X+3}], 0 offen",
         f"buffer_load_dword v3, v92, s[{S_DBG}:{S_DBG+3}], 0 offen offset:{DBG_OFF[0]} sc1"]
    for k, t in enumerate(L):
        if track: e.vmem(t, f"MB{k}")
        else: e(t)

def counter_last(e, off, n, lab):
    e(f"""
    s_mov_b64 exec, 1
    v_mov_b32 v{T1}, {L_CNT + off}
    v_mov_b32 v{T2}, 1
    s_waitcnt lgkmcnt(0)
    ds_add_rtn_u32 v{T3}, v{T1}, v{T2}
    s_waitcnt lgkmcnt(0)
    v_readfirstlane_b32 s91, v{T3}
    s_mov_b64 exec, -1
    s_cmp_lg_u32 s91, {n}
    s_cbranch_scc1 {lab}
    """)

def service(e, cfg):
    D = cfg.D_SVC
    WS = f"s[{S_WS}:{S_WS+3}]"
    Z = 76
    pend = []
    def pump(upto_tag):
        while True:
            tag_, fn = pend.pop(0)
            e.wait_vm_n(D - 1)
            fn()
            if tag_ == upto_tag: break
    def rload(dst, voff, srdq, sbase, byte_off, tag_):
        def fn():
            if byte_off < 4096:
                e.vmem(f"buffer_load_dwordx4 v[{dst}:{dst+3}], v{voff}, s[{srdq}:{srdq+3}], {sbase} offen offset:{byte_off} nt", tag_)
            else:
                e(f"s_add_u32 s93, {sbase}, {byte_off}")
                e.vmem(f"buffer_load_dwordx4 v[{dst}:{dst+3}], v{voff}, s[{srdq}:{srdq+3}], s93 offen nt", tag_)
        pend.append((tag_, fn))
    def dma(voff, srdq, sbase, byte_off, lds_off, tag_):
        def fn():
            e(f"s_add_u32 s93, {sbase}, {byte_off}\ns_add_u32 s92, s63, {lds_off}\ns_mov_b32 m0, s92\ns_nop 0")
            e.vmem(f"buffer_load_dwordx4 v{voff}, s[{srdq}:{srdq+3}], s93 offen nt lds", tag_)
        pend.append((tag_, fn))
    e(f"""
    v_mov_b32 v4, {L_CNT}
    v_mov_b32 v6, 0
    v_mov_b32 v7, 0
    ds_write_b64 v4, v[6:7]
    ds_write_b64 v4, v[6:7] offset:8
    s_waitcnt lgkmcnt(0)
    """)
    tag_setup(e)
    e("s_barrier")
    e(f"s_mov_b32 s99, {cfg.SPIN}")
    srd(e, S_C, 26, 27, 1024)
    srd(e, S_WMOD, 28, 29, 512 * 3072 * 2)
    srd(e, S_WS, 34, 35, WS_SIZE)
    srd(e, S_X, 8, 9, 1024)
    srd(e, S_WQ, 14, 15, 512 * 4096 * 2)
    sts(e, cfg, 0)
    e(f"""
    s_and_b32 s83, s81, 15
    s_lshr_b32 s60, s81, 4
    s_lshl_b32 s88, s60, 12
    s_lshl_b32 s89, s83, 8
    s_add_u32 s88, s88, s89
    s_lshl_b32 s82, s3, 9
    s_add_u32 s82, s82, {L_WL}
    s_mov_b32 s94, 0x05040100
    s_mov_b32 s95, 0x07060302
    """)
    lab_noa1 = e.label("L_noa1i")
    e(f"s_cmp_ge_u32 s3, 4\ns_cbranch_scc1 {lab_noa1}")
    e(f"""
    s_lshl_b32 s61, s60, 8
    s_lshl_b32 s62, s3, 6
    s_add_u32 s61, s61, s62
    v_lshlrev_b32 v{T0}, 1, v{V_LANE}
    s_lshl_b32 s91, s61, 1
    buffer_load_ushort v22, v{T0}, s[{S_C}:{S_C+3}], s91 offen
    """)
    unit64_voff(e, 18, 6144, T1, T2)
    e(f"""
    s_mul_i32 s63, s61, 6144
    s_lshl_b32 s62, s83, 7
    s_add_u32 s63, s63, s62
    """)
    AR = 96
    for ee in range(8):
        if ee: e(f"s_add_u32 s63, s63, 6144")
        e(f"buffer_load_dwordx4 v[{AR+4*ee}:{AR+4*ee+3}], v18, s[{S_WMOD}:{S_WMOD+3}], s63 offen nt")
    sts(e, cfg, 16)
    e(f"{lab_noa1}:")
    sts(e, cfg, 18)
    c, x, XA = 16, 17, 32
    V_OQ, V_OB, V_OG, V_ODN, V_OW, FO = 18, 19, 21, 23, 24, 20
    e(f"""
    v_lshlrev_b32 v{T3}, 4, v{V_LANE}
    s_lshl_b32 s91, s3, 7
    v_lshlrev_b32 v{V_TAU2}, 1, v{V_LANE}
    v_add_u32 v{V_TAU2}, s91, v{V_TAU2}
    """)
    unit128_voff(e, V_OQ, 8192, T0, T1)
    e(f"""
    s_lshl_b32 s90, s3, 19
    s_lshl_b32 s91, s81, 8
    s_add_u32 s90, s90, s91
    """)
    e.vmem(f"buffer_load_dwordx4 v[{XA}:{XA+3}], v{T3}, s[{S_X}:{S_X+3}], 0 offen", "xa")
    e.vmem(f"buffer_load_ushort v{x}, v{V_TAU2}, s[{S_X}:{S_X+3}], 0 offen", "x")
    e.vmem(f"buffer_load_ushort v{c}, v{V_TAU2}, s[{S_C}:{S_C+3}], 0 offen", "c")
    for i in range(16):
        ks, ee = divmod(i, 8)
        rload(W3 + 4 * i, V_OQ, S_WQ, "s90", (32 * ks + ee) * 8192, f"wq{i}")
    pump("wq3")
    sts(e, cfg, 14)
    lab = e.label("L_a1done")
    e(f"s_cmp_ge_u32 s3, 4\ns_cbranch_scc1 {lab}")
    e("s_waitcnt vmcnt(7)")
    sts(e, cfg, 17)
    e("v_lshlrev_b32 v22, 16, v22")
    silu(e, 22, 22, T1)
    e(f"""
    v_cvt_pk_bf16_f32 v22, v22, v22
    v_lshl_add_u32 v{T0}, v{V_LANE}, 1, s82
    ds_write_b16 v{T0}, v22
    v_and_b32 v{T1}, 1, v{V_LANE}
    v_lshlrev_b32 v{T1}, 6, v{T1}
    v_lshrrev_b32 v{T2}, 4, v{V_LANE}
    v_lshl_add_u32 v{T1}, v{T2}, 4, v{T1}
    v_add_u32 v{T1}, s82, v{T1}
    ds_read_b128 v[{V_A}:{V_A+3}], v{T1}
    """)
    TB, DA = 44, 128
    transpose_unit(e, AR, TB)
    e("s_waitcnt lgkmcnt(0)")
    for t in range(8):
        e(f"v_mfma_f32_16x16x32_bf16 v[{DA+4*t}:{DA+4*t+3}], v[{V_A}:{V_A+3}], v[{TB+4*t}:{TB+4*t+3}], 0")
    zsum64(e, DA, Z)
    e(f"""
    s_lshl_b32 s91, s3, 8
    v_lshlrev_b32 v{T0}, 5, v{V_LANE}
    v_add_u32 v{T0}, s91, v{T0}
    s_mov_b64 exec, 0xff
    ds_write_b128 v{T0}, v[{Z}:{Z+3}] offset:{L_RA1}
    ds_write_b128 v{T0}, v[{Z+4}:{Z+7}] offset:{L_RA1+16}
    """)
    counter_last(e, 0, 3, lab)
    e(f"v_lshlrev_b32 v{T0}, 2, v{V_LANE}")
    for v in range(4):
        e(f"ds_read_b32 v{Z+v}, v{T0} offset:{L_RA1 + 256*v}")
    e("s_waitcnt lgkmcnt(0)")
    tag_finish(e)
    e(f"""
    v_add_f32 v{Z}, v{Z}, v{Z+1}
    v_add_f32 v{Z+2}, v{Z+2}, v{Z+3}
    v_add_f32 v{Z}, v{Z}, v{Z+2}
    """)
    tag(e, Z)
    e(f"buffer_store_dword v{Z}, v{T0}, {WS}, s88 offen sc1")
    e(f"s_sub_u32 s{S_TAU}, s{S_TAU}, 1")
    sts(e, cfg, 1)
    e(f"{lab}:")
    pump("wq7")
    srd(e, S_DBG, 32, 33, 256)
    srd(e, S_WO, 16, 17, 4096 * 512 * 2)
    srd(e, S_WG, 20, 21, 512 * 1792 * 2)
    srd(e, S_WU, 22, 23, 512 * 1792 * 2)
    srd(e, S_WD, 24, 25, 1792 * 512 * 2)
    srd(e, S_OUT, 30, 31, 1024)
    e("s_waitcnt lgkmcnt(0)")
    tag_finish(e)
    lab = e.label("L_xcc")
    e(f"""
    s_cmp_lg_u32 s3, 0
    s_cbranch_scc1 {lab}
    s_getreg_b32 s91, hwreg(HW_REG_XCC_ID)
    s_and_b32 s91, s91, 15
    s_add_u32 s91, s91, 1
    v_mov_b32 v{T1}, s91
    s_lshl_b32 s92, s81, 2
    v_mov_b32 v{T2}, s92
    s_mov_b64 exec, 1
    buffer_store_dword v{T1}, v{T2}, s[{S_DBG}:{S_DBG+3}], 0 offen offset:{128 if getattr(cfg, "DBGT", 0) else 0} sc1
    s_mov_b64 exec, -1
    {lab}:
    """)
    e.wait_vm("c")
    U = 36
    for k in range(4):
        e(f"v_lshlrev_b32 v{U+2*k}, 16, v{XA+k}\nv_and_b32 v{U+2*k+1}, 0xffff0000, v{XA+k}")
    e(f"v_add_f32 v{V_A}, v{U}, v{U+1}\nv_mul_f32 v{V_A+1}, v{U}, v{U}\nv_fmac_f32 v{V_A+1}, v{U+1}, v{U+1}")
    for k in range(2, 8):
        e(f"v_add_f32 v{V_A}, v{V_A}, v{U+k}\nv_fmac_f32 v{V_A+1}, v{U+k}, v{U+k}")
    e(f"v_permlane32_swap_b32 v{V_A}, v{V_A+1}\nv_add_f32 v{V_A}, v{V_A}, v{V_A+1}")
    xrow(e, "v_add_f32", V_A, T0, 16)
    allreduce16(e, "v_add_f32", V_A)
    e(f"""
    v_lshlrev_b32 v{c}, 16, v{c}
    v_lshlrev_b32 v{x}, 16, v{x}
    v_readlane_b32 s91, v{V_A}, 0
    v_readlane_b32 s92, v{V_A}, 32
    """)
    silu(e, c, c, T0)
    e(f"""
    v_mov_b32 v{T0}, {f32(1/512)}
    v_mul_f32 v{T1}, s91, v{T0}
    v_mul_f32 v{T2}, s92, v{T0}
    v_fma_f32 v{T2}, -v{T1}, v{T1}, v{T2}
    v_add_f32 v{T2}, {f32(1e-5)}, v{T2}
    v_rsq_f32 v{T2}, v{T2}
    v_sub_f32 v{V_N}, v{x}, v{T1}
    v_mul_f32 v{V_N}, v{V_N}, v{T2}
    v_cvt_pk_bf16_f32 v{c}, v{c}, v{c}
    v_lshl_add_u32 v{T0}, v{V_LANE}, 1, s82
    ds_write_b16 v{T0}, v{c} offset:128
    """)
    pump("wq15")
    sts(e, cfg, 15)
    e(f"v_lshlrev_b32 v{FO}, 1, v{V_TAU2}\ns_mov_b32 s89, 4096")
    def moda_loads(track):
        for k, (so, im) in enumerate((("0", 0), ("s89", 0), ("0", 2048), ("s89", 2048))):
            t = f"buffer_load_dword v{Z+k}, v{FO}, {WS}, {so} offen offset:{im} sc1"
            if track: e.vmem(t, f"MA{k}")
            else: e(t)
    e.wait_vm_n(D - 4)
    moda_loads(True)
    unit64_voff(e, V_OB, 6144, T0, T1)
    unit64_voff(e, V_OG, 3584, T0, T1)
    unit64_voff(e, V_ODN, 1024, T0, T1)
    unit128_voff(e, V_OW, 1024, T0, T1)
    e(f"""
    s_mul_i32 s90, s3, {64*6144}
    s_lshl_b32 s91, s81, 7
    s_add_u32 s90, s90, s91
    s_add_u32 s90, s90, 2048
    s_mul_i32 s61, s3, {64*3584}
    s_add_u32 s61, s61, s91
    s_lshl_b32 s62, s81, 16
    s_lshl_b32 s91, s3, 7
    s_add_u32 s62, s62, s91
    s_cmp_lt_u32 s81, 28
    s_cselect_b32 s61, s61, {OOB}
    s_cselect_b32 s62, s62, {OOB}
    s_lshr_b32 s60, s81, 1
    s_lshl_b32 s10, s60, 8
    s_lshl_b32 s63, s3, 5
    s_add_u32 s10, s10, s63
    s_lshl_b32 s10, s10, 10
    s_and_b32 s11, s81, 1
    s_lshl_b32 s63, s11, 9
    s_add_u32 s10, s10, s63
    s_mul_i32 s63, s3, 16384
    s_add_u32 s63, s63, {L_STG}
    """)
    if getattr(cfg, "NOBULK", 0):
        e(f"s_mov_b32 s61, {OOB}\ns_mov_b32 s62, {OOB}\ns_mov_b32 s10, {OOB}")
    for ee in range(8): rload(W1 + 4 * ee, V_OB, S_WMOD, "s90", ee * 6144, f"wb{ee}")
    for ee in range(8):
        for cb in range(2): rload(W2 + 32 * cb + 4 * ee, V_OW, S_WO, "s10", cb * 256 + ee * 1024, f"wo{cb}_{ee}")
    for ee in range(8): rload(W4 + 4 * ee, V_OG, S_WG, "s61", ee * 3584, f"wg{ee}")
    for ee in range(8): dma(V_OG, S_WU, "s61", ee * 3584, ee * 1024, f"wu{ee}")
    for ee in range(8): dma(V_ODN, S_WD, "s62", ee * 1024, 8192 + ee * 1024, f"wd{ee}")
    e.wait_vm("wq7")
    transpose_unit(e, W3, W2)
    pump("wb2")
    e.wait_vm("wq15")
    sts(e, cfg, 19)
    transpose_unit(e, W4, W3)
    e.wait_vm("MA3")
    sp = e.label("L_moda"); ok = e.label("L_modaok")
    check(e, T1, range(Z, Z + 4))
    e(f"s_cbranch_vccz {ok}\n{sp}:\ns_sleep 2")
    moda_loads(False)
    e("s_waitcnt vmcnt(0)")
    check(e, T1, range(Z, Z + 4))
    e(f"s_cbranch_vccz {ok}")
    spin_guard(e, sp)
    e(f"{ok}:")
    sts(e, cfg, 13)
    e(f"""
    v_add_f32 v{Z}, v{Z}, v{Z+1}
    v_add_f32 v{Z+2}, v{Z+2}, v{Z+3}
    v_add_f32 v{Z+2}, 1.0, v{Z+2}
    v_fma_f32 v{Z}, v{V_N}, v{Z+2}, v{Z}
    v_cvt_pk_bf16_f32 v{Z}, v{Z}, v{Z}
    v_lshl_add_u32 v{T0}, v{V_LANE}, 1, s82
    ds_write_b16 v{T0}, v{Z}
    v_lshrrev_b32 v{T0}, 4, v{V_LANE}
    v_lshl_add_u32 v{T0}, v{T0}, 4, s82
    ds_read_b128 v[{V_A}:{V_A+3}], v{T0}
    ds_read_b128 v[{V_A+4}:{V_A+7}], v{T0} offset:64
    s_waitcnt lgkmcnt(0)
    """)
    DQ = 44
    for t in range(8):
        e(f"v_mfma_f32_16x16x32_bf16 v[{DQ+4*t}:{DQ+4*t+3}], v[{V_A}:{V_A+3}], v[{W2+4*t}:{W2+4*t+3}], 0")
    for t in range(8):
        e(f"v_mfma_f32_16x16x32_bf16 v[{DQ+4*t}:{DQ+4*t+3}], v[{V_A+4}:{V_A+7}], v[{W3+4*t}:{W3+4*t+3}], v[{DQ+4*t}:{DQ+4*t+3}]")
    pump("wb5")
    e(f"""
    s_lshl_b32 s91, s3, 9
    s_add_u32 s91, s91, {L_RQ}
    v_lshlrev_b32 v{T0}, 5, v{V_LANE}
    v_add_u32 v{T0}, s91, v{T0}
    s_mov_b64 exec, 0xffff
    """)
    for u in range(4):
        e(f"ds_write2_b32 v{T0}, v{DQ+8*u}, v{DQ+8*u+4} offset0:{2*u} offset1:{2*u+1}")
    lab = e.label("L_qpub")
    counter_last(e, 4, 7, lab)
    e(f"v_lshlrev_b32 v{T0}, 3, v{V_LANE}")
    for v in range(8):
        e(f"ds_read_b64 v[{Z+2*v}:{Z+2*v+1}], v{T0} offset:{L_RQ + 512*v}")
    e("s_waitcnt lgkmcnt(0)")
    e(f"v_add_f32 v{Z}, v{Z}, v{Z+2}\nv_add_f32 v{Z+1}, v{Z+1}, v{Z+3}")
    for v in range(2, 8):
        e(f"v_add_f32 v{Z}, v{Z}, v{Z+2*v}\nv_add_f32 v{Z+1}, v{Z+1}, v{Z+2*v+1}")
    tag(e, Z); tag(e, Z + 1)
    e(f"""
    s_lshl_b32 s91, s81, 9
    s_add_u32 s91, s91, {WS_Q}
    buffer_store_dwordx2 v[{Z}:{Z+1}], v{T0}, {WS}, s91 offen sc1
    {lab}:
    """)
    sts(e, cfg, 3)
    persist_setup(e, cfg)
    pump("wo0_3")
    e.wait_vm("wb7")
    transpose_unit(e, W1, W0)
    e(f"""
    ds_read_b128 v[{V_A}:{V_A+3}], v{P_A64R} offset:128
    s_waitcnt lgkmcnt(0)
    """)
    DB = 44
    for t in range(8):
        e(f"v_mfma_f32_16x16x32_bf16 v[{DB+4*t}:{DB+4*t+3}], v[{V_A}:{V_A+3}], v[{W0+4*t}:{W0+4*t+3}], 0")
    pump("wo0_5")
    zsum64(e, DB, Z)
    e(f"""
    s_lshl_b32 s91, s3, 8
    v_lshlrev_b32 v{T0}, 5, v{V_LANE}
    v_add_u32 v{T0}, s91, v{T0}
    s_mov_b64 exec, 0xff
    ds_write_b128 v{T0}, v[{Z}:{Z+3}] offset:{L_RB}
    ds_write_b128 v{T0}, v[{Z+4}:{Z+7}] offset:{L_RB+16}
    """)
    lab = e.label("L_bpub")
    counter_last(e, 8, 7, lab)
    e(f"v_lshlrev_b32 v{T0}, 2, v{V_LANE}")
    for v in range(8):
        e(f"ds_read_b32 v{Z+v}, v{T0} offset:{L_RB + 256*v}")
    e("s_waitcnt lgkmcnt(0)")
    e(f"v_add_f32 v{Z}, v{Z}, v{Z+1}")
    for v in range(2, 8): e(f"v_add_f32 v{Z}, v{Z}, v{Z+v}")
    tag(e, Z)
    e(f"""
    s_lshl_b32 s91, s81, 8
    s_add_u32 s91, s91, {WS_MODB}
    buffer_store_dword v{Z}, v{T0}, {WS}, s91 offen sc1
    {lab}:
    """)
    UR = 44
    pump("wg6")
    e.wait_vm("wo1_7")
    transpose_unit(e, W2, W0)
    transpose_unit(e, W3, W1)
    pump("wu6")
    e.wait_vm("wg7")
    transpose_unit(e, W4, W2)
    pump("wd6")
    e(f"v_lshl_add_u32 v{T0}, v{V_LANE}, 4, s63")
    e.wait_vm("wu7")
    for ee in range(8): e(f"ds_read_b128 v[{UR+4*ee}:{UR+4*ee+3}], v{T0} offset:{ee*1024}")
    pump("wd7")
    e.wait_vm_n(2)
    modb_loads(e, True)
    e("s_waitcnt lgkmcnt(0)")
    transpose_unit(e, UR, W3)
    e.wait_vm("wd7")
    for ee in range(8): e(f"ds_read_b128 v[{UR+4*ee}:{UR+4*ee+3}], v{T0} offset:{8192 + ee*1024}")
    e("s_waitcnt lgkmcnt(0)")
    transpose_unit(e, UR, W4)
    e("s_mov_b32 s61, s11")
    sts(e, cfg, 4)
    post_chain(e, cfg)
    yield "done"

def post_chain(e, cfg):
    Z = 76
    WS = f"s[{S_WS}:{S_WS+3}]"
    sp = e.label("L_modb"); ok = e.label("L_modbok")
    e.wait_vm("MB5")
    check(e, T0, [P_GA, P_SB, P_CB1, P_GB])
    e(f"v_cmp_eq_u32 s[82:83], 0, v3\ns_or_b64 vcc, vcc, s[82:83]\ns_cbranch_vccz {ok}\n{sp}:\ns_sleep 2")
    modb_loads(e, False)
    e("s_waitcnt vmcnt(0)")
    check(e, T0, [P_GA, P_SB, P_CB1, P_GB])
    e(f"v_cmp_eq_u32 s[82:83], 0, v3\ns_or_b64 vcc, vcc, s[82:83]\ns_cbranch_vccz {ok}")
    spin_guard(e, sp)
    e(f"{ok}:")
    e.vm = []
    e(f"""
    v_readfirstlane_b32 s91, v3
    s_nop 1
    v_cmp_ne_u32 vcc, s91, v3
    s_nop 1
    s_cmp_eq_u64 vcc, 0
    s_cselect_b32 s98, {0 if cfg.FORCE_SLOW else 1}, 0
    """)
    e(f"v_add_f32 v{P_CB1}, 1.0, v{P_CB1}\nv_lshlrev_b32 v{P_X}, 16, v{P_X}")
    e(f"""
    s_lshr_b32 s62, s60, 1
    s_mul_i32 s62, s62, 112
    s_and_b32 s63, s60, 1
    s_lshl_b32 s63, s63, 1
    s_add_u32 s62, s62, s63
    s_lshr_b32 s63, s3, 2
    s_add_u32 s62, s62, s63
    s_lshl_b32 s88, s62, 4
    s_add_u32 s88, s88, {WS_ML}
    s_lshl_b32 s62, s62, 9
    s_and_b32 s63, s3, 3
    s_lshl_b32 s63, s63, 7
    s_add_u32 s62, s62, s63
    s_add_u32 s62, s62, {WS_PART}
    s_add_u32 s63, s62, 16384
    s_add_u32 s89, s62, 32768
    s_add_u32 s90, s62, 49152
    v_lshrrev_b32 v{T0}, 3, v{V_LANE}
    v_and_b32 v{T1}, 7, v{V_LANE}
    v_lshlrev_b32 v{T1}, 4, v{T1}
    v_lshl_add_u32 v{P_PV}, v{T0}, 11, v{T1}
    v_lshlrev_b32 v{P_MV}, 6, v{T0}
    v_lshrrev_b32 v{T0}, 4, v{V_LANE}
    v_and_b32 v{T1}, 15, v{V_LANE}
    v_lshlrev_b32 v{T1}, 4, v{T1}
    v_lshl_add_u32 v{P_XV}, v{T0}, 11, v{T1}
    s_lshl_b32 s91, s3, 8
    v_add_u32 v{P_XV}, s91, v{P_XV}
    v_lshrrev_b32 v{T0}, 2, v{V_LANE}
    v_and_b32 v{T1}, 3, v{V_LANE}
    v_lshlrev_b32 v{T1}, 4, v{T1}
    s_lshl_b32 s91, s81, 6
    v_add_u32 v{T1}, s91, v{T1}
    v_lshl_add_u32 v{P_FV}, v{T0}, 11, v{T1}
    s_lshl_b32 s8, s3, 10
    s_add_u32 s8, s8, {L_RP1}
    s_lshl_b32 s9, s60, 11
    s_lshl_b32 s91, s61, 10
    s_add_u32 s9, s9, s91
    s_add_u32 s9, s9, {WS_X1P}
    s_lshl_b32 s10, s3, 3
    s_add_u32 s10, s10, {L_STA2}
    s_lshl_b32 s11, s3, 9
    s_add_u32 s11, s11, {L_RGU}
    s_lshl_b32 s12, s81, 11
    s_lshl_b32 s91, s3, 8
    s_add_u32 s12, s12, s91
    s_add_u32 s12, s12, {WS_FFP}
    s_cmp_lt_u32 s81, 28
    s_cselect_b32 s12, s12, {OOB}
    s_mov_b32 s13, {WS_X1P}
    s_mov_b32 s17, {WS_X1P + 8192}
    s_mov_b32 s18, {WS_X1P + 16384}
    s_mov_b32 s19, {WS_X1P + 24576}
    s_mov_b32 s14, {WS_FFP}
    s_mov_b32 s15, {WS_FFP + 32768}
    """)
    U1G, U2G, U1U, U2U = 2, 3, 7, 18
    e(f"""
    v_cvt_pk_bf16_f32 v{T0}, v{P_CB1}, v{P_CB1}
    v_cvt_pk_bf16_f32 v{T1}, v{P_SB}, v{P_SB}
    ds_write_b16 v{P_WH2}, v{T0} offset:64
    ds_write_b16 v{P_WH2}, v{T1} offset:192
    v_bfe_u32 v{T0}, v{V_LANE}, 1, 1
    v_lshl_add_u32 v{T0}, v{T0}, 7, v{P_A64R}
    ds_read_b128 v[{V_A}:{V_A+3}], v{T0} offset:64
    s_waitcnt lgkmcnt(0)
    """)
    for t in range(8):
        e(f"v_mfma_f32_16x16x32_bf16 v[{32+4*t}:{32+4*t+3}], v[{V_A}:{V_A+3}], v[{W2+4*t}:{W2+4*t+3}], 0")
    for t in range(8):
        e(f"v_mfma_f32_16x16x32_bf16 v[{64+4*t}:{64+4*t+3}], v[{V_A}:{V_A+3}], v[{W3+4*t}:{W3+4*t+3}], 0")
    e(f"s_mul_i32 s91, s3, 16384\ns_add_u32 s91, s91, {L_STG}\nv_lshl_add_u32 v{T0}, v{V_LANE}, 5, s91")
    for k, (D, r0) in enumerate(((32, 0), (32, 2), (64, 0), (64, 2))):
        for half in range(2):
            for t in range(4):
                tt = 4 * half + t
                e(f"v_add_f32_dpp v{28+t}, v{D+4*tt+r0+1}, v{D+4*tt+r0} row_shl:8 row_mask:0xf bank_mask:0xf")
            e(f"s_mov_b64 exec, 0xff\nds_write_b128 v{T0}, v[28:31] offset:{256*k + 16*half}\ns_mov_b64 exec, -1\ns_nop 1")
    e(f"v_lshlrev_b32 v{T0}, 2, v{V_LANE}\nv_add_u32 v{T0}, {L_STG}, v{T0}\nv_add_u32 v{T1}, 65536, v{T0}\ns_waitcnt lgkmcnt(0)\ns_barrier")
    for k, U in enumerate((U1G, U2G, U1U, U2U)):
        for v in range(8):
            e(f"ds_read_b32 v{32+v}, v{T0} offset:{(16384*v + 256*k) % 65536}" if 16384*v + 256*k < 65536 else f"ds_read_b32 v{32+v}, v{T1} offset:{16384*v + 256*k - 65536}")
        if k == 0: pass
        e("s_waitcnt lgkmcnt(0)")
        e(f"v_add_f32 v{U}, v32, v33")
        for v in range(2, 8): e(f"v_add_f32 v{U}, v{U}, v{32+v}")
    DT, ML = 28, 44
    for r in range(4): e(f"v_mov_b32 v{DT+12+r}, s{S_TAU}")
    e(f"v_mov_b32 v{ML+12}, 0xff7fff00\nv_mov_b32 v{ML+13}, s{S_TAU}\nv_mov_b32 v{ML+14}, s{S_TAU}\nv_mov_b32 v{ML+15}, s{S_TAU}")
    tag(e, ML + 12)
    sts(e, cfg, 5)
    sp = e.label("L_hopA"); ok = e.label("L_hopAok")
    e(f"{sp}:")
    for i, sb in enumerate(("s62", "s63", "s89")):
        e(f"buffer_load_dwordx4 v[{DT+4*i}:{DT+4*i+3}], v{P_PV}, {WS}, {sb} offen sc1")
    for i in range(3):
        e(f"buffer_load_dwordx4 v[{ML+4*i}:{ML+4*i+3}], v{P_MV}, {WS}, s88 offen offset:{512*i} sc1")
    e(f"""
    s_mov_b32 exec_hi, 0
    buffer_load_dwordx4 v[{DT+12}:{DT+15}], v{P_PV}, {WS}, s90 offen sc1
    buffer_load_dwordx4 v[{ML+12}:{ML+15}], v{P_MV}, {WS}, s88 offen offset:1536 sc1
    s_mov_b32 exec_hi, -1
    s_waitcnt vmcnt(0)
    """)
    check(e, T0, range(DT, DT + 32), T1)
    e(f"s_cbranch_vccz {ok}")
    if cfg.SLEEP_A: e(f"s_sleep {cfg.SLEEP_A}")
    spin_guard(e, sp)
    e(f"{ok}:")
    sts(e, cfg, 6)
    m = [ML + 4 * i for i in range(4)]
    e(f"""
    v_max3_f32 v{T0}, v{m[0]}, v{m[1]}, v{m[2]}
    v_max_f32 v{T0}, v{T0}, v{m[3]}
    v_max_f32_dpp v{T0}, v{T0}, v{T0} row_ror:8 row_mask:0xf bank_mask:0xf
    """)
    xrow(e, "v_max_f32", T0, T1, 16)
    xrow(e, "v_max_f32", T0, T1, 32)
    for i in range(4): e(f"v_sub_f32 v{m[i]}, v{m[i]}, v{T0}")
    for i in range(4): e(f"v_exp_f32 v{m[i]}, v{m[i]}")
    AC = 60
    e(f"v_mul_f32 v{T2}, v{m[0]}, v{m[0]+1}")
    for r in range(4): e(f"v_mul_f32 v{AC+r}, v{m[0]}, v{DT+r}")
    for i in range(1, 4):
        e(f"v_fmac_f32 v{T2}, v{m[i]}, v{m[i]+1}")
        for r in range(4): e(f"v_fmac_f32 v{AC+r}, v{m[i]}, v{DT+4*i+r}")
    e(f"v_add_f32_dpp v{T2}, v{T2}, v{T2} row_ror:8 row_mask:0xf bank_mask:0xf")
    rs4(e, AC)
    xrow(e, "v_add_f32", T2, T1, 16)
    e(f"v_add_f32_dpp v{AC}, v{AC}, v{AC} row_ror:8 row_mask:0xf bank_mask:0xf")
    xrow(e, "v_add_f32", T2, T1, 32)
    e(f"""
    v_rcp_f32 v{T2}, v{T2}
    v_mul_f32 v{AC}, v{AC}, v{T2}
    v_cvt_pk_bf16_f32 v{AC}, v{AC}, v{AC}
    ds_write_b16 v{P_WLW1}, v{AC}
    ds_read_b128 v[{V_A}:{V_A+3}], v{P_A128R}
    v_lshl_add_u32 v{T0}, v{V_LANE}, 5, s8
    s_waitcnt lgkmcnt(0)
    """)
    DP = 32
    for cb in range(2):
        for t in range(8):
            d = DP + 4 * (8 * cb + t); b = W0 + 32 * cb + 4 * t
            e(f"v_mfma_f32_16x16x32_bf16 v[{d}:{d+3}], v[{V_A}:{V_A+3}], v[{b}:{b+3}], 0")
    e("s_mov_b64 exec, 0xffff")
    for cb in range(2):
        for u in range(4):
            d = DP + 4 * (8 * cb + 2 * u)
            e(f"ds_write2_b32 v{T0}, v{d}, v{d+4} offset0:{128*cb+2*u} offset1:{128*cb+2*u+1}")
    e(f"""
    s_mov_b64 exec, -1
    v_lshrrev_b32 v{T0}, 3, v{V_LANE}
    v_and_b32 v{T1}, 7, v{V_LANE}
    v_lshlrev_b32 v{T1}, 4, v{T1}
    v_lshl_add_u32 v{T0}, v{T0}, 10, v{T1}
    s_lshl_b32 s91, s3, 7
    v_add_u32 v{T0}, s91, v{T0}
    v_lshrrev_b32 v{T2}, 4, v{V_LANE}
    v_and_b32 v29, 1, v{T2}
    v_lshlrev_b32 v29, 3, v29
    v_lshrrev_b32 v{T2}, 1, v{T2}
    v_lshl_add_u32 v{T2}, v{T2}, 2, v29
    v_add3_u32 v{T2}, v{T2}, v{T1}, s91
    s_waitcnt lgkmcnt(0)
    s_barrier
    ds_read_b128 v[28:31], v{T0} offset:{L_RP1}
    s_waitcnt lgkmcnt(0)
    """)
    rs4(e, 28)
    e(f"v_add_f32_dpp v28, v28, v28 row_ror:8 row_mask:0xf bank_mask:0xf")
    tag(e, 28)
    store_mode(e, f"buffer_store_dword v28, v{T2}, {WS}, s9 offen {{pol}}")
    sts(e, cfg, 7)
    XD = 28
    sp = e.label("L_hopB"); ok = e.label("L_hopBok")
    e(f"{sp}:")
    for i, sb in enumerate(("s13", "s17", "s18", "s19")):
        e(f"buffer_load_dwordx4 v[{XD+4*i}:{XD+4*i+3}], v{P_XV}, {WS}, {sb} offen sc1")
    e("s_waitcnt vmcnt(0)")
    check(e, T0, range(XD, XD + 16), T1)
    e(f"s_cbranch_vccz {ok}")
    if cfg.SLEEP_B: e(f"s_sleep {cfg.SLEEP_B}")
    spin_guard(e, sp)
    e(f"{ok}:")
    e.vm = []
    sts(e, cfg, 8)
    for r in range(4):
        e(f"v_add_f32 v{XD+r}, v{XD+r}, v{XD+4+r}\nv_add_f32 v{XD+8+r}, v{XD+8+r}, v{XD+12+r}")
    for r in range(4): e(f"v_add_f32 v{XD+r}, v{XD+r}, v{XD+8+r}")
    rs4(e, XD)
    X1 = 44
    e(f"""
    v_fma_f32 v{X1}, v{P_GA}, v{XD}, v{P_X}
    v_mul_f32 v{T2}, v{X1}, v{P_CB1}
    v_mov_b32 v{T0}, v{X1}
    v_mul_f32 v{T1}, v{X1}, v{X1}
    v_cvt_pk_bf16_f32 v{T2}, v{T2}, v{T2}
    ds_write_b16 v{P_WH2}, v{T2} offset:64
    ds_read_b128 v[{V_A}:{V_A+3}], v{P_A64R} offset:64
    ds_write_b32 v{P_COL4}, v{X1} offset:{L_X1}
    v_permlane32_swap_b32 v{T0}, v{T1}
    v_add_f32 v{T0}, v{T0}, v{T1}
    """)
    xrow(e, "v_add_f32", T0, T1, 16)
    e("s_waitcnt lgkmcnt(1)")
    mf = [f"v_mfma_f32_16x16x32_bf16 v[{32+4*t}:{32+4*t+3}], v[{V_A}:{V_A+3}], v[{W2+4*t}:{W2+4*t+3}], 0" for t in range(8)] + \
         [f"v_mfma_f32_16x16x32_bf16 v[{64+4*t}:{64+4*t+3}], v[{V_A}:{V_A+3}], v[{W3+4*t}:{W3+4*t+3}], 0" for t in range(8)]
    for n, steps in enumerate((1, 2, 4, 8)):
        e(mf[2 * n]); e(mf[2 * n + 1])
        e(f"v_add_f32_dpp v{T0}, v{T0}, v{T0} row_ror:{steps} row_mask:0xf bank_mask:0xf")
    for n in range(8, 16): e(mf[n])
    e(f"""
    v_lshrrev_b32 v{T1}, 5, v{V_LANE}
    v_lshl_add_u32 v{T1}, v{T1}, 2, s10
    s_mov_b32 exec_lo, 1
    s_mov_b32 exec_hi, 1
    ds_write_b32 v{T1}, v{T0}
    s_mov_b64 exec, -1
    v_lshl_add_u32 v{T0}, v{V_LANE}, 5, s11
    """)
    zsum64(e, 32, 32)
    zsum64(e, 64, 64)
    e(f"""
    s_mov_b64 exec, 0xff
    ds_write_b128 v{T0}, v[32:35]
    ds_write_b128 v{T0}, v[36:39] offset:16
    ds_write_b128 v{T0}, v[64:67] offset:256
    ds_write_b128 v{T0}, v[68:71] offset:272
    s_mov_b64 exec, -1
    v_lshlrev_b32 v{T0}, 2, v{V_LANE}
    v_add_u32 v{T0}, {L_RGU}, v{T0}
    v_mov_b32 v{T2}, 0
    s_waitcnt lgkmcnt(0)
    s_barrier
    """)
    SZ, GU = 28, 48
    for k in range(4):
        e(f"ds_read_b128 v[{SZ+4*k}:{SZ+4*k+3}], v{T2} offset:{L_STA2+16*k}")
    for v in range(8):
        e(f"ds_read2st64_b32 v[{GU+2*v}:{GU+2*v+1}], v{T0} offset0:{2*v} offset1:{2*v+1}")
    e(f"ds_read_b32 v44, v{P_COLF4} offset:{L_X1}")
    e(f"v_lshlrev_b32 v{T1}, 1, v{V_LANE}\nv_add_u32 v{T1}, s16, v{T1}")
    e("s_waitcnt lgkmcnt(9)")
    e(f"v_add_f32 v{T0}, v{SZ}, v{SZ+2}\nv_add_f32 v{T2}, v{SZ+1}, v{SZ+3}")
    for k in range(4, 16, 4):
        e(f"v_add_f32 v{SZ+k}, v{SZ+k}, v{SZ+k+2}\nv_add_f32 v{SZ+k+1}, v{SZ+k+1}, v{SZ+k+3}")
    e(f"v_add_f32 v{T0}, v{T0}, v{SZ+4}\nv_add_f32 v{T2}, v{T2}, v{SZ+5}\nv_add_f32 v{SZ+8}, v{SZ+8}, v{SZ+12}\nv_add_f32 v{SZ+9}, v{SZ+9}, v{SZ+13}")
    e(f"v_add_f32 v{T0}, v{T0}, v{SZ+8}\nv_add_f32 v{T2}, v{T2}, v{SZ+9}")
    e(f"""
    v_mul_f32 v{T0}, {f32(1/512)}, v{T0}
    v_mul_f32 v{T2}, {f32(1/512)}, v{T2}
    v_fma_f32 v{T2}, -v{T0}, v{T0}, v{T2}
    v_add_f32 v{T2}, {f32(1e-5)}, v{T2}
    v_rsq_f32 v{T2}, v{T2}
    s_waitcnt lgkmcnt(1)
    """)
    for v in range(0, 8, 2):
        e(f"v_add_f32 v{GU+2*v}, v{GU+2*v}, v{GU+2*v+2}\nv_add_f32 v{GU+2*v+1}, v{GU+2*v+1}, v{GU+2*v+3}")
    e(f"v_add_f32 v{GU}, v{GU}, v{GU+4}\nv_add_f32 v{GU+1}, v{GU+1}, v{GU+5}")
    e(f"v_add_f32 v{GU+8}, v{GU+8}, v{GU+12}\nv_add_f32 v{GU+9}, v{GU+9}, v{GU+13}")
    e(f"v_add_f32 v{GU}, v{GU}, v{GU+8}\nv_add_f32 v{GU+1}, v{GU+1}, v{GU+9}")
    e(f"""
    v_fma_f32 v{GU}, -v{T0}, v{U1G}, v{GU}
    v_fma_f32 v{GU+1}, -v{T0}, v{U1U}, v{GU+1}
    v_fma_f32 v{GU}, v{GU}, v{T2}, v{U2G}
    v_fma_f32 v{GU+1}, v{GU+1}, v{T2}, v{U2U}
    v_mul_f32 v{T0}, {f32(-LOG2E)}, v{GU}
    v_exp_f32 v{T0}, v{T0}
    v_mul_f32 v{GU}, v{GU}, v{GU+1}
    v_add_f32 v{T0}, 1.0, v{T0}
    v_rcp_f32 v{T0}, v{T0}
    v_mul_f32 v{T0}, v{GU}, v{T0}
    v_cvt_pk_bf16_f32 v{T0}, v{T0}, v{T0}
    ds_write_b16 v{T1}, v{T0} offset:320
    ds_read_b128 v[{V_A}:{V_A+3}], v{P_A64R} offset:320
    v_lshrrev_b32 v{T0}, 3, v{V_LANE}
    v_and_b32 v{T1}, 7, v{V_LANE}
    v_lshlrev_b32 v{T1}, 5, v{T1}
    v_lshl_add_u32 v{T0}, v{T0}, 4, v{T1}
    s_waitcnt lgkmcnt(0)
    """)
    DD = 64
    for t in range(8):
        e(f"v_mfma_f32_16x16x32_bf16 v[{DD+4*t}:{DD+4*t+3}], v[{V_A}:{V_A+3}], v[{W4+4*t}:{W4+4*t+3}], 0")
    zsum64(e, DD, DD)
    for r in range(4):
        e(f"v_mov_b32_dpp v{DD+r}, v{DD+4+r} row_shr:8 row_mask:0xf bank_mask:0xc")
    for r in range(4): tag(e, DD + r)
    e("s_mov_b64 exec, 0xffff")
    store_mode(e, f"buffer_store_dwordx4 v[{DD}:{DD+3}], v{T0}, {WS}, s12 offen {{pol}}")
    e("s_mov_b64 exec, -1")
    e("L_final:")
    e("s_waitcnt lgkmcnt(0)")
    sts(e, cfg, 9)
    lab_end = e.label("L_svc_end")
    e(f"s_cmp_lg_u32 s3, 0\ns_cbranch_scc1 {lab_end}")
    FD = 28
    for r in range(4): e(f"v_mov_b32 v{FD+4+r}, s{S_TAU}")
    sp = e.label("L_hopC"); ok = e.label("L_hopCok")
    e(f"""
    {sp}:
    buffer_load_dwordx4 v[{FD}:{FD+3}], v{P_FV}, {WS}, s14 offen sc1
    s_mov_b32 exec_hi, 0xffff
    buffer_load_dwordx4 v[{FD+4}:{FD+7}], v{P_FV}, {WS}, s15 offen sc1
    s_mov_b32 exec_hi, -1
    s_waitcnt vmcnt(0)
    """)
    check(e, T0, range(FD, FD + 8), T1)
    e(f"s_cbranch_vccz {ok}")
    if cfg.SLEEP_C: e(f"s_sleep {cfg.SLEEP_C}")
    spin_guard(e, sp)
    e(f"{ok}:")
    sts(e, cfg, 10)
    for r in range(4): e(f"v_add_f32 v{FD+r}, v{FD+r}, v{FD+4+r}")
    rs4(e, FD)
    e(f"""
    v_add_f32_dpp v{FD}, v{FD}, v{FD} row_ror:4 row_mask:0xf bank_mask:0xf
    v_add_f32_dpp v{FD}, v{FD}, v{FD} row_ror:8 row_mask:0xf bank_mask:0xf
    v_fma_f32 v{FD}, v{P_GB}, v{FD}, v44
    v_cvt_pk_bf16_f32 v{FD}, v{FD}, v{FD}
    buffer_store_short v{FD}, v{P_OUTV}, s[{S_OUT}:{S_OUT+3}], 0 offen
    """)
    sts(e, cfg, 11)
    if getattr(cfg, "DBGT", 0):
        e(f"""
        s_waitcnt vmcnt(0)
        s_memrealtime s[96:97]
        s_waitcnt lgkmcnt(0)
        s_sub_u32 s96, s96, s101
        v_mov_b32 v4, s96
        s_lshl_b32 s91, s81, 2
        v_mov_b32 v5, s91
        v_cmp_gt_u32 vcc, 32, v5
        s_mov_b64 exec, 1
        s_cmp_ge_u32 s81, 6
        s_cbranch_scc1 {lab_end}
        buffer_store_dword v4, v5, s[{S_DBG}:{S_DBG+3}], 0 offen sc1
        """)
    e(f"{lab_end}:")
    if cfg.TS:
        e(f"""
        s_lshl_b32 s91, s81, 3
        s_add_u32 s91, s91, s3
        s_lshl_b32 s91, s91, 7
        s_add_u32 s91, s91, {WS_TS + 0x10000}
        v_lshlrev_b32 v{T0}, 2, v{V_LANE}
        s_mov_b32 exec_hi, 0
        buffer_store_dword v0, v{T0}, {WS}, s91 offen
        """)
    e("s_endpgm")
```

```python
from kern import *

V_LANE, V_KOFF, V_VOFF, V_QOFF, V_FO2, V_T0, V_T1 = 1, 2, 3, 4, 5, 6, 7
V_Q = 8
V_S = 12
V_M, V_L = 22, 23
V_D = [24, 40]
V_O = 56
V_STG = 88
V_POP = 104
V_KV = 108
NBLK = 37
LDS_OBUF = 0
LDS_MLW = 16384
LDS_VL = 16384 + 256
def att_lds(cfg): return LDS_VL + 8 * cfg.NVL * 1024

def kv(i): return V_KV + 4 * i

def attention(e, cfg):
    e(f"""
    s_cmp_gt_u32 s80, {cfg.SVC_X}
    s_cselect_b32 s82, 1, 0
    s_sub_u32 s82, s80, s82
    s_lshl_b32 s82, s82, 5
    s_add_u32 s82, s82, s81
    s_mov_b32 s83, {(2**32 + 27) // 28}
    s_mul_hi_u32 s84, s82, s83
    s_mul_i32 s85, s84, 28
    s_sub_u32 s85, s82, s85
    s_lshl_b32 s86, s85, 3
    s_add_u32 s86, s86, s3
    s_lshl_b32 s87, s86, 8
    s_mov_b32 s83, {(2**32 + 6) // 7}
    s_mul_hi_u32 s88, s87, s83
    s_add_u32 s87, s87, 256
    s_mul_hi_u32 s89, s87, s83
    s_sub_u32 s89, s89, s88
    s_lshl_b32 s52, s88, 10
    s_lshl_b32 s90, s84, 23
    v_bfe_u32 v{V_KOFF}, v{V_LANE}, 2, 2
    v_lshlrev_b32 v{V_KOFF}, 8, v{V_KOFF}
    v_lshrrev_b32 v{V_T0}, 4, v{V_LANE}
    v_lshlrev_b32 v{V_T0}, 6, v{V_T0}
    v_and_b32 v{V_T1}, 3, v{V_LANE}
    v_lshlrev_b32 v{V_VOFF}, 4, v{V_T1}
    v_add3_u32 v{V_KOFF}, v{V_KOFF}, v{V_T0}, v{V_VOFF}
    """)
    e("s_waitcnt lgkmcnt(0)")
    tag_setup(e)
    srd(e, 36, 10, 11, 0x800000, add="s90")
    ts(e, cfg, 60)
    D = cfg.D_ATT
    DE = cfg.D_ATT_EVEN
    def throttle(dodd, deven):
        if deven < dodd and len(e.vm) >= deven:
            lab = e.label("L_th")
            e(f"s_cbranch_vccz {lab}\ns_waitcnt vmcnt({deven-1})\n{lab}:")
        e.wait_vm_n(dodd - 1)
    def set_parity():
        e("s_getreg_b32 s51, hwreg(HW_REG_XCC_ID)\ns_bitcmp1_b32 s51, 0\ns_cselect_b64 vcc, 0, -1")
    cur = [None]
    def kload(i):
        hi = (i // 4) * 4096
        if i == NBLK - 1:
            e.vmem(f"buffer_load_dwordx4 v[{kv(i)}:{kv(i)+3}], v{V_KOFF}, s[36:39], s54 offen {cfg.KPOL}", f"K{i}")
            return
        if cur[0] != hi:
            if hi == 0: e("s_mov_b32 s53, s52")
            else: e(f"s_add_u32 s53, s52, {hi}")
            cur[0] = hi
        e.vmem(f"buffer_load_dwordx4 v[{kv(i)}:{kv(i)+3}], v{V_KOFF}, s[36:39], s53 offen offset:{(i%4)*1024} {cfg.KPOL}", f"K{i}")
    D0 = min(D, DE)
    for i in range(D0):
        kload(i)
    srd(e, 40, 12, 13, 0x800000, add="s90")
    srd(e, 44, 34, 35, WS_SIZE)
    e(f"""
    s_add_u32 s54, s52, {(NBLK-1)*1024}
    s_cmp_eq_u32 s89, {NBLK}
    s_cselect_b32 s54, s54, {OOB}
    s_cselect_b32 s56, 0, 0xff800000
    s_lshl_b32 s55, s84, 11
    s_add_u32 s55, s55, {WS_Q}
    s_mov_b32 s57, {f32(SCALE_C)}
    s_mul_i32 s58, s84, 28
    s_add_u32 s58, s58, s85
    s_lshl_b32 s59, s58, 6
    s_add_u32 s59, s59, {WS_ML}
    s_lshl_b32 s58, s58, 11
    s_add_u32 s58, s58, {WS_PART}
    s_mov_b32 s94, 0x05040100
    s_mov_b32 s95, 0x07060302
    s_mov_b32 s99, {cfg.SPIN}
    v_lshlrev_b32 v{V_QOFF}, 9, v{V_T1}
    v_lshl_add_u32 v{V_QOFF}, v{V_T0}, 1, v{V_QOFF}
    v_bfe_u32 v{V_T0}, v{V_LANE}, 2, 2
    v_lshl_add_u32 v{V_QOFF}, v{V_T0}, 5, v{V_QOFF}
    v_lshlrev_b32 v{V_VOFF}, 4, v{V_LANE}
    v_mov_b32 v{V_S+9}, 0xff800000
    """)
    Q_AT = cfg.Q_AT
    NVL = cfg.NVL
    QR = V_D[0]
    def qloads(track):
        for k in range(2):
            t = f"buffer_load_dwordx4 v[{QR+4*k}:{QR+4*k+3}], v{V_QOFF}, s[44:47], s55 offen offset:{16*k} sc1"
            if track: e.vmem(t, f"Q{k}")
            else: e(t)
    e(f"s_mul_i32 s48, s3, {NVL*1024}\ns_add_u32 s48, s48, {LDS_VL}")
    def vdma(k):
        if k % 4 == 0:
            e(f"s_add_u32 s49, s52, {k*1024}\ns_add_u32 s50, s48, {k*1024}\ns_mov_b32 m0, s50\ns_nop 0")
        e.vmem(f"buffer_load_dwordx4 v{V_VOFF}, s[40:43], s49 offen offset:{(k%4)*1024} {cfg.KPOL} lds", f"L{k}")
    set_parity()
    for i in range(D0, NBLK + NVL):
        if i == Q_AT:
            throttle(D, DE)
            qloads(True)
        throttle(D, DE)
        if i < NBLK: kload(i)
        else: vdma(i - NBLK)
    ts(e, cfg, 61)
    e("s_waitcnt lgkmcnt(0)")
    tag_finish(e)
    e.wait_vm("Q1")
    ok = e.label("L_qok"); sp = e.label("L_qspin")
    check(e, V_T0, range(QR, QR + 8))
    e(f"s_cbranch_vccz {ok}\n{sp}:\ns_sleep 8")
    qloads(False)
    e("s_waitcnt vmcnt(0)")
    check(e, V_T0, range(QR, QR + 8))
    e(f"s_cbranch_vccz {ok}")
    spin_guard(e, sp)
    e(f"{ok}:")
    for k in range(4):
        e(f"v_cvt_pk_bf16_f32 v{V_Q+k}, v{QR+2*k}, v{QR+2*k+1}")
    ts(e, cfg, 62)
    curv = [None]
    def vload(i):
        hi = (i // 4) * 4096
        if i == NBLK - 1:
            e.vmem(f"buffer_load_dwordx4 v[{kv(i)}:{kv(i)+3}], v{V_VOFF}, s[40:43], s54 offen {cfg.KPOL}", f"V{i}")
            return
        if curv[0] != hi:
            if hi == 0: e("s_mov_b32 s53, s52")
            else: e(f"s_add_u32 s53, s52, {hi}")
            curv[0] = hi
        e.vmem(f"buffer_load_dwordx4 v[{kv(i)}:{kv(i)+3}], v{V_VOFF}, s[40:43], s53 offen offset:{(i%4)*1024} {cfg.KPOL}", f"V{i}")
    def tile_blocks(T): return list(range(4 * T, min(4 * T + 4, NBLK)))
    def reduce_tile(T, par):
        Db = V_D[par]
        S = V_S + T
        for t, blk in enumerate(tile_blocks(T)):
            for b in range(4):
                rot = (4 * (t - b)) % 16
                ctl = f"row_ror:{rot}" if rot else "quad_perm:[0,1,2,3]"
                if b == 0:
                    e(f"v_mov_b32_dpp v{S}, v{Db + 4*t + b} {ctl} row_mask:0xf bank_mask:0x{1 << t:x}")
                else:
                    e(f"v_add_f32_dpp v{S}, v{Db + 4*t + b}, v{S} {ctl} row_mask:0xf bank_mask:0x{1 << t:x}")
    NT = 10
    DV = cfg.D_V
    DVE = cfg.D_V_EVEN
    set_parity()
    NVT = NVL // 4
    order = list(range(NVT, NT)) + list(range(NVT))
    vnext = [NVL]
    def v_issue_upto(n):
        while vnext[0] < min(n, NBLK):
            throttle(DV, DVE)
            vload(vnext[0]); vnext[0] += 1
    e(f"v_lshl_add_u32 v{V_FO2}, v{V_LANE}, 4, s48")
    prev = None
    for n, T in enumerate(order):
        bl = tile_blocks(T)
        e.wait_vm(f"K{bl[-1]}")
        for t, blk in enumerate(bl):
            Dd = V_D[n & 1] + 4 * t
            e(f"v_mfma_f32_16x16x32_bf16 v[{Dd}:{Dd+3}], v[{kv(blk)}:{kv(blk)+3}], v[{V_Q}:{V_Q+3}], 0")
        if prev is not None: reduce_tile(prev, (n - 1) & 1)
        if n < cfg.V_EARLY_TILES and T >= NVT:
            for blk in bl:
                if blk == vnext[0]:
                    vload(blk); vnext[0] += 1
        if T < NVT:
            e.wait_vm(f"L{bl[-1]}")
            for blk in bl:
                e(f"ds_read_b128 v[{kv(blk)}:{kv(blk)+3}], v{V_FO2} offset:{blk*1024}")
        prev = T
    reduce_tile(prev, (NT - 1) & 1)
    e(f"v_add_f32 v{V_S+9}, s56, v{V_S+9}")
    ts(e, cfg, 63)
    e(f"v_max3_f32 v{V_M}, v{V_S}, v{V_S+1}, v{V_S+2}")
    for k in range(3, 9, 2):
        e(f"v_max3_f32 v{V_M}, v{V_M}, v{V_S+k}, v{V_S+k+1}")
    e(f"v_max_f32 v{V_M}, v{V_M}, v{V_S+9}")
    allreduce16(e, "v_max_f32", V_M, steps=(4, 8))
    xrow(e, "v_max_f32", V_M, V_T0, 16)
    xrow(e, "v_max_f32", V_M, V_T0, 32)
    e(f"v_mul_f32 v{V_M}, s57, v{V_M}")
    for T in range(NT):
        e(f"v_fma_f32 v{V_S+T}, v{V_S+T}, s57, -v{V_M}")
    for T in range(NT):
        e(f"v_exp_f32 v{V_S+T}, v{V_S+T}")
    v_issue_upto(vnext[0] + 2)
    e(f"v_add_f32 v{V_L}, v{V_S}, v{V_S+1}")
    for T in range(2, NT):
        e(f"v_add_f32 v{V_L}, v{V_L}, v{V_S+T}")
    for g in range(5):
        e(f"v_cvt_pk_bf16_f32 v{V_S+2*g}, v{V_S+2*g}, v{V_S+2*g+1}")
    allreduce16(e, "v_add_f32", V_L, steps=(4, 8))
    xrow(e, "v_add_f32", V_L, V_T0, 16)
    xrow(e, "v_add_f32", V_L, V_T0, 32)
    e(f"""
    s_lshl_b32 s91, s3, 5
    v_lshlrev_b32 v{V_T0}, 3, v{V_LANE}
    v_add_u32 v{V_T0}, s91, v{V_T0}
    s_mov_b64 exec, 0xf
    ds_write_b64 v{V_T0}, v[{V_M}:{V_M+1}] offset:{LDS_MLW}
    s_mov_b64 exec, -1
    """)
    for g in range(5):
        last_blk = tile_blocks(min(2 * g + 1, NT - 1))[-1]
        if last_blk < NVL:
            v_issue_upto(vnext[0] + cfg.V_PER_LDS_GROUP)
            e("s_waitcnt lgkmcnt(0)")
        else:
            v_issue_upto(last_blk + 1 + DV)
            e.wait_vm(f"V{last_blk}")
        X = V_S + 2 * g
        e(f"v_mov_b32 v{V_POP}, v{X}")
        for m in range(1, 4):
            e(f"v_mov_b32_dpp v{V_POP+m}, v{X} row_shl:{4*m} row_mask:0xf bank_mask:0xf")
        for j in range(4):
            st = V_STG + 8 * (j & 1)
            for m in range(4):
                x = kv(8 * g + m) + j
                yb = 8 * g + 4 + m
                y = (kv(yb) if yb < NBLK else kv(8 * g + m)) + j
                e(f"v_perm_b32 v{st + m}, v{y}, v{x}, s94")
                e(f"v_perm_b32 v{st + 4 + m}, v{y}, v{x}, s95")
            for q in range(2):
                O = V_O + 4 * (2 * j + q)
                C = "0" if g == 0 else f"v[{O}:{O+3}]"
                e(f"v_mfma_f32_16x16x32_bf16 v[{O}:{O+3}], v[{V_POP}:{V_POP+3}], v[{st+4*q}:{st+4*q+3}], {C}")
    ts(e, cfg, 64)
    e(f"""
    s_lshl_b32 s91, s3, 11
    v_lshlrev_b32 v{V_T0}, 5, v{V_LANE}
    v_add_u32 v{V_T0}, s91, v{V_T0}
    v_add_u32 v{V_T1}, 1024, v{V_T0}
    s_mov_b64 exec, 0xffff
    """)
    for u in range(4):
        for r in range(4):
            a = V_T0 if r < 2 else V_T1
            o0 = (r & 1) * 128 + 2 * u
            e(f"ds_write2_b32 v{a}, v{V_O + 4*(2*u) + r}, v{V_O + 4*(2*u+1) + r} offset0:{o0} offset1:{o0+1}")
    e("s_mov_b64 exec, -1")
    A0, A1, AM, AP = 24, 25, 26, 27
    e(f"""
    v_lshrrev_b32 v{A1}, 2, v{V_LANE}
    s_lshl_b32 s91, s3, 4
    v_add_u32 v{A1}, s91, v{A1}
    v_lshlrev_b32 v{A1}, 4, v{A1}
    v_and_b32 v{AM}, 3, v{V_LANE}
    v_lshlrev_b32 v{A0}, 12, v{AM}
    v_add_u32 v{A0}, v{A0}, v{A1}
    v_cmp_eq_u32 vcc, 0, v{AM}
    v_mov_b32 v{AP}, {OOB}
    v_cndmask_b32 v{AP}, v{AP}, v{A1}, vcc
    s_lshr_b32 s91, s3, 1
    s_lshl_b32 s91, s91, 3
    v_lshlrev_b32 v{AM}, 6, v{AM}
    v_add_u32 v{AM}, s91, v{AM}
    v_cmp_eq_u32 vcc, 0, v{V_LANE}
    v_mov_b32 v{A1}, {OOB}
    s_lshl_b32 s91, s91, 1
    v_mov_b32 v28, s91
    v_cndmask_b32 v{A1}, v{A1}, v28, vcc
    s_waitcnt lgkmcnt(0)
    s_barrier
    ds_read_b64 v[30:31], v{AM} offset:{LDS_MLW}
    ds_read_b64 v[32:33], v{AM} offset:{LDS_MLW+32}
    ds_read_b128 v[36:39], v{A0}
    ds_read_b128 v[40:43], v{A0} offset:2048
    s_waitcnt lgkmcnt(2)
    v_max_f32 v34, v30, v32
    v_max_f32_dpp v34, v34, v34 quad_perm:[1,0,3,2] row_mask:0xf bank_mask:0xf
    v_max_f32_dpp v34, v34, v34 quad_perm:[2,3,0,1] row_mask:0xf bank_mask:0xf
    """)
    tag(e, 34)
    e(f"""
    v_sub_f32 v30, v30, v34
    v_sub_f32 v32, v32, v34
    v_exp_f32 v30, v30
    v_exp_f32 v32, v32
    v_mul_f32 v35, v30, v31
    v_fmac_f32 v35, v32, v33
    s_waitcnt lgkmcnt(0)
    """)
    for r in range(4):
        e(f"v_mul_f32 v{36+r}, v30, v{36+r}")
    for r in range(4):
        e(f"v_fmac_f32 v{36+r}, v32, v{40+r}")
    for qp in ("[1,0,3,2]", "[2,3,0,1]"):
        for r in (36, 37, 38, 39, 35):
            e(f"v_add_f32_dpp v{r}, v{r}, v{r} quad_perm:{qp} row_mask:0xf bank_mask:0xf")
    for r in (36, 37, 38, 39, 35):
        tag(e, r)
    e.vmem(f"buffer_store_dwordx4 v[36:39], v{AP}, s[44:47], s58 offen sc1", "PS")
    e("v_mov_b32 v32, v34\nv_mov_b32 v33, v35\nv_mov_b32 v30, v34\nv_mov_b32 v31, v35")
    e.vmem(f"buffer_store_dwordx4 v[30:33], v{A1}, s[44:47], s59 offen sc1", "MS")
    ts(e, cfg, 65)
    if getattr(cfg, "DBGT", 0):
        lab = e.label("L_dbgt")
        e(f"""
        s_cmp_lg_u32 s3, 0
        s_cbranch_scc1 {lab}
        s_cmp_lg_u32 s81, 31
        s_cbranch_scc1 {lab}
        s_waitcnt vmcnt(0)
        s_memrealtime s[96:97]
        s_waitcnt lgkmcnt(0)
        s_sub_u32 s96, s96, s101
        v_mov_b32 v4, s96
        s_add_u32 s91, s80, 6
        s_lshl_b32 s91, s91, 2
        v_mov_b32 v5, s91
        s_mov_b32 s48, s32
        s_mov_b32 s49, s33
        s_mov_b32 s50, 256
        s_mov_b32 s51, 0x20000
        s_mov_b64 exec, 1
        buffer_store_dword v4, v5, s[48:51], 0 offen sc1
        {lab}:
        """)
    if cfg.TS:
        e.wait_vm_all()
        ts(e, cfg, 66)
        e(f"""
        s_lshl_b32 s91, s2, 3
        s_add_u32 s91, s91, s3
        s_lshl_b32 s91, s91, 5
        s_add_u32 s91, s91, {WS_TS}
        v_mov_b32 v6, {OOB}
        v_cmp_eq_u32 vcc, 0, v{V_LANE}
        v_cndmask_b32 v6, v6, 0, vcc
        """)
        for k in range(7): e(f"v_mov_b32 v{36+k}, s{60+k}")
        e("v_mov_b32 v43, s89")
        e("buffer_store_dwordx4 v[36:39], v6, s[44:47], s91 offen")
        e("buffer_store_dwordx4 v[40:43], v6, s[44:47], s91 offen offset:16")
    e("s_endpgm")
```

```python
from kern import *

S_WS, S_DBG, S_X, S_C, S_WMOD, S_WQ, S_WO, S_WG, S_WU, S_WD, S_OUT = 36, 40, 44, 48, 52, 56, 4, 64, 68, 72, 84
L_SVA  = 0
L_CNT  = 1024
L_STAT = 2048
L_STA2 = 2176
L_RA1  = 2304
L_RQ   = 4352
L_RB   = 8448
L_RP1  = 10496
L_RGU  = 18688
L_X1   = 22784
L_WL   = 24832
L_STG  = 24832 + 4096
SVC_LDS = L_STG + 8 * 16384

V_LANE, V_TAU2, V_N = 1, 2, 3
T0, T1, T2, T3 = 4, 5, 6, 7
V_A = 8
P_WLW1, P_WH2, P_COL4, P_COLF4 = 12, 13, 14, 15
P_GA, P_CB1, P_SB, P_X, P_GB = 16, 17, 18, 19, 20
P_PV, P_MV, P_XV, P_FV, P_A64R, P_A128R, P_OUTV = 21, 22, 23, 24, 25, 26, 27
SC = 28
W0, W1, W2, W3, W4 = 96, 128, 160, 192, 224

def unit64_voff(e, dst, stride_bytes, t0, t1):
    e(f"""
    v_lshrrev_b32 v{t0}, 4, v{V_LANE}
    v_lshlrev_b32 v{t0}, 3, v{t0}
    v_bfe_u32 v{t1}, v{V_LANE}, 3, 1
    v_lshlrev_b32 v{t1}, 5, v{t1}
    v_add_u32 v{t0}, v{t0}, v{t1}
    v_mul_u32_u24 v{t0}, {stride_bytes}, v{t0}
    v_and_b32 v{t1}, 7, v{V_LANE}
    v_lshlrev_b32 v{t1}, 4, v{t1}
    v_add_u32 v{dst}, v{t0}, v{t1}
    """)

def unit128_voff(e, dst, stride_bytes, t0, t1):
    e(f"""
    v_lshrrev_b32 v{t0}, 4, v{V_LANE}
    v_mul_u32_u24 v{t0}, {8*stride_bytes}, v{t0}
    v_and_b32 v{t1}, 15, v{V_LANE}
    v_lshlrev_b32 v{t1}, 4, v{t1}
    v_add_u32 v{dst}, v{t0}, v{t1}
    """)

class Stream:
    def __init__(self, e, depth): self.e, self.d = e, depth
    def load(self, dst, voff, srdq, sbase, byte_off, tag):
        e = self.e
        e.wait_vm_n(self.d - 1)
        if byte_off < 4096:
            e.vmem(f"buffer_load_dwordx4 v[{dst}:{dst+3}], v{voff}, s[{srdq}:{srdq+3}], {sbase} offen offset:{byte_off} nt", tag)
        else:
            e(f"s_add_u32 s93, {sbase}, {byte_off}")
            e.vmem(f"buffer_load_dwordx4 v[{dst}:{dst+3}], v{voff}, s[{srdq}:{srdq+3}], s93 offen nt", tag)

def zsum64(e, D, Z):
    for t in range(8):
        e(f"v_add_f32_dpp v{Z+t}, v{D+4*t+1}, v{D+4*t} row_shl:8 row_mask:0xf bank_mask:0xf")

def rs4(e, a):
    e(f"v_permlane32_swap_b32 v{a}, v{a+1}")
    e(f"v_permlane32_swap_b32 v{a+2}, v{a+3}")
    e(f"v_add_f32 v{a}, v{a}, v{a+1}")
    e(f"v_add_f32 v{a+2}, v{a+2}, v{a+3}")
    e(f"v_permlane16_swap_b32 v{a}, v{a+2}")
    e(f"v_add_f32 v{a}, v{a}, v{a+2}")

def store_mode(e, text):
    lf = e.label("L_fast"); le = e.label("L_stend")
    e(f"s_cmp_eq_u32 s98, 1\ns_cbranch_scc1 {lf}")
    e(text.format(pol="sc1"))
    e(f"s_branch {le}\n{lf}:")
    e(text.format(pol=""))
    e(f"{le}:")
    e.vm.append("st")

def sts(e, cfg, k):
    if cfg.TS:
        e(f"s_memrealtime s[96:97]\ns_waitcnt lgkmcnt(0)\nv_writelane_b32 v0, s96, {k}")

def silu(e, dst, src, t):
    e(f"""
    v_mul_f32 v{t}, {f32(-LOG2E)}, v{src}
    v_exp_f32 v{t}, v{t}
    v_add_f32 v{t}, 1.0, v{t}
    v_rcp_f32 v{t}, v{t}
    v_mul_f32 v{dst}, v{src}, v{t}
    """)

DBG_OFF = [0]
def persist_setup(e, cfg):
    DBG_OFF[0] = 128 if getattr(cfg, 'DBGT', 0) else 0
    WS = f"s[{S_WS}:{S_WS+3}]"
    e(f"""
    v_lshrrev_b32 v{T0}, 4, v{V_LANE}
    v_and_b32 v{T1}, 1, v{T0}
    v_lshlrev_b32 v{T1}, 1, v{T1}
    v_lshrrev_b32 v{T2}, 1, v{T0}
    v_or_b32 v{T2}, v{T2}, v{T1}
    s_lshl_b32 s16, s3, 9
    s_add_u32 s16, s16, {L_WL}
    v_lshlrev_b32 v{P_A128R}, 4, v{T0}
    v_add_u32 v{P_A128R}, s16, v{P_A128R}
    v_and_b32 v{P_A64R}, 1, v{V_LANE}
    v_lshlrev_b32 v{P_A64R}, 6, v{P_A64R}
    v_add3_u32 v{P_A64R}, v{P_A64R}, v{P_A128R}, 0
    v_and_b32 v{T1}, 7, v{V_LANE}
    v_lshl_add_u32 v{T1}, v{T1}, 2, v{T2}
    v_lshlrev_b32 v{T1}, 1, v{T1}
    v_add_u32 v{P_WLW1}, s16, v{T1}
    v_and_b32 v{T1}, 15, v{V_LANE}
    v_lshl_add_u32 v{T1}, v{T1}, 2, v{T2}
    v_lshlrev_b32 v{T3}, 1, v{T1}
    v_add_u32 v{P_WH2}, s16, v{T3}
    s_lshl_b32 s91, s3, 6
    v_add_u32 v{T1}, s91, v{T1}
    v_lshlrev_b32 v{P_COL4}, 2, v{T1}
    v_lshlrev_b32 v{T3}, 1, v{T1}
    v_and_b32 v{T1}, 3, v{V_LANE}
    v_lshl_add_u32 v{T1}, v{T1}, 2, v{T2}
    s_lshl_b32 s91, s81, 4
    v_add_u32 v{T1}, s91, v{T1}
    v_lshlrev_b32 v{P_COLF4}, 2, v{T1}
    v_lshlrev_b32 v{T1}, 1, v{T1}
    v_and_b32 v{T0}, 12, v{V_LANE}
    v_cmp_eq_u32 vcc, 0, v{T0}
    v_mov_b32 v{P_OUTV}, {OOB}
    v_cndmask_b32 v{P_OUTV}, v{P_OUTV}, v{T1}, vcc
    s_mov_b32 s8, {WS_MODB}
    s_mov_b32 s9, {WS_MODB + 4096}
    v_mov_b32 v2, v{T3}
    v_and_b32 v92, 31, v{V_LANE}
    v_lshlrev_b32 v92, 2, v92
    """)

def modb_loads(e, track):
    WS = f"s[{S_WS}:{S_WS+3}]"
    L = [f"buffer_load_dword v{P_GA}, v{P_COL4}, {WS}, s8 offen sc1",
         f"buffer_load_dword v{P_SB}, v{P_COL4}, {WS}, s8 offen offset:2048 sc1",
         f"buffer_load_dword v{P_CB1}, v{P_COL4}, {WS}, s9 offen sc1",
         f"buffer_load_dword v{P_GB}, v{P_COLF4}, {WS}, s9 offen offset:2048 sc1",
         f"buffer_load_ushort v{P_X}, v2, s[{S_X}:{S_X+3}], 0 offen",
         f"buffer_load_dword v3, v92, s[{S_DBG}:{S_DBG+3}], 0 offen offset:{DBG_OFF[0]} sc1"]
    for k, t in enumerate(L):
        if track: e.vmem(t, f"MB{k}")
        else: e(t)

def counter_last(e, off, n, lab):
    e(f"""
    s_mov_b64 exec, 1
    v_mov_b32 v{T1}, {L_CNT + off}
    v_mov_b32 v{T2}, 1
    s_waitcnt lgkmcnt(0)
    ds_add_rtn_u32 v{T3}, v{T1}, v{T2}
    s_waitcnt lgkmcnt(0)
    v_readfirstlane_b32 s91, v{T3}
    s_mov_b64 exec, -1
    s_cmp_lg_u32 s91, {n}
    s_cbranch_scc1 {lab}
    """)

def service(e, cfg):
    D = cfg.D_SVC
    WS = f"s[{S_WS}:{S_WS+3}]"
    Z = 76
    pend = []
    def pump(upto_tag):
        while True:
            tag_, fn = pend.pop(0)
            e.wait_vm_n(D - 1)
            fn()
            if tag_ == upto_tag: break
    def rload(dst, voff, srdq, sbase, byte_off, tag_):
        def fn():
            if byte_off < 4096:
                e.vmem(f"buffer_load_dwordx4 v[{dst}:{dst+3}], v{voff}, s[{srdq}:{srdq+3}], {sbase} offen offset:{byte_off} nt", tag_)
            else:
                e(f"s_add_u32 s93, {sbase}, {byte_off}")
                e.vmem(f"buffer_load_dwordx4 v[{dst}:{dst+3}], v{voff}, s[{srdq}:{srdq+3}], s93 offen nt", tag_)
        pend.append((tag_, fn))
    def dma(voff, srdq, sbase, byte_off, lds_off, tag_):
        def fn():
            e(f"s_add_u32 s93, {sbase}, {byte_off}\ns_add_u32 s92, s63, {lds_off}\ns_mov_b32 m0, s92\ns_nop 0")
            e.vmem(f"buffer_load_dwordx4 v{voff}, s[{srdq}:{srdq+3}], s93 offen nt lds", tag_)
        pend.append((tag_, fn))
    e(f"""
    v_mov_b32 v4, {L_CNT}
    v_mov_b32 v6, 0
    v_mov_b32 v7, 0
    ds_write_b64 v4, v[6:7]
    ds_write_b64 v4, v[6:7] offset:8
    s_waitcnt lgkmcnt(0)
    """)
    tag_setup(e)
    e("s_barrier")
    e(f"s_mov_b32 s99, {cfg.SPIN}")
    srd(e, S_C, 26, 27, 1024)
    srd(e, S_WMOD, 28, 29, 512 * 3072 * 2)
    srd(e, S_WS, 34, 35, WS_SIZE)
    srd(e, S_X, 8, 9, 1024)
    srd(e, S_WQ, 14, 15, 512 * 4096 * 2)
    sts(e, cfg, 0)
    e(f"""
    s_and_b32 s83, s81, 15
    s_lshr_b32 s60, s81, 4
    s_lshl_b32 s88, s60, 12
    s_lshl_b32 s89, s83, 8
    s_add_u32 s88, s88, s89
    s_lshl_b32 s82, s3, 9
    s_add_u32 s82, s82, {L_WL}
    s_mov_b32 s94, 0x05040100
    s_mov_b32 s95, 0x07060302
    """)
    lab_noa1 = e.label("L_noa1i")
    e(f"s_cmp_ge_u32 s3, 4\ns_cbranch_scc1 {lab_noa1}")
    e(f"""
    s_lshl_b32 s61, s60, 8
    s_lshl_b32 s62, s3, 6
    s_add_u32 s61, s61, s62
    v_lshlrev_b32 v{T0}, 1, v{V_LANE}
    s_lshl_b32 s91, s61, 1
    buffer_load_ushort v22, v{T0}, s[{S_C}:{S_C+3}], s91 offen
    """)
    unit64_voff(e, 18, 6144, T1, T2)
    e(f"""
    s_mul_i32 s63, s61, 6144
    s_lshl_b32 s62, s83, 7
    s_add_u32 s63, s63, s62
    """)
    AR = 96
    for ee in range(8):
        if ee: e(f"s_add_u32 s63, s63, 6144")
        e(f"buffer_load_dwordx4 v[{AR+4*ee}:{AR+4*ee+3}], v18, s[{S_WMOD}:{S_WMOD+3}], s63 offen nt")
    sts(e, cfg, 16)
    e(f"{lab_noa1}:")
    sts(e, cfg, 18)
    c, x, XA = 16, 17, 32
    V_OQ, V_OB, V_OG, V_ODN, V_OW, FO = 18, 19, 21, 23, 24, 20
    e(f"""
    v_lshlrev_b32 v{T3}, 4, v{V_LANE}
    s_lshl_b32 s91, s3, 7
    v_lshlrev_b32 v{V_TAU2}, 1, v{V_LANE}
    v_add_u32 v{V_TAU2}, s91, v{V_TAU2}
    """)
    unit128_voff(e, V_OQ, 8192, T0, T1)
    e(f"""
    s_lshl_b32 s90, s3, 19
    s_lshl_b32 s91, s81, 8
    s_add_u32 s90, s90, s91
    """)
    e.vmem(f"buffer_load_dwordx4 v[{XA}:{XA+3}], v{T3}, s[{S_X}:{S_X+3}], 0 offen", "xa")
    e.vmem(f"buffer_load_ushort v{x}, v{V_TAU2}, s[{S_X}:{S_X+3}], 0 offen", "x")
    e.vmem(f"buffer_load_ushort v{c}, v{V_TAU2}, s[{S_C}:{S_C+3}], 0 offen", "c")
    for i in range(16):
        ks, ee = divmod(i, 8)
        rload(W3 + 4 * i, V_OQ, S_WQ, "s90", (32 * ks + ee) * 8192, f"wq{i}")
    pump("wq3")
    sts(e, cfg, 14)
    lab = e.label("L_a1done")
    e(f"s_cmp_ge_u32 s3, 4\ns_cbranch_scc1 {lab}")
    e("s_waitcnt vmcnt(7)")
    sts(e, cfg, 17)
    e("v_lshlrev_b32 v22, 16, v22")
    silu(e, 22, 22, T1)
    e(f"""
    v_cvt_pk_bf16_f32 v22, v22, v22
    v_lshl_add_u32 v{T0}, v{V_LANE}, 1, s82
    ds_write_b16 v{T0}, v22
    v_and_b32 v{T1}, 1, v{V_LANE}
    v_lshlrev_b32 v{T1}, 6, v{T1}
    v_lshrrev_b32 v{T2}, 4, v{V_LANE}
    v_lshl_add_u32 v{T1}, v{T2}, 4, v{T1}
    v_add_u32 v{T1}, s82, v{T1}
    ds_read_b128 v[{V_A}:{V_A+3}], v{T1}
    """)
    TB, DA = 44, 128
    transpose_unit(e, AR, TB)
    e("s_waitcnt lgkmcnt(0)")
    for t in range(8):
        e(f"v_mfma_f32_16x16x32_bf16 v[{DA+4*t}:{DA+4*t+3}], v[{V_A}:{V_A+3}], v[{TB+4*t}:{TB+4*t+3}], 0")
    zsum64(e, DA, Z)
    e(f"""
    s_lshl_b32 s91, s3, 8
    v_lshlrev_b32 v{T0}, 5, v{V_LANE}
    v_add_u32 v{T0}, s91, v{T0}
    s_mov_b64 exec, 0xff
    ds_write_b128 v{T0}, v[{Z}:{Z+3}] offset:{L_RA1}
    ds_write_b128 v{T0}, v[{Z+4}:{Z+7}] offset:{L_RA1+16}
    """)
    counter_last(e, 0, 3, lab)
    e(f"v_lshlrev_b32 v{T0}, 2, v{V_LANE}")
    for v in range(4):
        e(f"ds_read_b32 v{Z+v}, v{T0} offset:{L_RA1 + 256*v}")
    e("s_waitcnt lgkmcnt(0)")
    tag_finish(e)
    e(f"""
    v_add_f32 v{Z}, v{Z}, v{Z+1}
    v_add_f32 v{Z+2}, v{Z+2}, v{Z+3}
    v_add_f32 v{Z}, v{Z}, v{Z+2}
    """)
    tag(e, Z)
    e(f"buffer_store_dword v{Z}, v{T0}, {WS}, s88 offen sc1")
    e(f"s_sub_u32 s{S_TAU}, s{S_TAU}, 1")
    sts(e, cfg, 1)
    e(f"{lab}:")
    pump("wq7")
    srd(e, S_DBG, 32, 33, 256)
    srd(e, S_WO, 16, 17, 4096 * 512 * 2)
    srd(e, S_WG, 20, 21, 512 * 1792 * 2)
    srd(e, S_WU, 22, 23, 512 * 1792 * 2)
    srd(e, S_WD, 24, 25, 1792 * 512 * 2)
    srd(e, S_OUT, 30, 31, 1024)
    e("s_waitcnt lgkmcnt(0)")
    tag_finish(e)
    lab = e.label("L_xcc")
    e(f"""
    s_cmp_lg_u32 s3, 0
    s_cbranch_scc1 {lab}
    s_getreg_b32 s91, hwreg(HW_REG_XCC_ID)
    s_and_b32 s91, s91, 15
    s_add_u32 s91, s91, 1
    v_mov_b32 v{T1}, s91
    s_lshl_b32 s92, s81, 2
    v_mov_b32 v{T2}, s92
    s_mov_b64 exec, 1
    buffer_store_dword v{T1}, v{T2}, s[{S_DBG}:{S_DBG+3}], 0 offen offset:{128 if getattr(cfg, "DBGT", 0) else 0} sc1
    s_mov_b64 exec, -1
    {lab}:
    """)
    e.wait_vm("c")
    U = 36
    for k in range(4):
        e(f"v_lshlrev_b32 v{U+2*k}, 16, v{XA+k}\nv_and_b32 v{U+2*k+1}, 0xffff0000, v{XA+k}")
    e(f"v_add_f32 v{V_A}, v{U}, v{U+1}\nv_mul_f32 v{V_A+1}, v{U}, v{U}\nv_fmac_f32 v{V_A+1}, v{U+1}, v{U+1}")
    for k in range(2, 8):
        e(f"v_add_f32 v{V_A}, v{V_A}, v{U+k}\nv_fmac_f32 v{V_A+1}, v{U+k}, v{U+k}")
    e(f"v_permlane32_swap_b32 v{V_A}, v{V_A+1}\nv_add_f32 v{V_A}, v{V_A}, v{V_A+1}")
    xrow(e, "v_add_f32", V_A, T0, 16)
    allreduce16(e, "v_add_f32", V_A)
    e(f"""
    v_lshlrev_b32 v{c}, 16, v{c}
    v_lshlrev_b32 v{x}, 16, v{x}
    v_readlane_b32 s91, v{V_A}, 0
    v_readlane_b32 s92, v{V_A}, 32
    """)
    silu(e, c, c, T0)
    e(f"""
    v_mov_b32 v{T0}, {f32(1/512)}
    v_mul_f32 v{T1}, s91, v{T0}
    v_mul_f32 v{T2}, s92, v{T0}
    v_fma_f32 v{T2}, -v{T1}, v{T1}, v{T2}
    v_add_f32 v{T2}, {f32(1e-5)}, v{T2}
    v_rsq_f32 v{T2}, v{T2}
    v_sub_f32 v{V_N}, v{x}, v{T1}
    v_mul_f32 v{V_N}, v{V_N}, v{T2}
    v_cvt_pk_bf16_f32 v{c}, v{c}, v{c}
    v_lshl_add_u32 v{T0}, v{V_LANE}, 1, s82
    ds_write_b16 v{T0}, v{c} offset:128
    """)
    pump("wq15")
    sts(e, cfg, 15)
    e(f"v_lshlrev_b32 v{FO}, 1, v{V_TAU2}\ns_mov_b32 s89, 4096")
    def moda_loads(track):
        for k, (so, im) in enumerate((("0", 0), ("s89", 0), ("0", 2048), ("s89", 2048))):
            t = f"buffer_load_dword v{Z+k}, v{FO}, {WS}, {so} offen offset:{im} sc1"
            if track: e.vmem(t, f"MA{k}")
            else: e(t)
    e.wait_vm_n(D - 4)
    moda_loads(True)
    unit64_voff(e, V_OB, 6144, T0, T1)
    unit64_voff(e, V_OG, 3584, T0, T1)
    unit64_voff(e, V_ODN, 1024, T0, T1)
    unit128_voff(e, V_OW, 1024, T0, T1)
    e(f"""
    s_mul_i32 s90, s3, {64*6144}
    s_lshl_b32 s91, s81, 7
    s_add_u32 s90, s90, s91
    s_add_u32 s90, s90, 2048
    s_mul_i32 s61, s3, {64*3584}
    s_add_u32 s61, s61, s91
    s_lshl_b32 s62, s81, 16
    s_lshl_b32 s91, s3, 7
    s_add_u32 s62, s62, s91
    s_cmp_lt_u32 s81, 28
    s_cselect_b32 s61, s61, {OOB}
    s_cselect_b32 s62, s62, {OOB}
    s_lshr_b32 s60, s81, 1
    s_lshl_b32 s10, s60, 8
    s_lshl_b32 s63, s3, 5
    s_add_u32 s10, s10, s63
    s_lshl_b32 s10, s10, 10
    s_and_b32 s11, s81, 1
    s_lshl_b32 s63, s11, 9
    s_add_u32 s10, s10, s63
    s_mul_i32 s63, s3, 16384
    s_add_u32 s63, s63, {L_STG}
    """)
    if getattr(cfg, "NOBULK", 0):
        e(f"s_mov_b32 s61, {OOB}\ns_mov_b32 s62, {OOB}\ns_mov_b32 s10, {OOB}")
    for ee in range(8): rload(W1 + 4 * ee, V_OB, S_WMOD, "s90", ee * 6144, f"wb{ee}")
    for ee in range(8):
        for cb in range(2): rload(W2 + 32 * cb + 4 * ee, V_OW, S_WO, "s10", cb * 256 + ee * 1024, f"wo{cb}_{ee}")
    for ee in range(8): rload(W4 + 4 * ee, V_OG, S_WG, "s61", ee * 3584, f"wg{ee}")
    for ee in range(8): dma(V_OG, S_WU, "s61", ee * 3584, ee * 1024, f"wu{ee}")
    for ee in range(8): dma(V_ODN, S_WD, "s62", ee * 1024, 8192 + ee * 1024, f"wd{ee}")
    e.wait_vm("wq7")
    transpose_unit(e, W3, W2)
    pump("wb2")
    e.wait_vm("wq15")
    sts(e, cfg, 19)
    transpose_unit(e, W4, W3)
    e.wait_vm("MA3")
    sp = e.label("L_moda"); ok = e.label("L_modaok")
    check(e, T1, range(Z, Z + 4))
    e(f"s_cbranch_vccz {ok}\n{sp}:\ns_sleep 2")
    moda_loads(False)
    e("s_waitcnt vmcnt(0)")
    check(e, T1, range(Z, Z + 4))
    e(f"s_cbranch_vccz {ok}")
    spin_guard(e, sp)
    e(f"{ok}:")
    sts(e, cfg, 13)
    e(f"""
    v_add_f32 v{Z}, v{Z}, v{Z+1}
    v_add_f32 v{Z+2}, v{Z+2}, v{Z+3}
    v_add_f32 v{Z+2}, 1.0, v{Z+2}
    v_fma_f32 v{Z}, v{V_N}, v{Z+2}, v{Z}
    v_cvt_pk_bf16_f32 v{Z}, v{Z}, v{Z}
    v_lshl_add_u32 v{T0}, v{V_LANE}, 1, s82
    ds_write_b16 v{T0}, v{Z}
    v_lshrrev_b32 v{T0}, 4, v{V_LANE}
    v_lshl_add_u32 v{T0}, v{T0}, 4, s82
    ds_read_b128 v[{V_A}:{V_A+3}], v{T0}
    ds_read_b128 v[{V_A+4}:{V_A+7}], v{T0} offset:64
    s_waitcnt lgkmcnt(0)
    """)
    DQ = 44
    for t in range(8):
        e(f"v_mfma_f32_16x16x32_bf16 v[{DQ+4*t}:{DQ+4*t+3}], v[{V_A}:{V_A+3}], v[{W2+4*t}:{W2+4*t+3}], 0")
    for t in range(8):
        e(f"v_mfma_f32_16x16x32_bf16 v[{DQ+4*t}:{DQ+4*t+3}], v[{V_A+4}:{V_A+7}], v[{W3+4*t}:{W3+4*t+3}], v[{DQ+4*t}:{DQ+4*t+3}]")
    pump("wb5")
    e(f"""
    s_lshl_b32 s91, s3, 9
    s_add_u32 s91, s91, {L_RQ}
    v_lshlrev_b32 v{T0}, 5, v{V_LANE}
    v_add_u32 v{T0}, s91, v{T0}
    s_mov_b64 exec, 0xffff
    """)
    for u in range(4):
        e(f"ds_write2_b32 v{T0}, v{DQ+8*u}, v{DQ+8*u+4} offset0:{2*u} offset1:{2*u+1}")
    lab = e.label("L_qpub")
    counter_last(e, 4, 7, lab)
    e(f"v_lshlrev_b32 v{T0}, 3, v{V_LANE}")
    for v in range(8):
        e(f"ds_read_b64 v[{Z+2*v}:{Z+2*v+1}], v{T0} offset:{L_RQ + 512*v}")
    e("s_waitcnt lgkmcnt(0)")
    e(f"v_add_f32 v{Z}, v{Z}, v{Z+2}\nv_add_f32 v{Z+1}, v{Z+1}, v{Z+3}")
    for v in range(2, 8):
        e(f"v_add_f32 v{Z}, v{Z}, v{Z+2*v}\nv_add_f32 v{Z+1}, v{Z+1}, v{Z+2*v+1}")
    tag(e, Z); tag(e, Z + 1)
    e(f"""
    s_lshl_b32 s91, s81, 9
    s_add_u32 s91, s91, {WS_Q}
    buffer_store_dwordx2 v[{Z}:{Z+1}], v{T0}, {WS}, s91 offen sc1
    {lab}:
    """)
    sts(e, cfg, 3)
    persist_setup(e, cfg)
    pump("wo0_3")
    e.wait_vm("wb7")
    transpose_unit(e, W1, W0)
    e(f"""
    ds_read_b128 v[{V_A}:{V_A+3}], v{P_A64R} offset:128
    s_waitcnt lgkmcnt(0)
    """)
    DB = 44
    for t in range(8):
        e(f"v_mfma_f32_16x16x32_bf16 v[{DB+4*t}:{DB+4*t+3}], v[{V_A}:{V_A+3}], v[{W0+4*t}:{W0+4*t+3}], 0")
    pump("wo0_5")
    zsum64(e, DB, Z)
    e(f"""
    s_lshl_b32 s91, s3, 8
    v_lshlrev_b32 v{T0}, 5, v{V_LANE}
    v_add_u32 v{T0}, s91, v{T0}
    s_mov_b64 exec, 0xff
    ds_write_b128 v{T0}, v[{Z}:{Z+3}] offset:{L_RB}
    ds_write_b128 v{T0}, v[{Z+4}:{Z+7}] offset:{L_RB+16}
    """)
    lab = e.label("L_bpub")
    counter_last(e, 8, 7, lab)
    e(f"v_lshlrev_b32 v{T0}, 2, v{V_LANE}")
    for v in range(8):
        e(f"ds_read_b32 v{Z+v}, v{T0} offset:{L_RB + 256*v}")
    e("s_waitcnt lgkmcnt(0)")
    e(f"v_add_f32 v{Z}, v{Z}, v{Z+1}")
    for v in range(2, 8): e(f"v_add_f32 v{Z}, v{Z}, v{Z+v}")
    tag(e, Z)
    e(f"""
    s_lshl_b32 s91, s81, 8
    s_add_u32 s91, s91, {WS_MODB}
    buffer_store_dword v{Z}, v{T0}, {WS}, s91 offen sc1
    {lab}:
    """)
    UR = 44
    pump("wg6")
    e.wait_vm("wo1_7")
    transpose_unit(e, W2, W0)
    transpose_unit(e, W3, W1)
    pump("wu6")
    e.wait_vm("wg7")
    transpose_unit(e, W4, W2)
    pump("wd6")
    e(f"v_lshl_add_u32 v{T0}, v{V_LANE}, 4, s63")
    e.wait_vm("wu7")
    for ee in range(8): e(f"ds_read_b128 v[{UR+4*ee}:{UR+4*ee+3}], v{T0} offset:{ee*1024}")
    pump("wd7")
    e.wait_vm_n(2)
    modb_loads(e, True)
    e("s_waitcnt lgkmcnt(0)")
    transpose_unit(e, UR, W3)
    e.wait_vm("wd7")
    for ee in range(8): e(f"ds_read_b128 v[{UR+4*ee}:{UR+4*ee+3}], v{T0} offset:{8192 + ee*1024}")
    e("s_waitcnt lgkmcnt(0)")
    transpose_unit(e, UR, W4)
    e("s_mov_b32 s61, s11")
    sts(e, cfg, 4)
    post_chain(e, cfg)
    yield "done"

def post_chain(e, cfg):
    Z = 76
    WS = f"s[{S_WS}:{S_WS+3}]"
    sp = e.label("L_modb"); ok = e.label("L_modbok")
    e.wait_vm("MB5")
    check(e, T0, [P_GA, P_SB, P_CB1, P_GB])
    e(f"v_cmp_eq_u32 s[82:83], 0, v3\ns_or_b64 vcc, vcc, s[82:83]\ns_cbranch_vccz {ok}\n{sp}:\ns_sleep 2")
    modb_loads(e, False)
    e("s_waitcnt vmcnt(0)")
    check(e, T0, [P_GA, P_SB, P_CB1, P_GB])
    e(f"v_cmp_eq_u32 s[82:83], 0, v3\ns_or_b64 vcc, vcc, s[82:83]\ns_cbranch_vccz {ok}")
    spin_guard(e, sp)
    e(f"{ok}:")
    e.vm = []
    e(f"""
    v_readfirstlane_b32 s91, v3
    s_nop 1
    v_cmp_ne_u32 vcc, s91, v3
    s_nop 1
    s_cmp_eq_u64 vcc, 0
    s_cselect_b32 s98, {0 if cfg.FORCE_SLOW else 1}, 0
    """)
    e(f"v_add_f32 v{P_CB1}, 1.0, v{P_CB1}\nv_lshlrev_b32 v{P_X}, 16, v{P_X}")
    e(f"""
    s_lshr_b32 s62, s60, 1
    s_mul_i32 s62, s62, 112
    s_and_b32 s63, s60, 1
    s_lshl_b32 s63, s63, 1
    s_add_u32 s62, s62, s63
    s_lshr_b32 s63, s3, 2
    s_add_u32 s62, s62, s63
    s_lshl_b32 s88, s62, 4
    s_add_u32 s88, s88, {WS_ML}
    s_lshl_b32 s62, s62, 9
    s_and_b32 s63, s3, 3
    s_lshl_b32 s63, s63, 7
    s_add_u32 s62, s62, s63
    s_add_u32 s62, s62, {WS_PART}
    s_add_u32 s63, s62, 16384
    s_add_u32 s89, s62, 32768
    s_add_u32 s90, s62, 49152
    v_lshrrev_b32 v{T0}, 3, v{V_LANE}
    v_and_b32 v{T1}, 7, v{V_LANE}
    v_lshlrev_b32 v{T1}, 4, v{T1}
    v_lshl_add_u32 v{P_PV}, v{T0}, 11, v{T1}
    v_lshlrev_b32 v{P_MV}, 6, v{T0}
    v_lshrrev_b32 v{T0}, 4, v{V_LANE}
    v_and_b32 v{T1}, 15, v{V_LANE}
    v_lshlrev_b32 v{T1}, 4, v{T1}
    v_lshl_add_u32 v{P_XV}, v{T0}, 11, v{T1}
    s_lshl_b32 s91, s3, 8
    v_add_u32 v{P_XV}, s91, v{P_XV}
    v_lshrrev_b32 v{T0}, 2, v{V_LANE}
    v_and_b32 v{T1}, 3, v{V_LANE}
    v_lshlrev_b32 v{T1}, 4, v{T1}
    s_lshl_b32 s91, s81, 6
    v_add_u32 v{T1}, s91, v{T1}
    v_lshl_add_u32 v{P_FV}, v{T0}, 11, v{T1}
    s_lshl_b32 s8, s3, 10
    s_add_u32 s8, s8, {L_RP1}
    s_lshl_b32 s9, s60, 11
    s_lshl_b32 s91, s61, 10
    s_add_u32 s9, s9, s91
    s_add_u32 s9, s9, {WS_X1P}
    s_lshl_b32 s10, s3, 3
    s_add_u32 s10, s10, {L_STA2}
    s_lshl_b32 s11, s3, 9
    s_add_u32 s11, s11, {L_RGU}
    s_lshl_b32 s12, s81, 11
    s_lshl_b32 s91, s3, 8
    s_add_u32 s12, s12, s91
    s_add_u32 s12, s12, {WS_FFP}
    s_cmp_lt_u32 s81, 28
    s_cselect_b32 s12, s12, {OOB}
    s_mov_b32 s13, {WS_X1P}
    s_mov_b32 s17, {WS_X1P + 8192}
    s_mov_b32 s18, {WS_X1P + 16384}
    s_mov_b32 s19, {WS_X1P + 24576}
    s_mov_b32 s14, {WS_FFP}
    s_mov_b32 s15, {WS_FFP + 32768}
    """)
    U1G, U2G, U1U, U2U = 2, 3, 7, 18
    e(f"""
    v_cvt_pk_bf16_f32 v{T0}, v{P_CB1}, v{P_CB1}
    v_cvt_pk_bf16_f32 v{T1}, v{P_SB}, v{P_SB}
    ds_write_b16 v{P_WH2}, v{T0} offset:64
    ds_write_b16 v{P_WH2}, v{T1} offset:192
    v_bfe_u32 v{T0}, v{V_LANE}, 1, 1
    v_lshl_add_u32 v{T0}, v{T0}, 7, v{P_A64R}
    ds_read_b128 v[{V_A}:{V_A+3}], v{T0} offset:64
    s_waitcnt lgkmcnt(0)
    """)
    for t in range(8):
        e(f"v_mfma_f32_16x16x32_bf16 v[{32+4*t}:{32+4*t+3}], v[{V_A}:{V_A+3}], v[{W2+4*t}:{W2+4*t+3}], 0")
    for t in range(8):
        e(f"v_mfma_f32_16x16x32_bf16 v[{64+4*t}:{64+4*t+3}], v[{V_A}:{V_A+3}], v[{W3+4*t}:{W3+4*t+3}], 0")
    e(f"s_mul_i32 s91, s3, 16384\ns_add_u32 s91, s91, {L_STG}\nv_lshl_add_u32 v{T0}, v{V_LANE}, 5, s91")
    for k, (D, r0) in enumerate(((32, 0), (32, 2), (64, 0), (64, 2))):
        for half in range(2):
            for t in range(4):
                tt = 4 * half + t
                e(f"v_add_f32_dpp v{28+t}, v{D+4*tt+r0+1}, v{D+4*tt+r0} row_shl:8 row_mask:0xf bank_mask:0xf")
            e(f"s_mov_b64 exec, 0xff\nds_write_b128 v{T0}, v[28:31] offset:{256*k + 16*half}\ns_mov_b64 exec, -1\ns_nop 1")
    e(f"v_lshlrev_b32 v{T0}, 2, v{V_LANE}\nv_add_u32 v{T0}, {L_STG}, v{T0}\nv_add_u32 v{T1}, 65536, v{T0}\ns_waitcnt lgkmcnt(0)\ns_barrier")
    for k, U in enumerate((U1G, U2G, U1U, U2U)):
        for v in range(8):
            e(f"ds_read_b32 v{32+v}, v{T0} offset:{(16384*v + 256*k) % 65536}" if 16384*v + 256*k < 65536 else f"ds_read_b32 v{32+v}, v{T1} offset:{16384*v + 256*k - 65536}")
        if k == 0: pass
        e("s_waitcnt lgkmcnt(0)")
        e(f"v_add_f32 v{U}, v32, v33")
        for v in range(2, 8): e(f"v_add_f32 v{U}, v{U}, v{32+v}")
    if cfg.WARM:
        for i, sb in enumerate(("s13", "s17", "s18", "s19")):
            e(f"buffer_load_dwordx4 v[{64+4*i}:{64+4*i+3}], v{P_XV}, {WS}, {sb} offen sc1")
        e(f"buffer_load_dwordx4 v[80:83], v{P_FV}, {WS}, s14 offen sc1")
        e(f"buffer_load_dwordx4 v[84:87], v{P_FV}, {WS}, s15 offen sc1")
        e(f"buffer_load_ushort v88, v{P_OUTV}, s[{S_OUT}:{S_OUT+3}], 0 offen")
        e("s_waitcnt vmcnt(0)")
    DT, ML = 28, 44
    for r in range(4): e(f"v_mov_b32 v{DT+12+r}, s{S_TAU}")
    e(f"v_mov_b32 v{ML+12}, 0xff7fff00\nv_mov_b32 v{ML+13}, s{S_TAU}\nv_mov_b32 v{ML+14}, s{S_TAU}\nv_mov_b32 v{ML+15}, s{S_TAU}")
    tag(e, ML + 12)
    sts(e, cfg, 5)
    sp = e.label("L_hopA"); ok = e.label("L_hopAok")
    e(f"{sp}:")
    for i, sb in enumerate(("s62", "s63", "s89")):
        e(f"buffer_load_dwordx4 v[{DT+4*i}:{DT+4*i+3}], v{P_PV}, {WS}, {sb} offen sc1")
    for i in range(3):
        e(f"buffer_load_dwordx4 v[{ML+4*i}:{ML+4*i+3}], v{P_MV}, {WS}, s88 offen offset:{512*i} sc1")
    e(f"""
    s_mov_b32 exec_hi, 0
    buffer_load_dwordx4 v[{DT+12}:{DT+15}], v{P_PV}, {WS}, s90 offen sc1
    buffer_load_dwordx4 v[{ML+12}:{ML+15}], v{P_MV}, {WS}, s88 offen offset:1536 sc1
    s_mov_b32 exec_hi, -1
    s_waitcnt vmcnt(0)
    """)
    check(e, T0, range(DT, DT + 32), T1)
    e(f"s_cbranch_vccz {ok}")
    if cfg.SLEEP_A: e(f"s_sleep {cfg.SLEEP_A}")
    spin_guard(e, sp)
    e(f"{ok}:")
    sts(e, cfg, 6)
    m = [ML + 4 * i for i in range(4)]
    e(f"""
    v_max3_f32 v{T0}, v{m[0]}, v{m[1]}, v{m[2]}
    v_max_f32 v{T0}, v{T0}, v{m[3]}
    v_max_f32_dpp v{T0}, v{T0}, v{T0} row_ror:8 row_mask:0xf bank_mask:0xf
    """)
    xrow(e, "v_max_f32", T0, T1, 16)
    xrow(e, "v_max_f32", T0, T1, 32)
    for i in range(4): e(f"v_sub_f32 v{m[i]}, v{m[i]}, v{T0}")
    for i in range(4): e(f"v_exp_f32 v{m[i]}, v{m[i]}")
    AC = 60
    e(f"v_mul_f32 v{T2}, v{m[0]}, v{m[0]+1}")
    for r in range(4): e(f"v_mul_f32 v{AC+r}, v{m[0]}, v{DT+r}")
    for i in range(1, 4):
        e(f"v_fmac_f32 v{T2}, v{m[i]}, v{m[i]+1}")
        for r in range(4): e(f"v_fmac_f32 v{AC+r}, v{m[i]}, v{DT+4*i+r}")
    e(f"v_add_f32_dpp v{T2}, v{T2}, v{T2} row_ror:8 row_mask:0xf bank_mask:0xf")
    rs4(e, AC)
    xrow(e, "v_add_f32", T2, T1, 16)
    e(f"v_add_f32_dpp v{AC}, v{AC}, v{AC} row_ror:8 row_mask:0xf bank_mask:0xf")
    xrow(e, "v_add_f32", T2, T1, 32)
    e(f"""
    v_rcp_f32 v{T2}, v{T2}
    v_mul_f32 v{AC}, v{AC}, v{T2}
    v_cvt_pk_bf16_f32 v{AC}, v{AC}, v{AC}
    ds_write_b16 v{P_WLW1}, v{AC}
    ds_read_b128 v[{V_A}:{V_A+3}], v{P_A128R}
    v_lshl_add_u32 v{T0}, v{V_LANE}, 5, s8
    s_waitcnt lgkmcnt(0)
    """)
    DP = 32
    for cb in range(2):
        for t in range(8):
            d = DP + 4 * (8 * cb + t); b = W0 + 32 * cb + 4 * t
            e(f"v_mfma_f32_16x16x32_bf16 v[{d}:{d+3}], v[{V_A}:{V_A+3}], v[{b}:{b+3}], 0")
    e("s_mov_b64 exec, 0xffff")
    for cb in range(2):
        for u in range(4):
            d = DP + 4 * (8 * cb + 2 * u)
            e(f"ds_write2_b32 v{T0}, v{d}, v{d+4} offset0:{128*cb+2*u} offset1:{128*cb+2*u+1}")
    e(f"""
    s_mov_b64 exec, -1
    v_lshrrev_b32 v{T0}, 3, v{V_LANE}
    v_and_b32 v{T1}, 7, v{V_LANE}
    v_lshlrev_b32 v{T1}, 4, v{T1}
    v_lshl_add_u32 v{T0}, v{T0}, 10, v{T1}
    s_lshl_b32 s91, s3, 7
    v_add_u32 v{T0}, s91, v{T0}
    v_lshrrev_b32 v{T2}, 4, v{V_LANE}
    v_and_b32 v29, 1, v{T2}
    v_lshlrev_b32 v29, 3, v29
    v_lshrrev_b32 v{T2}, 1, v{T2}
    v_lshl_add_u32 v{T2}, v{T2}, 2, v29
    v_add3_u32 v{T2}, v{T2}, v{T1}, s91
    s_waitcnt lgkmcnt(0)
    s_barrier
    ds_read_b128 v[28:31], v{T0} offset:{L_RP1}
    s_waitcnt lgkmcnt(0)
    """)
    rs4(e, 28)
    e(f"v_add_f32_dpp v28, v28, v28 row_ror:8 row_mask:0xf bank_mask:0xf")
    tag(e, 28)
    store_mode(e, f"buffer_store_dword v28, v{T2}, {WS}, s9 offen {{pol}}")
    sts(e, cfg, 7)
    if cfg.DELAY:
        for _ in range(cfg.DELAY // 64): e("s_nop 15\ns_nop 15\ns_nop 15\ns_nop 15")
    XD = 28
    sp = e.label("L_hopB"); ok = e.label("L_hopBok")
    e(f"{sp}:")
    for i, sb in enumerate(("s13", "s17", "s18", "s19")):
        e(f"buffer_load_dwordx4 v[{XD+4*i}:{XD+4*i+3}], v{P_XV}, {WS}, {sb} offen sc1")
    e("s_waitcnt vmcnt(0)")
    check(e, T0, range(XD, XD + 16), T1)
    e(f"s_cbranch_vccz {ok}")
    if cfg.SLEEP_B: e(f"s_sleep {cfg.SLEEP_B}")
    spin_guard(e, sp)
    e(f"{ok}:")
    e.vm = []
    sts(e, cfg, 8)
    for r in range(4):
        e(f"v_add_f32 v{XD+r}, v{XD+r}, v{XD+4+r}\nv_add_f32 v{XD+8+r}, v{XD+8+r}, v{XD+12+r}")
    for r in range(4): e(f"v_add_f32 v{XD+r}, v{XD+r}, v{XD+8+r}")
    rs4(e, XD)
    X1 = 44
    e(f"""
    v_fma_f32 v{X1}, v{P_GA}, v{XD}, v{P_X}
    v_mul_f32 v{T2}, v{X1}, v{P_CB1}
    v_mov_b32 v{T0}, v{X1}
    v_mul_f32 v{T1}, v{X1}, v{X1}
    v_cvt_pk_bf16_f32 v{T2}, v{T2}, v{T2}
    ds_write_b16 v{P_WH2}, v{T2} offset:64
    ds_read_b128 v[{V_A}:{V_A+3}], v{P_A64R} offset:64
    ds_write_b32 v{P_COL4}, v{X1} offset:{L_X1}
    v_permlane32_swap_b32 v{T0}, v{T1}
    v_add_f32 v{T0}, v{T0}, v{T1}
    """)
    xrow(e, "v_add_f32", T0, T1, 16)
    e("s_waitcnt lgkmcnt(1)")
    mf = [f"v_mfma_f32_16x16x32_bf16 v[{32+4*t}:{32+4*t+3}], v[{V_A}:{V_A+3}], v[{W2+4*t}:{W2+4*t+3}], 0" for t in range(8)] + \
         [f"v_mfma_f32_16x16x32_bf16 v[{64+4*t}:{64+4*t+3}], v[{V_A}:{V_A+3}], v[{W3+4*t}:{W3+4*t+3}], 0" for t in range(8)]
    for n, steps in enumerate((1, 2, 4, 8)):
        e(mf[2 * n]); e(mf[2 * n + 1])
        e(f"v_add_f32_dpp v{T0}, v{T0}, v{T0} row_ror:{steps} row_mask:0xf bank_mask:0xf")
    for n in range(8, 16): e(mf[n])
    e(f"""
    v_lshrrev_b32 v{T1}, 5, v{V_LANE}
    v_lshl_add_u32 v{T1}, v{T1}, 2, s10
    s_mov_b32 exec_lo, 1
    s_mov_b32 exec_hi, 1
    ds_write_b32 v{T1}, v{T0}
    s_mov_b64 exec, -1
    v_lshl_add_u32 v{T0}, v{V_LANE}, 5, s11
    """)
    zsum64(e, 32, 32)
    zsum64(e, 64, 64)
    e(f"""
    s_mov_b64 exec, 0xff
    ds_write_b128 v{T0}, v[32:35]
    ds_write_b128 v{T0}, v[36:39] offset:16
    ds_write_b128 v{T0}, v[64:67] offset:256
    ds_write_b128 v{T0}, v[68:71] offset:272
    s_mov_b64 exec, -1
    v_lshlrev_b32 v{T0}, 2, v{V_LANE}
    v_add_u32 v{T0}, {L_RGU}, v{T0}
    v_mov_b32 v{T2}, 0
    s_waitcnt lgkmcnt(0)
    s_barrier
    """)
    SZ, GU = 28, 48
    for k in range(4):
        e(f"ds_read_b128 v[{SZ+4*k}:{SZ+4*k+3}], v{T2} offset:{L_STA2+16*k}")
    for v in range(8):
        e(f"ds_read2st64_b32 v[{GU+2*v}:{GU+2*v+1}], v{T0} offset0:{2*v} offset1:{2*v+1}")
    e(f"ds_read_b32 v44, v{P_COLF4} offset:{L_X1}")
    e(f"v_lshlrev_b32 v{T1}, 1, v{V_LANE}\nv_add_u32 v{T1}, s16, v{T1}")
    e("s_waitcnt lgkmcnt(9)")
    e(f"v_add_f32 v{T0}, v{SZ}, v{SZ+2}\nv_add_f32 v{T2}, v{SZ+1}, v{SZ+3}")
    for k in range(4, 16, 4):
        e(f"v_add_f32 v{SZ+k}, v{SZ+k}, v{SZ+k+2}\nv_add_f32 v{SZ+k+1}, v{SZ+k+1}, v{SZ+k+3}")
    e(f"v_add_f32 v{T0}, v{T0}, v{SZ+4}\nv_add_f32 v{T2}, v{T2}, v{SZ+5}\nv_add_f32 v{SZ+8}, v{SZ+8}, v{SZ+12}\nv_add_f32 v{SZ+9}, v{SZ+9}, v{SZ+13}")
    e(f"v_add_f32 v{T0}, v{T0}, v{SZ+8}\nv_add_f32 v{T2}, v{T2}, v{SZ+9}")
    e(f"""
    v_mul_f32 v{T0}, {f32(1/512)}, v{T0}
    v_mul_f32 v{T2}, {f32(1/512)}, v{T2}
    v_fma_f32 v{T2}, -v{T0}, v{T0}, v{T2}
    v_add_f32 v{T2}, {f32(1e-5)}, v{T2}
    v_rsq_f32 v{T2}, v{T2}
    s_waitcnt lgkmcnt(1)
    """)
    for v in range(0, 8, 2):
        e(f"v_add_f32 v{GU+2*v}, v{GU+2*v}, v{GU+2*v+2}\nv_add_f32 v{GU+2*v+1}, v{GU+2*v+1}, v{GU+2*v+3}")
    e(f"v_add_f32 v{GU}, v{GU}, v{GU+4}\nv_add_f32 v{GU+1}, v{GU+1}, v{GU+5}")
    e(f"v_add_f32 v{GU+8}, v{GU+8}, v{GU+12}\nv_add_f32 v{GU+9}, v{GU+9}, v{GU+13}")
    e(f"v_add_f32 v{GU}, v{GU}, v{GU+8}\nv_add_f32 v{GU+1}, v{GU+1}, v{GU+9}")
    e(f"""
    v_fma_f32 v{GU}, -v{T0}, v{U1G}, v{GU}
    v_fma_f32 v{GU+1}, -v{T0}, v{U1U}, v{GU+1}
    v_fma_f32 v{GU}, v{GU}, v{T2}, v{U2G}
    v_fma_f32 v{GU+1}, v{GU+1}, v{T2}, v{U2U}
    v_mul_f32 v{T0}, {f32(-LOG2E)}, v{GU}
    v_exp_f32 v{T0}, v{T0}
    v_mul_f32 v{GU}, v{GU}, v{GU+1}
    v_add_f32 v{T0}, 1.0, v{T0}
    v_rcp_f32 v{T0}, v{T0}
    v_mul_f32 v{T0}, v{GU}, v{T0}
    v_cvt_pk_bf16_f32 v{T0}, v{T0}, v{T0}
    ds_write_b16 v{T1}, v{T0} offset:320
    ds_read_b128 v[{V_A}:{V_A+3}], v{P_A64R} offset:320
    v_lshrrev_b32 v{T0}, 3, v{V_LANE}
    v_and_b32 v{T1}, 7, v{V_LANE}
    v_lshlrev_b32 v{T1}, 5, v{T1}
    v_lshl_add_u32 v{T0}, v{T0}, 4, v{T1}
    s_waitcnt lgkmcnt(0)
    """)
    DD = 64
    for t in range(8):
        e(f"v_mfma_f32_16x16x32_bf16 v[{DD+4*t}:{DD+4*t+3}], v[{V_A}:{V_A+3}], v[{W4+4*t}:{W4+4*t+3}], 0")
    zsum64(e, DD, DD)
    for r in range(4):
        e(f"v_mov_b32_dpp v{DD+r}, v{DD+4+r} row_shr:8 row_mask:0xf bank_mask:0xc")
    for r in range(4): tag(e, DD + r)
    e("s_mov_b64 exec, 0xffff")
    store_mode(e, f"buffer_store_dwordx4 v[{DD}:{DD+3}], v{T0}, {WS}, s12 offen {{pol}}")
    e("s_mov_b64 exec, -1")
    e("L_final:")
    e("s_waitcnt lgkmcnt(0)")
    sts(e, cfg, 9)
    lab_end = e.label("L_svc_end")
    e(f"s_cmp_lg_u32 s3, 0\ns_cbranch_scc1 {lab_end}")
    FD = 28
    for r in range(4): e(f"v_mov_b32 v{FD+4+r}, s{S_TAU}")
    sp = e.label("L_hopC"); ok = e.label("L_hopCok")
    e(f"""
    {sp}:
    buffer_load_dwordx4 v[{FD}:{FD+3}], v{P_FV}, {WS}, s14 offen sc1
    s_mov_b32 exec_hi, 0xffff
    buffer_load_dwordx4 v[{FD+4}:{FD+7}], v{P_FV}, {WS}, s15 offen sc1
    s_mov_b32 exec_hi, -1
    s_waitcnt vmcnt(0)
    """)
    check(e, T0, range(FD, FD + 8), T1)
    e(f"s_cbranch_vccz {ok}")
    if cfg.SLEEP_C: e(f"s_sleep {cfg.SLEEP_C}")
    spin_guard(e, sp)
    e(f"{ok}:")
    sts(e, cfg, 10)
    for r in range(4): e(f"v_add_f32 v{FD+r}, v{FD+r}, v{FD+4+r}")
    rs4(e, FD)
    e(f"""
    v_add_f32_dpp v{FD}, v{FD}, v{FD} row_ror:4 row_mask:0xf bank_mask:0xf
    v_add_f32_dpp v{FD}, v{FD}, v{FD} row_ror:8 row_mask:0xf bank_mask:0xf
    v_fma_f32 v{FD}, v{P_GB}, v{FD}, v44
    v_cvt_pk_bf16_f32 v{FD}, v{FD}, v{FD}
    buffer_store_short v{FD}, v{P_OUTV}, s[{S_OUT}:{S_OUT+3}], 0 offen
    """)
    sts(e, cfg, 11)
    if getattr(cfg, "DBGT", 0):
        e(f"""
        s_waitcnt vmcnt(0)
        s_memrealtime s[96:97]
        s_waitcnt lgkmcnt(0)
        s_sub_u32 s96, s96, s101
        v_mov_b32 v4, s96
        s_lshl_b32 s91, s81, 2
        v_mov_b32 v5, s91
        v_cmp_gt_u32 vcc, 32, v5
        s_mov_b64 exec, 1
        s_cmp_ge_u32 s81, 6
        s_cbranch_scc1 {lab_end}
        buffer_store_dword v4, v5, s[{S_DBG}:{S_DBG+3}], 0 offen sc1
        """)
    e(f"{lab_end}:")
    if cfg.TS:
        e(f"""
        s_lshl_b32 s91, s81, 3
        s_add_u32 s91, s91, s3
        s_lshl_b32 s91, s91, 7
        s_add_u32 s91, s91, {WS_TS + 0x10000}
        v_lshlrev_b32 v{T0}, 2, v{V_LANE}
        s_mov_b32 exec_hi, 0
        buffer_store_dword v0, v{T0}, {WS}, s91 offen
        """)
    e("s_endpgm")
```

```python
import sys
sys.path.insert(0, "gen")
from kern import *
import att, svc

def pf_code(cfg):
    if cfg.PFMODE == 0:
        return f"""s_cmp_ge_u32 s2, {cfg.PF_WGS}
    s_cbranch_scc1 L_nopf0
    s_movk_i32 s80, 0x2000
    buffer_load_dwordx4 v[248:251], v3, s[76:79], 0 offen
    buffer_load_dwordx4 v[252:255], v3, s[76:79], s80 offen"""
    return f"""s_cmp_ge_u32 s2, {cfg.PF_WGS}
    s_cbranch_scc1 L_nopf0
    s_and_b32 s80, s2, 7
    s_cmp_eq_u32 s80, {cfg.SVC_X}
    s_cselect_b32 s80, L_service-L_pc, 0
    buffer_load_dwordx4 v[248:251], v3, s[76:79], s80 offen
    s_cbranch_scc0 L_nopf0
    s_add_u32 s80, s80, 0x2000
    buffer_load_dwordx4 v[252:255], v3, s[76:79], s80 offen"""

def build(cfg):
    e = Emitter()
    e(f"""
    L_entry:
    s_getpc_b64 s[76:77]
    L_pc:
    {"s_memrealtime s[98:99]" if getattr(cfg, "DBGT", 0) else ""}
    s_load_dwordx16 s[8:23], s[0:1], 0
    s_load_dwordx4 s[32:35], s[0:1], 96
    s_load_dwordx8 s[24:31], s[0:1], 64
    s_cmp_ge_u32 s2, 256
    s_cbranch_scc1 L_exit
    s_mov_b32 s78, L_code_end-L_pc
    s_mov_b32 s79, 0x20000
    v_lshlrev_b32 v3, 4, v0
    {pf_code(cfg)}
    L_nopf0:
    v_lshrrev_b32 v2, 6, v0
    v_and_b32 v1, 63, v0
    s_and_b32 s80, s2, 7
    s_lshr_b32 s81, s2, 3
    v_readfirstlane_b32 s3, v2
    {"s_waitcnt lgkmcnt(0)" if getattr(cfg, "DBGT", 0) else ""}
    {"s_mov_b32 s101, s98" if getattr(cfg, "DBGT", 0) else ""}
    s_cmp_lg_u32 s80, {cfg.SVC_X}
    s_cbranch_scc1 L_attention
    v_mov_b32 v4, 0
    v_mov_b32 v5, 0x200000
    s_waitcnt lgkmcnt(0)
    global_load_dword v240, v4, s[14:15]
    global_load_dword v241, v4, s[28:29]
    global_load_dword v242, v5, s[14:15]
    global_load_dword v243, v5, s[28:29]
    global_load_dword v244, v4, s[8:9]
    global_load_dword v245, v4, s[26:27]
    global_load_dword v246, v4, s[34:35]
    s_branch L_service
    L_attention:
    """)
    att.attention(e, cfg)
    e.vm = []
    e("L_service:")
    for _ in svc.service(e, cfg): pass
    e("L_exit:\ns_endpgm\nL_code_end:")
    lds = max(att.att_lds(cfg), svc.SVC_LDS)
    lds = (lds + 255) // 256 * 256
    return wrap_single(e.text(), 256, 512, lds, 256)

def mkcfg(**kw):
    c = Cfg()
    c.Q_AT = 45
    c.NVL = 16
    c.MODA_AFTER = 12
    c.D_V = 4
    c.V_EARLY_TILES = 1
    c.V_PER_LDS_GROUP = 2
    c.NQ1 = 2
    c.NWB_EARLY = 8
    c.PF_WGS = 16
    c.KPOL = 'nt'
    c.WARM = 1
    c.PFMODE = 1
    c.DELAY = 0
    c.LATE_DOWN = 0
    c.SVC_X = 0
    c.D_ATT_EVEN = None
    c.D_V_EVEN = None
    for k, v in kw.items(): setattr(c, k, v)
    if c.D_ATT_EVEN is None: c.D_ATT_EVEN = c.D_ATT
    if c.D_V_EVEN is None: c.D_V_EVEN = c.D_V
    return c

if __name__ == "__main__":
    out = sys.argv[1] if len(sys.argv) > 1 else "k0.s"
    kw = {}
    for a in sys.argv[2:]:
        k, v = a.split("=")
        kw[k] = int(v) if v.lstrip("-").isdigit() else (v == "True" if v in ("True", "False") else v.replace("+", " "))
    open(out, "w").write(build(mkcfg(**kw)))
    print("wrote", out)
```

```python
from kern import *

V_LANE, V_KOFF, V_VOFF, V_QOFF, V_FO2, V_T0, V_T1 = 1, 2, 3, 4, 5, 6, 7
V_Q = 8
V_S = 12
V_M, V_L = 22, 23
V_D = [24, 40]
V_O = 56
V_STG = 88
V_POP = 104
V_KV = 108
NBLK = 37
LDS_OBUF = 0
LDS_MLW = 16384
LDS_FW = 16384 + 256
LDS_CNT = 16384 + 384
LDS_VL = 16384 + 512
def att_lds(cfg): return LDS_VL + 8 * cfg.NVL * 1024

def kv(i): return V_KV + 4 * i

def attention(e, cfg):
    e(f"""
    s_cmp_gt_u32 s80, {cfg.SVC_X}
    s_cselect_b32 s82, 1, 0
    s_sub_u32 s82, s80, s82
    s_lshl_b32 s82, s82, 5
    s_add_u32 s82, s82, s81
    s_mov_b32 s83, {(2**32 + 27) // 28}
    s_mul_hi_u32 s84, s82, s83
    s_mul_i32 s85, s84, 28
    s_sub_u32 s85, s82, s85
    s_lshl_b32 s86, s85, 3
    s_add_u32 s86, s86, s3
    s_lshl_b32 s87, s86, 8
    s_mov_b32 s83, {(2**32 + 6) // 7}
    s_mul_hi_u32 s88, s87, s83
    s_add_u32 s87, s87, 256
    s_mul_hi_u32 s89, s87, s83
    s_sub_u32 s89, s89, s88
    s_lshl_b32 s52, s88, 10
    s_lshl_b32 s90, s84, 23
    v_bfe_u32 v{V_KOFF}, v{V_LANE}, 2, 2
    v_lshlrev_b32 v{V_KOFF}, 8, v{V_KOFF}
    v_lshrrev_b32 v{V_T0}, 4, v{V_LANE}
    v_lshlrev_b32 v{V_T0}, 6, v{V_T0}
    v_and_b32 v{V_T1}, 3, v{V_LANE}
    v_lshlrev_b32 v{V_VOFF}, 4, v{V_T1}
    v_add3_u32 v{V_KOFF}, v{V_KOFF}, v{V_T0}, v{V_VOFF}
    """)
    e("s_waitcnt lgkmcnt(0)")
    tag_setup(e)
    srd(e, 36, 10, 11, 0x800000, add="s90")
    ts(e, cfg, 60)
    D = cfg.D_ATT
    DE = cfg.D_ATT_EVEN
    def throttle(dodd, deven):
        if deven < dodd and len(e.vm) >= deven:
            lab = e.label("L_th")
            e(f"s_cbranch_vccz {lab}\ns_waitcnt vmcnt({deven-1})\n{lab}:")
        e.wait_vm_n(dodd - 1)
    def set_parity():
        e("s_getreg_b32 s51, hwreg(HW_REG_XCC_ID)\ns_bitcmp1_b32 s51, 0\ns_cselect_b64 vcc, 0, -1")
    cur = [None]
    def kload(i):
        hi = (i // 4) * 4096
        if i == NBLK - 1:
            e.vmem(f"buffer_load_dwordx4 v[{kv(i)}:{kv(i)+3}], v{V_KOFF}, s[36:39], s54 offen {cfg.KPOL}", f"K{i}")
            return
        if cur[0] != hi:
            if hi == 0: e("s_mov_b32 s53, s52")
            else: e(f"s_add_u32 s53, s52, {hi}")
            cur[0] = hi
        e.vmem(f"buffer_load_dwordx4 v[{kv(i)}:{kv(i)+3}], v{V_KOFF}, s[36:39], s53 offen offset:{(i%4)*1024} {cfg.KPOL}", f"K{i}")
    D0 = min(D, DE)
    for i in range(D0):
        kload(i)
    e(f"v_mov_b32 v{V_S}, {LDS_CNT}\nv_mov_b32 v{V_S+1}, 0\nds_write_b32 v{V_S}, v{V_S+1}\ns_waitcnt lgkmcnt(0)\ns_barrier")
    srd(e, 40, 12, 13, 0x800000, add="s90")
    srd(e, 44, 34, 35, WS_SIZE)
    e(f"""
    s_add_u32 s54, s52, {(NBLK-1)*1024}
    s_cmp_eq_u32 s89, {NBLK}
    s_cselect_b32 s54, s54, {OOB}
    s_cselect_b32 s56, 0, 0xff800000
    s_lshl_b32 s55, s84, 11
    s_add_u32 s55, s55, {WS_Q}
    s_mov_b32 s57, {f32(SCALE_C)}
    s_mul_i32 s58, s84, 28
    s_add_u32 s58, s58, s85
    s_lshl_b32 s59, s58, 7
    s_add_u32 s59, s59, {WS_ML}
    s_lshl_b32 s58, s58, 11
    s_add_u32 s58, s58, {WS_PART}
    s_mov_b32 s94, 0x05040100
    s_mov_b32 s95, 0x07060302
    s_mov_b32 s99, {cfg.SPIN}
    v_lshlrev_b32 v{V_QOFF}, 9, v{V_T1}
    v_lshl_add_u32 v{V_QOFF}, v{V_T0}, 1, v{V_QOFF}
    v_bfe_u32 v{V_T0}, v{V_LANE}, 2, 2
    v_lshl_add_u32 v{V_QOFF}, v{V_T0}, 5, v{V_QOFF}
    v_lshlrev_b32 v{V_VOFF}, 4, v{V_LANE}
    v_mov_b32 v{V_S+9}, 0xff800000
    """)
    Q_AT = cfg.Q_AT
    NVL = cfg.NVL
    QR = V_D[0]
    def qloads(track):
        for k in range(2):
            t = f"buffer_load_dwordx4 v[{QR+4*k}:{QR+4*k+3}], v{V_QOFF}, s[44:47], s55 offen offset:{16*k} sc1"
            if track: e.vmem(t, f"Q{k}")
            else: e(t)
    e(f"s_mul_i32 s48, s3, {NVL*1024}\ns_add_u32 s48, s48, {LDS_VL}")
    def vdma(k):
        if k % 4 == 0:
            e(f"s_add_u32 s49, s52, {k*1024}\ns_add_u32 s50, s48, {k*1024}\ns_mov_b32 m0, s50\ns_nop 0")
        e.vmem(f"buffer_load_dwordx4 v{V_VOFF}, s[40:43], s49 offen offset:{(k%4)*1024} {cfg.KPOL} lds", f"L{k}")
    set_parity()
    for i in range(D0, NBLK + NVL):
        if i == Q_AT:
            throttle(D, DE)
            qloads(True)
        throttle(D, DE)
        if i < NBLK: kload(i)
        else: vdma(i - NBLK)
    ts(e, cfg, 61)
    e("s_waitcnt lgkmcnt(0)")
    tag_finish(e)
    e.wait_vm("Q1")
    ok = e.label("L_qok"); sp = e.label("L_qspin")
    check(e, V_T0, range(QR, QR + 8, 4))
    e(f"s_cbranch_vccz {ok}\n{sp}:\ns_sleep 8")
    qloads(False)
    e("s_waitcnt vmcnt(0)")
    check(e, V_T0, range(QR, QR + 8, 4))
    e(f"s_cbranch_vccz {ok}")
    spin_guard(e, sp)
    e(f"{ok}:")
    for k in range(4):
        e(f"v_cvt_pk_bf16_f32 v{V_Q+k}, v{QR+2*k}, v{QR+2*k+1}")
    ts(e, cfg, 62)
    curv = [None]
    def vload(i):
        hi = (i // 4) * 4096
        if i == NBLK - 1:
            e.vmem(f"buffer_load_dwordx4 v[{kv(i)}:{kv(i)+3}], v{V_VOFF}, s[40:43], s54 offen {cfg.KPOL}", f"V{i}")
            return
        if curv[0] != hi:
            if hi == 0: e("s_mov_b32 s53, s52")
            else: e(f"s_add_u32 s53, s52, {hi}")
            curv[0] = hi
        e.vmem(f"buffer_load_dwordx4 v[{kv(i)}:{kv(i)+3}], v{V_VOFF}, s[40:43], s53 offen offset:{(i%4)*1024} {cfg.KPOL}", f"V{i}")
    def tile_blocks(T): return list(range(4 * T, min(4 * T + 4, NBLK)))
    def reduce_tile(T, par):
        Db = V_D[par]
        S = V_S + T
        for t, blk in enumerate(tile_blocks(T)):
            for b in range(4):
                rot = (4 * (t - b)) % 16
                ctl = f"row_ror:{rot}" if rot else "quad_perm:[0,1,2,3]"
                if b == 0:
                    e(f"v_mov_b32_dpp v{S}, v{Db + 4*t + b} {ctl} row_mask:0xf bank_mask:0x{1 << t:x}")
                else:
                    e(f"v_add_f32_dpp v{S}, v{Db + 4*t + b}, v{S} {ctl} row_mask:0xf bank_mask:0x{1 << t:x}")
    NT = 10
    DV = cfg.D_V
    DVE = cfg.D_V_EVEN
    set_parity()
    NVT = NVL // 4
    order = list(range(NVT, NT)) + list(range(NVT))
    vnext = [NVL]
    def v_issue_upto(n):
        while vnext[0] < min(n, NBLK):
            throttle(DV, DVE)
            vload(vnext[0]); vnext[0] += 1
    e(f"v_lshl_add_u32 v{V_FO2}, v{V_LANE}, 4, s48")
    prev = None
    for n, T in enumerate(order):
        bl = tile_blocks(T)
        e.wait_vm(f"K{bl[-1]}")
        for t, blk in enumerate(bl):
            Dd = V_D[n & 1] + 4 * t
            e(f"v_mfma_f32_16x16x32_bf16 v[{Dd}:{Dd+3}], v[{kv(blk)}:{kv(blk)+3}], v[{V_Q}:{V_Q+3}], 0")
        if prev is not None: reduce_tile(prev, (n - 1) & 1)
        if n < cfg.V_EARLY_TILES and T >= NVT:
            for blk in bl:
                if blk == vnext[0]:
                    vload(blk); vnext[0] += 1
        if T < NVT:
            e.wait_vm(f"L{bl[-1]}")
            for blk in bl:
                e(f"ds_read_b128 v[{kv(blk)}:{kv(blk)+3}], v{V_FO2} offset:{blk*1024}")
        prev = T
    reduce_tile(prev, (NT - 1) & 1)
    e(f"v_add_f32 v{V_S+9}, s56, v{V_S+9}")
    ts(e, cfg, 63)
    e(f"v_max3_f32 v{V_M}, v{V_S}, v{V_S+1}, v{V_S+2}")
    for k in range(3, 9, 2):
        e(f"v_max3_f32 v{V_M}, v{V_M}, v{V_S+k}, v{V_S+k+1}")
    e(f"v_max_f32 v{V_M}, v{V_M}, v{V_S+9}")
    allreduce16(e, "v_max_f32", V_M, steps=(4, 8))
    xrow(e, "v_max_f32", V_M, V_T0, 16)
    xrow(e, "v_max_f32", V_M, V_T0, 32)
    e(f"v_mul_f32 v{V_M}, s57, v{V_M}")
    for T in range(NT):
        e(f"v_fma_f32 v{V_S+T}, v{V_S+T}, s57, -v{V_M}")
    for T in range(NT):
        e(f"v_exp_f32 v{V_S+T}, v{V_S+T}")
    v_issue_upto(vnext[0] + 2)
    e(f"v_add_f32 v{V_L}, v{V_S}, v{V_S+1}")
    for T in range(2, NT):
        e(f"v_add_f32 v{V_L}, v{V_L}, v{V_S+T}")
    for g in range(5):
        e(f"v_cvt_pk_bf16_f32 v{V_S+2*g}, v{V_S+2*g}, v{V_S+2*g+1}")
    allreduce16(e, "v_add_f32", V_L, steps=(4, 8))
    xrow(e, "v_add_f32", V_L, V_T0, 16)
    xrow(e, "v_add_f32", V_L, V_T0, 32)
    lab = e.label("L_mlpub")
    e(f"""
    s_lshl_b32 s91, s3, 5
    v_lshlrev_b32 v{V_T0}, 3, v{V_LANE}
    v_add_u32 v{V_T0}, s91, v{V_T0}
    s_mov_b64 exec, 0xf
    ds_write_b64 v{V_T0}, v[{V_M}:{V_M+1}] offset:{LDS_MLW}
    s_mov_b64 exec, 1
    v_mov_b32 v{V_T0}, {LDS_CNT}
    v_mov_b32 v{V_T1}, 1
    s_waitcnt lgkmcnt(0)
    ds_add_rtn_u32 v30, v{V_T0}, v{V_T1}
    s_waitcnt lgkmcnt(0)
    v_readfirstlane_b32 s91, v30
    s_mov_b64 exec, -1
    s_cmp_lg_u32 s91, 7
    s_cbranch_scc1 {lab}
    v_and_b32 v{V_T0}, 31, v{V_LANE}
    v_lshlrev_b32 v{V_T1}, 3, v{V_T0}
    ds_read_b64 v[30:31], v{V_T1} offset:{LDS_MLW}
    v_lshlrev_b32 v{V_T0}, 2, v{V_T0}
    s_waitcnt lgkmcnt(0)
    v_mov_b32 v36, v30
    """)
    allreduce16(e, "v_max_f32", 36, steps=(4, 8))
    xrow(e, "v_max_f32", 36, 32, 16)
    tag(e, 36)
    e(f"""
    v_sub_f32 v30, v30, v36
    v_exp_f32 v30, v30
    v_mul_f32 v37, v30, v31
    ds_write_b32 v{V_T0}, v30 offset:{LDS_FW}
    """)
    allreduce16(e, "v_add_f32", 37, steps=(4, 8))
    xrow(e, "v_add_f32", 37, 32, 16)
    tag(e, 37)
    e(f"""
    v_mov_b32 v38, v36
    v_mov_b32 v39, v37
    v_and_b32 v{V_T0}, 3, v{V_LANE}
    v_lshlrev_b32 v{V_T0}, 4, v{V_T0}
    v_bfe_u32 v{V_T1}, v{V_LANE}, 2, 1
    v_lshl_add_u32 v{V_T0}, v{V_T1}, 6, v{V_T0}
    s_mov_b64 exec, 0xff
    buffer_store_dwordx4 v[36:39], v{V_T0}, s[44:47], s59 offen sc1
    s_mov_b64 exec, -1
    {lab}:
    """)
    A0, AF, AP, AW0, AW1 = 24, 25, 26, 27, 28
    e(f"""
    v_lshrrev_b32 v{V_T0}, 2, v{V_LANE}
    s_lshl_b32 s91, s3, 4
    v_add_u32 v{V_T0}, s91, v{V_T0}
    v_lshlrev_b32 v{V_T0}, 4, v{V_T0}
    v_and_b32 v{V_T1}, 3, v{V_LANE}
    v_lshl_add_u32 v{A0}, v{V_T1}, 12, v{V_T0}
    v_cmp_eq_u32 s[92:93], 0, v{V_T1}
    v_mov_b32 v{AP}, {OOB}
    v_cndmask_b32 v{AP}, v{AP}, v{V_T0}, s[92:93]
    s_lshr_b32 s91, s3, 1
    s_lshl_b32 s91, s91, 2
    s_add_u32 s91, s91, {LDS_FW}
    v_lshl_add_u32 v{AF}, v{V_T1}, 5, s91
    s_lshl_b32 s91, s3, 11
    v_lshl_add_u32 v{AW0}, v{V_LANE}, 5, s91
    v_add_u32 v{AW1}, 1024, v{AW0}
    """)
    for g in range(5):
        last_blk = tile_blocks(min(2 * g + 1, NT - 1))[-1]
        if last_blk < NVL:
            v_issue_upto(vnext[0] + cfg.V_PER_LDS_GROUP)
            e("s_waitcnt lgkmcnt(0)")
        else:
            v_issue_upto(last_blk + 1 + DV)
            e.wait_vm(f"V{last_blk}")
        X = V_S + 2 * g
        e(f"v_mov_b32 v{V_POP}, v{X}")
        for m in range(1, 4):
            e(f"v_mov_b32_dpp v{V_POP+m}, v{X} row_shl:{4*m} row_mask:0xf bank_mask:0xf")
        for j in range(4):
            st = V_STG + 8 * (j & 1)
            for m in range(4):
                x = kv(8 * g + m) + j
                yb = 8 * g + 4 + m
                y = (kv(yb) if yb < NBLK else kv(8 * g + m)) + j
                e(f"v_perm_b32 v{st + m}, v{y}, v{x}, s94")
                e(f"v_perm_b32 v{st + 4 + m}, v{y}, v{x}, s95")
            for q in range(2):
                O = V_O + 4 * (2 * j + q)
                C = "0" if g == 0 else f"v[{O}:{O+3}]"
                e(f"v_mfma_f32_16x16x32_bf16 v[{O}:{O+3}], v[{V_POP}:{V_POP+3}], v[{st+4*q}:{st+4*q+3}], {C}")
    ts(e, cfg, 64)
    e("s_mov_b64 exec, 0xffff")
    for u in range(4):
        for r in range(4):
            a = AW0 if r < 2 else AW1
            o0 = (r & 1) * 128 + 2 * u
            e(f"ds_write2_b32 v{a}, v{V_O + 4*(2*u) + r}, v{V_O + 4*(2*u+1) + r} offset0:{o0} offset1:{o0+1}")
    e(f"""
    s_mov_b64 exec, -1
    s_waitcnt lgkmcnt(0)
    s_barrier
    ds_read2_b32 v[30:31], v{AF} offset0:0 offset1:4
    ds_read_b128 v[36:39], v{A0}
    ds_read_b128 v[40:43], v{A0} offset:2048
    s_waitcnt lgkmcnt(1)
    """)
    for r in range(4):
        e(f"v_mul_f32 v{36+r}, v30, v{36+r}")
    e("s_waitcnt lgkmcnt(0)")
    for r in range(4):
        e(f"v_fmac_f32 v{36+r}, v31, v{40+r}")
    for qp in ("[1,0,3,2]", "[2,3,0,1]"):
        for r in (36, 37, 38, 39):
            e(f"v_add_f32_dpp v{r}, v{r}, v{r} quad_perm:{qp} row_mask:0xf bank_mask:0xf")
    for r in (36, 37, 38, 39):
        tag(e, r)
    e.vmem(f"buffer_store_dwordx4 v[36:39], v{AP}, s[44:47], s58 offen sc1", "PS")
    ts(e, cfg, 65)
    if getattr(cfg, "DBGT", 0):
        lab = e.label("L_dbgt")
        e(f"""
        s_cmp_lg_u32 s3, 0
        s_cbranch_scc1 {lab}
        s_cmp_lg_u32 s81, 31
        s_cbranch_scc1 {lab}
        s_waitcnt vmcnt(0)
        s_memrealtime s[96:97]
        s_waitcnt lgkmcnt(0)
        s_sub_u32 s96, s96, s101
        v_mov_b32 v4, s96
        s_add_u32 s91, s80, 6
        s_lshl_b32 s91, s91, 2
        v_mov_b32 v5, s91
        s_mov_b32 s48, s32
        s_mov_b32 s49, s33
        s_mov_b32 s50, 256
        s_mov_b32 s51, 0x20000
        s_mov_b64 exec, 1
        buffer_store_dword v4, v5, s[48:51], 0 offen sc1
        {lab}:
        """)
    if cfg.TS:
        e.wait_vm_all()
        ts(e, cfg, 66)
        e(f"""
        s_lshl_b32 s91, s2, 3
        s_add_u32 s91, s91, s3
        s_lshl_b32 s91, s91, 5
        s_add_u32 s91, s91, {WS_TS}
        v_mov_b32 v6, {OOB}
        v_cmp_eq_u32 vcc, 0, v{V_LANE}
        v_cndmask_b32 v6, v6, 0, vcc
        """)
        for k in range(7): e(f"v_mov_b32 v{36+k}, s{60+k}")
        e("v_mov_b32 v43, s89")
        e("buffer_store_dwordx4 v[36:39], v6, s[44:47], s91 offen")
        e("buffer_store_dwordx4 v[40:43], v6, s[44:47], s91 offen offset:16")
    e("s_endpgm")
```

```python
from kern import *

S_WS, S_DBG, S_X, S_C, S_WMOD, S_WQ, S_WO, S_WG, S_WU, S_WD, S_OUT = 36, 40, 44, 48, 52, 56, 4, 64, 68, 72, 84
L_SVA  = 0
L_CNT  = 1024
L_STAT = 2048
L_STA2 = 2176
L_RA1  = 2304
L_RQ   = 4352
L_RB   = 8448
L_RP1  = 10496
L_RGU  = 18688
L_X1   = 22784
L_WL   = 24832
L_STG  = 24832 + 4096
SVC_LDS = L_STG + 8 * 16384

V_LANE, V_TAU2, V_N = 1, 2, 3
T0, T1, T2, T3 = 4, 5, 6, 7
V_A = 8
P_WLW1, P_WH2, P_COL4, P_COLF4 = 12, 13, 14, 15
P_GA, P_CB1, P_SB, P_X, P_GB = 16, 17, 18, 19, 20
P_PV, P_MV, P_XV, P_FV, P_A64R, P_A128R, P_OUTV = 21, 22, 23, 24, 25, 26, 27
SC = 28
W0, W1, W2, W3, W4 = 96, 128, 160, 192, 224

def unit64_voff(e, dst, stride_bytes, t0, t1):
    e(f"""
    v_lshrrev_b32 v{t0}, 4, v{V_LANE}
    v_lshlrev_b32 v{t0}, 3, v{t0}
    v_bfe_u32 v{t1}, v{V_LANE}, 3, 1
    v_lshlrev_b32 v{t1}, 5, v{t1}
    v_add_u32 v{t0}, v{t0}, v{t1}
    v_mul_u32_u24 v{t0}, {stride_bytes}, v{t0}
    v_and_b32 v{t1}, 7, v{V_LANE}
    v_lshlrev_b32 v{t1}, 4, v{t1}
    v_add_u32 v{dst}, v{t0}, v{t1}
    """)

def unit128_voff(e, dst, stride_bytes, t0, t1):
    e(f"""
    v_lshrrev_b32 v{t0}, 4, v{V_LANE}
    v_mul_u32_u24 v{t0}, {8*stride_bytes}, v{t0}
    v_and_b32 v{t1}, 15, v{V_LANE}
    v_lshlrev_b32 v{t1}, 4, v{t1}
    v_add_u32 v{dst}, v{t0}, v{t1}
    """)

class Stream:
    def __init__(self, e, depth): self.e, self.d = e, depth
    def load(self, dst, voff, srdq, sbase, byte_off, tag):
        e = self.e
        e.wait_vm_n(self.d - 1)
        if byte_off < 4096:
            e.vmem(f"buffer_load_dwordx4 v[{dst}:{dst+3}], v{voff}, s[{srdq}:{srdq+3}], {sbase} offen offset:{byte_off} nt", tag)
        else:
            e(f"s_add_u32 s93, {sbase}, {byte_off}")
            e.vmem(f"buffer_load_dwordx4 v[{dst}:{dst+3}], v{voff}, s[{srdq}:{srdq+3}], s93 offen nt", tag)

def zsum64(e, D, Z):
    for t in range(8):
        e(f"v_add_f32_dpp v{Z+t}, v{D+4*t+1}, v{D+4*t} row_shl:8 row_mask:0xf bank_mask:0xf")

def rs4(e, a):
    e(f"v_permlane32_swap_b32 v{a}, v{a+1}")
    e(f"v_permlane32_swap_b32 v{a+2}, v{a+3}")
    e(f"v_add_f32 v{a}, v{a}, v{a+1}")
    e(f"v_add_f32 v{a+2}, v{a+2}, v{a+3}")
    e(f"v_permlane16_swap_b32 v{a}, v{a+2}")
    e(f"v_add_f32 v{a}, v{a}, v{a+2}")

def store_mode(e, text):
    lf = e.label("L_fast"); le = e.label("L_stend")
    e(f"s_cmp_eq_u32 s98, 1\ns_cbranch_scc1 {lf}")
    e(text.format(pol="sc1"))
    e(f"s_branch {le}\n{lf}:")
    e(text.format(pol=""))
    e(f"{le}:")
    e.vm.append("st")

def sts(e, cfg, k):
    if cfg.TS:
        e(f"s_memrealtime s[96:97]\ns_waitcnt lgkmcnt(0)\nv_writelane_b32 v0, s96, {k}")

def silu(e, dst, src, t):
    e(f"""
    v_mul_f32 v{t}, {f32(-LOG2E)}, v{src}
    v_exp_f32 v{t}, v{t}
    v_add_f32 v{t}, 1.0, v{t}
    v_rcp_f32 v{t}, v{t}
    v_mul_f32 v{dst}, v{src}, v{t}
    """)

DBG_OFF = [0]
def persist_setup(e, cfg):
    DBG_OFF[0] = 128 if getattr(cfg, 'DBGT', 0) else 0
    WS = f"s[{S_WS}:{S_WS+3}]"
    e(f"""
    v_lshrrev_b32 v{T0}, 4, v{V_LANE}
    v_and_b32 v{T1}, 1, v{T0}
    v_lshlrev_b32 v{T1}, 1, v{T1}
    v_lshrrev_b32 v{T2}, 1, v{T0}
    v_or_b32 v{T2}, v{T2}, v{T1}
    s_lshl_b32 s16, s3, 9
    s_add_u32 s16, s16, {L_WL}
    v_lshlrev_b32 v{P_A128R}, 4, v{T0}
    v_add_u32 v{P_A128R}, s16, v{P_A128R}
    v_and_b32 v{P_A64R}, 1, v{V_LANE}
    v_lshlrev_b32 v{P_A64R}, 6, v{P_A64R}
    v_add3_u32 v{P_A64R}, v{P_A64R}, v{P_A128R}, 0
    v_and_b32 v{T1}, 7, v{V_LANE}
    v_lshl_add_u32 v{T1}, v{T1}, 2, v{T2}
    v_lshlrev_b32 v{T1}, 1, v{T1}
    v_add_u32 v{P_WLW1}, s16, v{T1}
    v_and_b32 v{T1}, 15, v{V_LANE}
    v_lshl_add_u32 v{T1}, v{T1}, 2, v{T2}
    v_lshlrev_b32 v{T3}, 1, v{T1}
    v_add_u32 v{P_WH2}, s16, v{T3}
    s_lshl_b32 s91, s3, 6
    v_add_u32 v{T1}, s91, v{T1}
    v_lshlrev_b32 v{P_COL4}, 2, v{T1}
    v_lshlrev_b32 v{T3}, 1, v{T1}
    v_and_b32 v{T1}, 3, v{V_LANE}
    v_lshl_add_u32 v{T1}, v{T1}, 2, v{T2}
    s_lshl_b32 s91, s81, 4
    v_add_u32 v{T1}, s91, v{T1}
    v_lshlrev_b32 v{P_COLF4}, 2, v{T1}
    v_lshlrev_b32 v{T1}, 1, v{T1}
    v_and_b32 v{T0}, 12, v{V_LANE}
    v_cmp_eq_u32 vcc, 0, v{T0}
    v_mov_b32 v{P_OUTV}, {OOB}
    v_cndmask_b32 v{P_OUTV}, v{P_OUTV}, v{T1}, vcc
    s_mov_b32 s8, {WS_MODB}
    s_mov_b32 s9, {WS_MODB + 4096}
    v_mov_b32 v2, v{T3}
    v_and_b32 v92, 31, v{V_LANE}
    v_lshlrev_b32 v92, 2, v92
    """)

def modb_loads(e, track):
    WS = f"s[{S_WS}:{S_WS+3}]"
    L = [f"buffer_load_dword v{P_GA}, v{P_COL4}, {WS}, s8 offen sc1",
         f"buffer_load_dword v{P_SB}, v{P_COL4}, {WS}, s8 offen offset:2048 sc1",
         f"buffer_load_dword v{P_CB1}, v{P_COL4}, {WS}, s9 offen sc1",
         f"buffer_load_dword v{P_GB}, v{P_COLF4}, {WS}, s9 offen offset:2048 sc1",
         f"buffer_load_ushort v{P_X}, v2, s[{S_X}:{S_X+3}], 0 offen",
         f"buffer_load_dword v3, v92, s[{S_DBG}:{S_DBG+3}], 0 offen offset:{DBG_OFF[0]} sc1"]
    for k, t in enumerate(L):
        if track: e.vmem(t, f"MB{k}")
        else: e(t)

def counter_last(e, off, n, lab):
    e(f"""
    s_mov_b64 exec, 1
    v_mov_b32 v{T1}, {L_CNT + off}
    v_mov_b32 v{T2}, 1
    s_waitcnt lgkmcnt(0)
    ds_add_rtn_u32 v{T3}, v{T1}, v{T2}
    s_waitcnt lgkmcnt(0)
    v_readfirstlane_b32 s91, v{T3}
    s_mov_b64 exec, -1
    s_cmp_lg_u32 s91, {n}
    s_cbranch_scc1 {lab}
    """)

def service(e, cfg):
    D = cfg.D_SVC
    WS = f"s[{S_WS}:{S_WS+3}]"
    Z = 76
    pend = []
    def pump(upto_tag):
        while True:
            tag_, fn = pend.pop(0)
            e.wait_vm_n(D - 1)
            fn()
            if tag_ == upto_tag: break
    def rload(dst, voff, srdq, sbase, byte_off, tag_):
        def fn():
            if byte_off < 4096:
                e.vmem(f"buffer_load_dwordx4 v[{dst}:{dst+3}], v{voff}, s[{srdq}:{srdq+3}], {sbase} offen offset:{byte_off} nt", tag_)
            else:
                e(f"s_add_u32 s93, {sbase}, {byte_off}")
                e.vmem(f"buffer_load_dwordx4 v[{dst}:{dst+3}], v{voff}, s[{srdq}:{srdq+3}], s93 offen nt", tag_)
        pend.append((tag_, fn))
    def dma(voff, srdq, sbase, byte_off, lds_off, tag_):
        def fn():
            e(f"s_add_u32 s93, {sbase}, {byte_off}\ns_add_u32 s92, s63, {lds_off}\ns_mov_b32 m0, s92\ns_nop 0")
            e.vmem(f"buffer_load_dwordx4 v{voff}, s[{srdq}:{srdq+3}], s93 offen nt lds", tag_)
        pend.append((tag_, fn))
    e(f"""
    v_mov_b32 v4, {L_CNT}
    v_mov_b32 v6, 0
    v_mov_b32 v7, 0
    ds_write_b64 v4, v[6:7]
    ds_write_b64 v4, v[6:7] offset:8
    s_waitcnt lgkmcnt(0)
    """)
    tag_setup(e)
    e("s_barrier")
    e(f"s_mov_b32 s99, {cfg.SPIN}")
    srd(e, S_C, 26, 27, 1024)
    srd(e, S_WMOD, 28, 29, 512 * 3072 * 2)
    srd(e, S_WS, 34, 35, WS_SIZE)
    srd(e, S_X, 8, 9, 1024)
    srd(e, S_WQ, 14, 15, 512 * 4096 * 2)
    sts(e, cfg, 0)
    e(f"""
    s_and_b32 s83, s81, 15
    s_lshr_b32 s60, s81, 4
    s_lshl_b32 s88, s60, 12
    s_lshl_b32 s89, s83, 8
    s_add_u32 s88, s88, s89
    s_lshl_b32 s82, s3, 9
    s_add_u32 s82, s82, {L_WL}
    s_mov_b32 s94, 0x05040100
    s_mov_b32 s95, 0x07060302
    """)
    lab_noa1 = e.label("L_noa1i")
    e(f"s_cmp_ge_u32 s3, 4\ns_cbranch_scc1 {lab_noa1}")
    e(f"""
    s_lshl_b32 s61, s60, 8
    s_lshl_b32 s62, s3, 6
    s_add_u32 s61, s61, s62
    v_lshlrev_b32 v{T0}, 1, v{V_LANE}
    s_lshl_b32 s91, s61, 1
    buffer_load_ushort v22, v{T0}, s[{S_C}:{S_C+3}], s91 offen
    """)
    unit64_voff(e, 18, 6144, T1, T2)
    e(f"""
    s_mul_i32 s63, s61, 6144
    s_lshl_b32 s62, s83, 7
    s_add_u32 s63, s63, s62
    """)
    AR = 96
    for ee in range(8):
        if ee: e(f"s_add_u32 s63, s63, 6144")
        e(f"buffer_load_dwordx4 v[{AR+4*ee}:{AR+4*ee+3}], v18, s[{S_WMOD}:{S_WMOD+3}], s63 offen nt")
    sts(e, cfg, 16)
    e(f"{lab_noa1}:")
    sts(e, cfg, 18)
    c, x, XA = 16, 17, 32
    V_OQ, V_OB, V_OG, V_ODN, V_OW, FO = 18, 19, 21, 23, 24, 20
    e(f"""
    v_lshlrev_b32 v{T3}, 4, v{V_LANE}
    s_lshl_b32 s91, s3, 7
    v_lshlrev_b32 v{V_TAU2}, 1, v{V_LANE}
    v_add_u32 v{V_TAU2}, s91, v{V_TAU2}
    """)
    unit128_voff(e, V_OQ, 8192, T0, T1)
    e(f"""
    s_lshl_b32 s90, s3, 19
    s_lshl_b32 s91, s81, 8
    s_add_u32 s90, s90, s91
    """)
    e.vmem(f"buffer_load_dwordx4 v[{XA}:{XA+3}], v{T3}, s[{S_X}:{S_X+3}], 0 offen", "xa")
    e.vmem(f"buffer_load_ushort v{x}, v{V_TAU2}, s[{S_X}:{S_X+3}], 0 offen", "x")
    e.vmem(f"buffer_load_ushort v{c}, v{V_TAU2}, s[{S_C}:{S_C+3}], 0 offen", "c")
    for i in range(16):
        ks, ee = divmod(i, 8)
        rload(W3 + 4 * i, V_OQ, S_WQ, "s90", (32 * ks + ee) * 8192, f"wq{i}")
    pump("wq3")
    sts(e, cfg, 14)
    lab = e.label("L_a1done")
    e(f"s_cmp_ge_u32 s3, 4\ns_cbranch_scc1 {lab}")
    e("s_waitcnt vmcnt(7)")
    sts(e, cfg, 17)
    e("v_lshlrev_b32 v22, 16, v22")
    silu(e, 22, 22, T1)
    e(f"""
    v_cvt_pk_bf16_f32 v22, v22, v22
    v_lshl_add_u32 v{T0}, v{V_LANE}, 1, s82
    ds_write_b16 v{T0}, v22
    v_and_b32 v{T1}, 1, v{V_LANE}
    v_lshlrev_b32 v{T1}, 6, v{T1}
    v_lshrrev_b32 v{T2}, 4, v{V_LANE}
    v_lshl_add_u32 v{T1}, v{T2}, 4, v{T1}
    v_add_u32 v{T1}, s82, v{T1}
    ds_read_b128 v[{V_A}:{V_A+3}], v{T1}
    """)
    TB, DA = 44, 128
    transpose_unit(e, AR, TB)
    e("s_waitcnt lgkmcnt(0)")
    for t in range(8):
        e(f"v_mfma_f32_16x16x32_bf16 v[{DA+4*t}:{DA+4*t+3}], v[{V_A}:{V_A+3}], v[{TB+4*t}:{TB+4*t+3}], 0")
    zsum64(e, DA, Z)
    e(f"""
    s_lshl_b32 s91, s3, 8
    v_lshlrev_b32 v{T0}, 5, v{V_LANE}
    v_add_u32 v{T0}, s91, v{T0}
    s_mov_b64 exec, 0xff
    ds_write_b128 v{T0}, v[{Z}:{Z+3}] offset:{L_RA1}
    ds_write_b128 v{T0}, v[{Z+4}:{Z+7}] offset:{L_RA1+16}
    """)
    counter_last(e, 0, 3, lab)
    e(f"v_lshlrev_b32 v{T0}, 2, v{V_LANE}")
    for v in range(4):
        e(f"ds_read_b32 v{Z+v}, v{T0} offset:{L_RA1 + 256*v}")
    e("s_waitcnt lgkmcnt(0)")
    tag_finish(e)
    e(f"""
    v_add_f32 v{Z}, v{Z}, v{Z+1}
    v_add_f32 v{Z+2}, v{Z+2}, v{Z+3}
    v_add_f32 v{Z}, v{Z}, v{Z+2}
    """)
    tag(e, Z)
    e(f"buffer_store_dword v{Z}, v{T0}, {WS}, s88 offen sc1")
    e(f"s_sub_u32 s{S_TAU}, s{S_TAU}, 1")
    sts(e, cfg, 1)
    e(f"{lab}:")
    pump("wq7")
    srd(e, S_DBG, 32, 33, 256)
    srd(e, S_WO, 16, 17, 4096 * 512 * 2)
    srd(e, S_WG, 20, 21, 512 * 1792 * 2)
    srd(e, S_WU, 22, 23, 512 * 1792 * 2)
    srd(e, S_WD, 24, 25, 1792 * 512 * 2)
    srd(e, S_OUT, 30, 31, 1024)
    e("s_waitcnt lgkmcnt(0)")
    tag_finish(e)
    lab = e.label("L_xcc")
    e(f"""
    s_cmp_lg_u32 s3, 0
    s_cbranch_scc1 {lab}
    s_getreg_b32 s91, hwreg(HW_REG_XCC_ID)
    s_and_b32 s91, s91, 15
    s_add_u32 s91, s91, 1
    v_mov_b32 v{T1}, s91
    s_lshl_b32 s92, s81, 2
    v_mov_b32 v{T2}, s92
    s_mov_b64 exec, 1
    buffer_store_dword v{T1}, v{T2}, s[{S_DBG}:{S_DBG+3}], 0 offen offset:{128 if getattr(cfg, "DBGT", 0) else 0} sc1
    s_mov_b64 exec, -1
    {lab}:
    """)
    e.wait_vm("c")
    U = 36
    for k in range(4):
        e(f"v_lshlrev_b32 v{U+2*k}, 16, v{XA+k}\nv_and_b32 v{U+2*k+1}, 0xffff0000, v{XA+k}")
    e(f"v_add_f32 v{V_A}, v{U}, v{U+1}\nv_mul_f32 v{V_A+1}, v{U}, v{U}\nv_fmac_f32 v{V_A+1}, v{U+1}, v{U+1}")
    for k in range(2, 8):
        e(f"v_add_f32 v{V_A}, v{V_A}, v{U+k}\nv_fmac_f32 v{V_A+1}, v{U+k}, v{U+k}")
    e(f"v_permlane32_swap_b32 v{V_A}, v{V_A+1}\nv_add_f32 v{V_A}, v{V_A}, v{V_A+1}")
    xrow(e, "v_add_f32", V_A, T0, 16)
    allreduce16(e, "v_add_f32", V_A)
    e(f"""
    v_lshlrev_b32 v{c}, 16, v{c}
    v_lshlrev_b32 v{x}, 16, v{x}
    v_readlane_b32 s91, v{V_A}, 0
    v_readlane_b32 s92, v{V_A}, 32
    """)
    silu(e, c, c, T0)
    e(f"""
    v_mov_b32 v{T0}, {f32(1/512)}
    v_mul_f32 v{T1}, s91, v{T0}
    v_mul_f32 v{T2}, s92, v{T0}
    v_fma_f32 v{T2}, -v{T1}, v{T1}, v{T2}
    v_add_f32 v{T2}, {f32(1e-5)}, v{T2}
    v_rsq_f32 v{T2}, v{T2}
    v_sub_f32 v{V_N}, v{x}, v{T1}
    v_mul_f32 v{V_N}, v{V_N}, v{T2}
    v_cvt_pk_bf16_f32 v{c}, v{c}, v{c}
    v_lshl_add_u32 v{T0}, v{V_LANE}, 1, s82
    ds_write_b16 v{T0}, v{c} offset:128
    """)
    pump("wq15")
    sts(e, cfg, 15)
    e(f"v_lshlrev_b32 v{FO}, 1, v{V_TAU2}\ns_mov_b32 s89, 4096")
    def moda_loads(track):
        for k, (so, im) in enumerate((("0", 0), ("s89", 0), ("0", 2048), ("s89", 2048))):
            t = f"buffer_load_dword v{Z+k}, v{FO}, {WS}, {so} offen offset:{im} sc1"
            if track: e.vmem(t, f"MA{k}")
            else: e(t)
    e.wait_vm_n(D - 4)
    moda_loads(True)
    unit64_voff(e, V_OB, 6144, T0, T1)
    unit64_voff(e, V_OG, 3584, T0, T1)
    unit64_voff(e, V_ODN, 1024, T0, T1)
    unit128_voff(e, V_OW, 1024, T0, T1)
    e(f"""
    s_mul_i32 s90, s3, {64*6144}
    s_lshl_b32 s91, s81, 7
    s_add_u32 s90, s90, s91
    s_add_u32 s90, s90, 2048
    s_mul_i32 s61, s3, {64*3584}
    s_add_u32 s61, s61, s91
    s_lshl_b32 s62, s81, 16
    s_lshl_b32 s91, s3, 7
    s_add_u32 s62, s62, s91
    s_cmp_lt_u32 s81, 28
    s_cselect_b32 s61, s61, {OOB}
    s_cselect_b32 s62, s62, {OOB}
    s_lshr_b32 s60, s81, 1
    s_lshl_b32 s10, s60, 8
    s_lshl_b32 s63, s3, 5
    s_add_u32 s10, s10, s63
    s_lshl_b32 s10, s10, 10
    s_and_b32 s11, s81, 1
    s_lshl_b32 s63, s11, 9
    s_add_u32 s10, s10, s63
    s_mul_i32 s63, s3, 16384
    s_add_u32 s63, s63, {L_STG}
    """)
    if getattr(cfg, "NOBULK", 0):
        e(f"s_mov_b32 s61, {OOB}\ns_mov_b32 s62, {OOB}\ns_mov_b32 s10, {OOB}")
    for ee in range(8): rload(W1 + 4 * ee, V_OB, S_WMOD, "s90", ee * 6144, f"wb{ee}")
    for ee in range(8):
        for cb in range(2): rload(W2 + 32 * cb + 4 * ee, V_OW, S_WO, "s10", cb * 256 + ee * 1024, f"wo{cb}_{ee}")
    for ee in range(8): rload(W4 + 4 * ee, V_OG, S_WG, "s61", ee * 3584, f"wg{ee}")
    for ee in range(8): dma(V_OG, S_WU, "s61", ee * 3584, ee * 1024, f"wu{ee}")
    for ee in range(8): dma(V_ODN, S_WD, "s62", ee * 1024, 8192 + ee * 1024, f"wd{ee}")
    e.wait_vm("wq7")
    transpose_unit(e, W3, W2)
    pump("wb2")
    e.wait_vm("wq15")
    sts(e, cfg, 19)
    transpose_unit(e, W4, W3)
    e.wait_vm("MA3")
    sp = e.label("L_moda"); ok = e.label("L_modaok")
    check(e, T1, range(Z, Z + 4))
    e(f"s_cbranch_vccz {ok}\n{sp}:\ns_sleep 2")
    moda_loads(False)
    e("s_waitcnt vmcnt(0)")
    check(e, T1, range(Z, Z + 4))
    e(f"s_cbranch_vccz {ok}")
    spin_guard(e, sp)
    e(f"{ok}:")
    sts(e, cfg, 13)
    e(f"""
    v_add_f32 v{Z}, v{Z}, v{Z+1}
    v_add_f32 v{Z+2}, v{Z+2}, v{Z+3}
    v_add_f32 v{Z+2}, 1.0, v{Z+2}
    v_fma_f32 v{Z}, v{V_N}, v{Z+2}, v{Z}
    v_cvt_pk_bf16_f32 v{Z}, v{Z}, v{Z}
    v_lshl_add_u32 v{T0}, v{V_LANE}, 1, s82
    ds_write_b16 v{T0}, v{Z}
    v_lshrrev_b32 v{T0}, 4, v{V_LANE}
    v_lshl_add_u32 v{T0}, v{T0}, 4, s82
    ds_read_b128 v[{V_A}:{V_A+3}], v{T0}
    ds_read_b128 v[{V_A+4}:{V_A+7}], v{T0} offset:64
    s_waitcnt lgkmcnt(0)
    """)
    DQ = 44
    for t in range(8):
        e(f"v_mfma_f32_16x16x32_bf16 v[{DQ+4*t}:{DQ+4*t+3}], v[{V_A}:{V_A+3}], v[{W2+4*t}:{W2+4*t+3}], 0")
    for t in range(8):
        e(f"v_mfma_f32_16x16x32_bf16 v[{DQ+4*t}:{DQ+4*t+3}], v[{V_A+4}:{V_A+7}], v[{W3+4*t}:{W3+4*t+3}], v[{DQ+4*t}:{DQ+4*t+3}]")
    pump("wb5")
    e(f"""
    s_lshl_b32 s91, s3, 9
    s_add_u32 s91, s91, {L_RQ}
    v_lshlrev_b32 v{T0}, 5, v{V_LANE}
    v_add_u32 v{T0}, s91, v{T0}
    s_mov_b64 exec, 0xffff
    """)
    for u in range(4):
        e(f"ds_write2_b32 v{T0}, v{DQ+8*u}, v{DQ+8*u+4} offset0:{2*u} offset1:{2*u+1}")
    lab = e.label("L_qpub")
    counter_last(e, 4, 7, lab)
    e(f"v_lshlrev_b32 v{T0}, 3, v{V_LANE}")
    for v in range(8):
        e(f"ds_read_b64 v[{Z+2*v}:{Z+2*v+1}], v{T0} offset:{L_RQ + 512*v}")
    e("s_waitcnt lgkmcnt(0)")
    e(f"v_add_f32 v{Z}, v{Z}, v{Z+2}\nv_add_f32 v{Z+1}, v{Z+1}, v{Z+3}")
    for v in range(2, 8):
        e(f"v_add_f32 v{Z}, v{Z}, v{Z+2*v}\nv_add_f32 v{Z+1}, v{Z+1}, v{Z+2*v+1}")
    tag(e, Z); tag(e, Z + 1)
    e(f"""
    s_lshl_b32 s91, s81, 9
    s_add_u32 s91, s91, {WS_Q}
    buffer_store_dwordx2 v[{Z}:{Z+1}], v{T0}, {WS}, s91 offen sc1
    {lab}:
    """)
    sts(e, cfg, 3)
    persist_setup(e, cfg)
    pump("wo0_3")
    e.wait_vm("wb7")
    transpose_unit(e, W1, W0)
    e(f"""
    ds_read_b128 v[{V_A}:{V_A+3}], v{P_A64R} offset:128
    s_waitcnt lgkmcnt(0)
    """)
    DB = 44
    for t in range(8):
        e(f"v_mfma_f32_16x16x32_bf16 v[{DB+4*t}:{DB+4*t+3}], v[{V_A}:{V_A+3}], v[{W0+4*t}:{W0+4*t+3}], 0")
    pump("wo0_5")
    zsum64(e, DB, Z)
    e(f"""
    s_lshl_b32 s91, s3, 8
    v_lshlrev_b32 v{T0}, 5, v{V_LANE}
    v_add_u32 v{T0}, s91, v{T0}
    s_mov_b64 exec, 0xff
    ds_write_b128 v{T0}, v[{Z}:{Z+3}] offset:{L_RB}
    ds_write_b128 v{T0}, v[{Z+4}:{Z+7}] offset:{L_RB+16}
    """)
    lab = e.label("L_bpub")
    counter_last(e, 8, 7, lab)
    e(f"v_lshlrev_b32 v{T0}, 2, v{V_LANE}")
    for v in range(8):
        e(f"ds_read_b32 v{Z+v}, v{T0} offset:{L_RB + 256*v}")
    e("s_waitcnt lgkmcnt(0)")
    e(f"v_add_f32 v{Z}, v{Z}, v{Z+1}")
    for v in range(2, 8): e(f"v_add_f32 v{Z}, v{Z}, v{Z+v}")
    tag(e, Z)
    e(f"""
    s_lshl_b32 s91, s81, 8
    s_add_u32 s91, s91, {WS_MODB}
    buffer_store_dword v{Z}, v{T0}, {WS}, s91 offen sc1
    {lab}:
    """)
    UR = 44
    pump("wg6")
    e.wait_vm("wo1_7")
    transpose_unit(e, W2, W0)
    transpose_unit(e, W3, W1)
    pump("wu6")
    e.wait_vm("wg7")
    transpose_unit(e, W4, W2)
    pump("wd6")
    e(f"v_lshl_add_u32 v{T0}, v{V_LANE}, 4, s63")
    e.wait_vm("wu7")
    for ee in range(8): e(f"ds_read_b128 v[{UR+4*ee}:{UR+4*ee+3}], v{T0} offset:{ee*1024}")
    pump("wd7")
    e.wait_vm_n(2)
    modb_loads(e, True)
    e("s_waitcnt lgkmcnt(0)")
    transpose_unit(e, UR, W3)
    e.wait_vm("wd7")
    for ee in range(8): e(f"ds_read_b128 v[{UR+4*ee}:{UR+4*ee+3}], v{T0} offset:{8192 + ee*1024}")
    e("s_waitcnt lgkmcnt(0)")
    transpose_unit(e, UR, W4)
    e("s_mov_b32 s61, s11")
    sts(e, cfg, 4)
    post_chain(e, cfg)
    yield "done"

def post_chain(e, cfg):
    Z = 76
    WS = f"s[{S_WS}:{S_WS+3}]"
    sp = e.label("L_modb"); ok = e.label("L_modbok")
    e.wait_vm("MB5")
    check(e, T0, [P_GA, P_SB, P_CB1, P_GB])
    e(f"v_cmp_eq_u32 s[82:83], 0, v3\ns_or_b64 vcc, vcc, s[82:83]\ns_cbranch_vccz {ok}\n{sp}:\ns_sleep 2")
    modb_loads(e, False)
    e("s_waitcnt vmcnt(0)")
    check(e, T0, [P_GA, P_SB, P_CB1, P_GB])
    e(f"v_cmp_eq_u32 s[82:83], 0, v3\ns_or_b64 vcc, vcc, s[82:83]\ns_cbranch_vccz {ok}")
    spin_guard(e, sp)
    e(f"{ok}:")
    e.vm = []
    e(f"""
    v_readfirstlane_b32 s91, v3
    s_nop 1
    v_cmp_ne_u32 vcc, s91, v3
    s_nop 1
    s_cmp_eq_u64 vcc, 0
    s_cselect_b32 s98, {0 if cfg.FORCE_SLOW else 1}, 0
    """)
    e(f"v_add_f32 v{P_CB1}, 1.0, v{P_CB1}\nv_lshlrev_b32 v{P_X}, 16, v{P_X}")
    e(f"""
    s_lshr_b32 s62, s60, 1
    s_mul_i32 s62, s62, 112
    s_and_b32 s63, s60, 1
    s_lshl_b32 s63, s63, 1
    s_add_u32 s62, s62, s63
    s_lshr_b32 s63, s3, 2
    s_add_u32 s62, s62, s63
    s_lshr_b32 s88, s60, 1
    s_mul_i32 s88, s88, {28*128}
    s_and_b32 s63, s60, 1
    s_lshl_b32 s63, s63, 1
    s_lshr_b32 s89, s3, 2
    s_add_u32 s63, s63, s89
    s_lshl_b32 s63, s63, 4
    s_add_u32 s88, s88, s63
    s_add_u32 s88, s88, {WS_ML}
    s_lshl_b32 s62, s62, 9
    s_and_b32 s63, s3, 3
    s_lshl_b32 s63, s63, 7
    s_add_u32 s62, s62, s63
    s_add_u32 s62, s62, {WS_PART}
    s_add_u32 s63, s62, 16384
    s_add_u32 s89, s62, 32768
    s_add_u32 s90, s62, 49152
    v_lshrrev_b32 v{T0}, 3, v{V_LANE}
    v_and_b32 v{T1}, 7, v{V_LANE}
    v_lshlrev_b32 v{T1}, 4, v{T1}
    v_lshl_add_u32 v{P_PV}, v{T0}, 11, v{T1}
    v_lshlrev_b32 v{P_MV}, 7, v{T0}
    v_lshrrev_b32 v{T0}, 4, v{V_LANE}
    v_and_b32 v{T1}, 15, v{V_LANE}
    v_lshlrev_b32 v{T1}, 4, v{T1}
    v_lshl_add_u32 v{P_XV}, v{T0}, 11, v{T1}
    s_lshl_b32 s91, s3, 8
    v_add_u32 v{P_XV}, s91, v{P_XV}
    v_lshrrev_b32 v{T0}, 2, v{V_LANE}
    v_and_b32 v{T1}, 3, v{V_LANE}
    v_lshlrev_b32 v{T1}, 4, v{T1}
    s_lshl_b32 s91, s81, 6
    v_add_u32 v{T1}, s91, v{T1}
    v_lshl_add_u32 v{P_FV}, v{T0}, 11, v{T1}
    s_lshl_b32 s8, s3, 10
    s_add_u32 s8, s8, {L_RP1}
    s_lshl_b32 s9, s60, 11
    s_lshl_b32 s91, s61, 10
    s_add_u32 s9, s9, s91
    s_add_u32 s9, s9, {WS_X1P}
    s_lshl_b32 s10, s3, 3
    s_add_u32 s10, s10, {L_STA2}
    s_lshl_b32 s11, s3, 9
    s_add_u32 s11, s11, {L_RGU}
    s_lshl_b32 s12, s81, 11
    s_lshl_b32 s91, s3, 8
    s_add_u32 s12, s12, s91
    s_add_u32 s12, s12, {WS_FFP}
    s_cmp_lt_u32 s81, 28
    s_cselect_b32 s12, s12, {OOB}
    s_mov_b32 s13, {WS_X1P}
    s_mov_b32 s17, {WS_X1P + 8192}
    s_mov_b32 s18, {WS_X1P + 16384}
    s_mov_b32 s19, {WS_X1P + 24576}
    s_mov_b32 s14, {WS_FFP}
    s_mov_b32 s15, {WS_FFP + 32768}
    """)
    U1G, U2G, U1U, U2U = 2, 3, 7, 18
    e(f"""
    v_cvt_pk_bf16_f32 v{T0}, v{P_CB1}, v{P_CB1}
    v_cvt_pk_bf16_f32 v{T1}, v{P_SB}, v{P_SB}
    ds_write_b16 v{P_WH2}, v{T0} offset:64
    ds_write_b16 v{P_WH2}, v{T1} offset:192
    v_bfe_u32 v{T0}, v{V_LANE}, 1, 1
    v_lshl_add_u32 v{T0}, v{T0}, 7, v{P_A64R}
    ds_read_b128 v[{V_A}:{V_A+3}], v{T0} offset:64
    s_waitcnt lgkmcnt(0)
    """)
    for t in range(8):
        e(f"v_mfma_f32_16x16x32_bf16 v[{32+4*t}:{32+4*t+3}], v[{V_A}:{V_A+3}], v[{W2+4*t}:{W2+4*t+3}], 0")
    for t in range(8):
        e(f"v_mfma_f32_16x16x32_bf16 v[{64+4*t}:{64+4*t+3}], v[{V_A}:{V_A+3}], v[{W3+4*t}:{W3+4*t+3}], 0")
    e(f"s_mul_i32 s91, s3, 16384\ns_add_u32 s91, s91, {L_STG}\nv_lshl_add_u32 v{T0}, v{V_LANE}, 5, s91")
    for k, (D, r0) in enumerate(((32, 0), (32, 2), (64, 0), (64, 2))):
        for half in range(2):
            for t in range(4):
                tt = 4 * half + t
                e(f"v_add_f32_dpp v{28+t}, v{D+4*tt+r0+1}, v{D+4*tt+r0} row_shl:8 row_mask:0xf bank_mask:0xf")
            e(f"s_mov_b64 exec, 0xff\nds_write_b128 v{T0}, v[28:31] offset:{256*k + 16*half}\ns_mov_b64 exec, -1\ns_nop 1")
    e(f"v_lshlrev_b32 v{T0}, 2, v{V_LANE}\nv_add_u32 v{T0}, {L_STG}, v{T0}\nv_add_u32 v{T1}, 65536, v{T0}\ns_waitcnt lgkmcnt(0)\ns_barrier")
    for k, U in enumerate((U1G, U2G, U1U, U2U)):
        for v in range(8):
            e(f"ds_read_b32 v{32+v}, v{T0} offset:{(16384*v + 256*k) % 65536}" if 16384*v + 256*k < 65536 else f"ds_read_b32 v{32+v}, v{T1} offset:{16384*v + 256*k - 65536}")
        if k == 0: pass
        e("s_waitcnt lgkmcnt(0)")
        e(f"v_add_f32 v{U}, v32, v33")
        for v in range(2, 8): e(f"v_add_f32 v{U}, v{U}, v{32+v}")
    if cfg.WARM:
        for i, sb in enumerate(("s13", "s17", "s18", "s19")):
            e(f"buffer_load_dwordx4 v[{64+4*i}:{64+4*i+3}], v{P_XV}, {WS}, {sb} offen sc1")
        e(f"buffer_load_dwordx4 v[80:83], v{P_FV}, {WS}, s14 offen sc1")
        e(f"buffer_load_dwordx4 v[84:87], v{P_FV}, {WS}, s15 offen sc1")
        e(f"buffer_load_ushort v88, v{P_OUTV}, s[{S_OUT}:{S_OUT+3}], 0 offen")
        e("s_waitcnt vmcnt(0)")
    DT, ML = 28, 44
    for r in range(4): e(f"v_mov_b32 v{DT+12+r}, s{S_TAU}")
    e(f"v_mov_b32 v{ML+12}, 0xff7fff00\nv_mov_b32 v{ML+13}, s{S_TAU}\nv_mov_b32 v{ML+14}, s{S_TAU}\nv_mov_b32 v{ML+15}, s{S_TAU}")
    tag(e, ML + 12)
    sp = e.label("L_ml"); ok = e.label("L_mlok")
    e(f"{sp}:")
    for i in range(3):
        e(f"buffer_load_dwordx4 v[{ML+4*i}:{ML+4*i+3}], v{P_MV}, {WS}, s88 offen offset:{1024*i} sc1")
    e(f"""
    s_mov_b32 exec_hi, 0
    buffer_load_dwordx4 v[{ML+12}:{ML+15}], v{P_MV}, {WS}, s88 offen offset:3072 sc1
    s_mov_b32 exec_hi, -1
    s_waitcnt vmcnt(0)
    """)
    check(e, T0, range(ML, ML + 16), T1)
    e(f"s_cbranch_vccz {ok}\ns_sleep 4")
    spin_guard(e, sp)
    e(f"{ok}:")
    m = [ML + 4 * i for i in range(4)]
    e(f"""
    v_max3_f32 v{T0}, v{m[0]}, v{m[1]}, v{m[2]}
    v_max_f32 v{T0}, v{T0}, v{m[3]}
    v_max_f32_dpp v{T0}, v{T0}, v{T0} row_ror:8 row_mask:0xf bank_mask:0xf
    """)
    xrow(e, "v_max_f32", T0, T1, 16)
    xrow(e, "v_max_f32", T0, T1, 32)
    for i in range(4): e(f"v_sub_f32 v{m[i]}, v{m[i]}, v{T0}")
    for i in range(4): e(f"v_exp_f32 v{m[i]}, v{m[i]}")
    e(f"v_mul_f32 v{T2}, v{m[0]}, v{m[0]+1}")
    for i in range(1, 4): e(f"v_fmac_f32 v{T2}, v{m[i]}, v{m[i]+1}")
    e(f"v_add_f32_dpp v{T2}, v{T2}, v{T2} row_ror:8 row_mask:0xf bank_mask:0xf")
    xrow(e, "v_add_f32", T2, T1, 16)
    xrow(e, "v_add_f32", T2, T1, 32)
    e(f"v_rcp_f32 v{T2}, v{T2}")
    for i in range(4): e(f"v_mul_f32 v{m[i]}, v{m[i]}, v{T2}")
    sts(e, cfg, 5)
    sp = e.label("L_hopA"); ok = e.label("L_hopAok")
    e(f"{sp}:")
    for i, sb in enumerate(("s62", "s63", "s89")):
        e(f"buffer_load_dwordx4 v[{DT+4*i}:{DT+4*i+3}], v{P_PV}, {WS}, {sb} offen sc1")
    e(f"""
    s_mov_b32 exec_hi, 0
    buffer_load_dwordx4 v[{DT+12}:{DT+15}], v{P_PV}, {WS}, s90 offen sc1
    s_mov_b32 exec_hi, -1
    s_waitcnt vmcnt(0)
    """)
    check(e, T0, range(DT, DT + 16), T1)
    e(f"s_cbranch_vccz {ok}")
    if cfg.SLEEP_A: e(f"s_sleep {cfg.SLEEP_A}")
    spin_guard(e, sp)
    e(f"{ok}:")
    sts(e, cfg, 6)
    AC = 60
    for r in range(4): e(f"v_mul_f32 v{AC+r}, v{m[0]}, v{DT+r}")
    for i in range(1, 4):
        for r in range(4): e(f"v_fmac_f32 v{AC+r}, v{m[i]}, v{DT+4*i+r}")
    rs4(e, AC)
    e(f"""
    v_add_f32_dpp v{AC}, v{AC}, v{AC} row_ror:8 row_mask:0xf bank_mask:0xf
    v_cvt_pk_bf16_f32 v{AC}, v{AC}, v{AC}
    ds_write_b16 v{P_WLW1}, v{AC}
    ds_read_b128 v[{V_A}:{V_A+3}], v{P_A128R}
    v_lshl_add_u32 v{T0}, v{V_LANE}, 5, s8
    s_waitcnt lgkmcnt(0)
    """)
    DP = 32
    for cb in range(2):
        for t in range(8):
            d = DP + 4 * (8 * cb + t); b = W0 + 32 * cb + 4 * t
            e(f"v_mfma_f32_16x16x32_bf16 v[{d}:{d+3}], v[{V_A}:{V_A+3}], v[{b}:{b+3}], 0")
    e("s_mov_b64 exec, 0xffff")
    for cb in range(2):
        for u in range(4):
            d = DP + 4 * (8 * cb + 2 * u)
            e(f"ds_write2_b32 v{T0}, v{d}, v{d+4} offset0:{128*cb+2*u} offset1:{128*cb+2*u+1}")
    e(f"""
    s_mov_b64 exec, -1
    v_lshrrev_b32 v{T0}, 3, v{V_LANE}
    v_and_b32 v{T1}, 7, v{V_LANE}
    v_lshlrev_b32 v{T1}, 4, v{T1}
    v_lshl_add_u32 v{T0}, v{T0}, 10, v{T1}
    s_lshl_b32 s91, s3, 7
    v_add_u32 v{T0}, s91, v{T0}
    v_lshrrev_b32 v{T2}, 4, v{V_LANE}
    v_and_b32 v29, 1, v{T2}
    v_lshlrev_b32 v29, 3, v29
    v_lshrrev_b32 v{T2}, 1, v{T2}
    v_lshl_add_u32 v{T2}, v{T2}, 2, v29
    v_add3_u32 v{T2}, v{T2}, v{T1}, s91
    s_waitcnt lgkmcnt(0)
    s_barrier
    ds_read_b128 v[28:31], v{T0} offset:{L_RP1}
    s_waitcnt lgkmcnt(0)
    """)
    rs4(e, 28)
    e(f"v_add_f32_dpp v28, v28, v28 row_ror:8 row_mask:0xf bank_mask:0xf")
    tag(e, 28)
    store_mode(e, f"buffer_store_dword v28, v{T2}, {WS}, s9 offen {{pol}}")
    sts(e, cfg, 7)
    if cfg.DELAY:
        for _ in range(cfg.DELAY // 64): e("s_nop 15\ns_nop 15\ns_nop 15\ns_nop 15")
    XD = 28
    sp = e.label("L_hopB"); ok = e.label("L_hopBok")
    e(f"{sp}:")
    for i, sb in enumerate(("s13", "s17", "s18", "s19")):
        e(f"buffer_load_dwordx4 v[{XD+4*i}:{XD+4*i+3}], v{P_XV}, {WS}, {sb} offen sc1")
    e("s_waitcnt vmcnt(0)")
    check(e, T0, range(XD, XD + 16), T1)
    e(f"s_cbranch_vccz {ok}")
    if cfg.SLEEP_B: e(f"s_sleep {cfg.SLEEP_B}")
    spin_guard(e, sp)
    e(f"{ok}:")
    e.vm = []
    sts(e, cfg, 8)
    for r in range(4):
        e(f"v_add_f32 v{XD+r}, v{XD+r}, v{XD+4+r}\nv_add_f32 v{XD+8+r}, v{XD+8+r}, v{XD+12+r}")
    for r in range(4): e(f"v_add_f32 v{XD+r}, v{XD+r}, v{XD+8+r}")
    rs4(e, XD)
    X1 = 44
    e(f"""
    v_fma_f32 v{X1}, v{P_GA}, v{XD}, v{P_X}
    v_mul_f32 v{T2}, v{X1}, v{P_CB1}
    v_mov_b32 v{T0}, v{X1}
    v_mul_f32 v{T1}, v{X1}, v{X1}
    v_cvt_pk_bf16_f32 v{T2}, v{T2}, v{T2}
    ds_write_b16 v{P_WH2}, v{T2} offset:64
    ds_read_b128 v[{V_A}:{V_A+3}], v{P_A64R} offset:64
    ds_write_b32 v{P_COL4}, v{X1} offset:{L_X1}
    v_permlane32_swap_b32 v{T0}, v{T1}
    v_add_f32 v{T0}, v{T0}, v{T1}
    """)
    xrow(e, "v_add_f32", T0, T1, 16)
    e("s_waitcnt lgkmcnt(1)")
    mf = [f"v_mfma_f32_16x16x32_bf16 v[{32+4*t}:{32+4*t+3}], v[{V_A}:{V_A+3}], v[{W2+4*t}:{W2+4*t+3}], 0" for t in range(8)] + \
         [f"v_mfma_f32_16x16x32_bf16 v[{64+4*t}:{64+4*t+3}], v[{V_A}:{V_A+3}], v[{W3+4*t}:{W3+4*t+3}], 0" for t in range(8)]
    for n, steps in enumerate((1, 2, 4, 8)):
        e(mf[2 * n]); e(mf[2 * n + 1])
        e(f"v_add_f32_dpp v{T0}, v{T0}, v{T0} row_ror:{steps} row_mask:0xf bank_mask:0xf")
    for n in range(8, 16): e(mf[n])
    e(f"""
    v_lshrrev_b32 v{T1}, 5, v{V_LANE}
    v_lshl_add_u32 v{T1}, v{T1}, 2, s10
    s_mov_b32 exec_lo, 1
    s_mov_b32 exec_hi, 1
    ds_write_b32 v{T1}, v{T0}
    s_mov_b64 exec, -1
    v_lshl_add_u32 v{T0}, v{V_LANE}, 5, s11
    """)
    zsum64(e, 32, 32)
    zsum64(e, 64, 64)
    e(f"""
    s_mov_b64 exec, 0xff
    ds_write_b128 v{T0}, v[32:35]
    ds_write_b128 v{T0}, v[36:39] offset:16
    ds_write_b128 v{T0}, v[64:67] offset:256
    ds_write_b128 v{T0}, v[68:71] offset:272
    s_mov_b64 exec, -1
    v_lshlrev_b32 v{T0}, 2, v{V_LANE}
    v_add_u32 v{T0}, {L_RGU}, v{T0}
    v_mov_b32 v{T2}, 0
    s_waitcnt lgkmcnt(0)
    s_barrier
    """)
    SZ, GU = 28, 48
    for k in range(4):
        e(f"ds_read_b128 v[{SZ+4*k}:{SZ+4*k+3}], v{T2} offset:{L_STA2+16*k}")
    for v in range(8):
        e(f"ds_read2st64_b32 v[{GU+2*v}:{GU+2*v+1}], v{T0} offset0:{2*v} offset1:{2*v+1}")
    e(f"ds_read_b32 v44, v{P_COLF4} offset:{L_X1}")
    e(f"v_lshlrev_b32 v{T1}, 1, v{V_LANE}\nv_add_u32 v{T1}, s16, v{T1}")
    e("s_waitcnt lgkmcnt(9)")
    e(f"v_add_f32 v{T0}, v{SZ}, v{SZ+2}\nv_add_f32 v{T2}, v{SZ+1}, v{SZ+3}")
    for k in range(4, 16, 4):
        e(f"v_add_f32 v{SZ+k}, v{SZ+k}, v{SZ+k+2}\nv_add_f32 v{SZ+k+1}, v{SZ+k+1}, v{SZ+k+3}")
    e(f"v_add_f32 v{T0}, v{T0}, v{SZ+4}\nv_add_f32 v{T2}, v{T2}, v{SZ+5}\nv_add_f32 v{SZ+8}, v{SZ+8}, v{SZ+12}\nv_add_f32 v{SZ+9}, v{SZ+9}, v{SZ+13}")
    e(f"v_add_f32 v{T0}, v{T0}, v{SZ+8}\nv_add_f32 v{T2}, v{T2}, v{SZ+9}")
    e(f"""
    v_mul_f32 v{T0}, {f32(1/512)}, v{T0}
    v_mul_f32 v{T2}, {f32(1/512)}, v{T2}
    v_fma_f32 v{T2}, -v{T0}, v{T0}, v{T2}
    v_add_f32 v{T2}, {f32(1e-5)}, v{T2}
    v_rsq_f32 v{T2}, v{T2}
    s_waitcnt lgkmcnt(1)
    """)
    for v in range(0, 8, 2):
        e(f"v_add_f32 v{GU+2*v}, v{GU+2*v}, v{GU+2*v+2}\nv_add_f32 v{GU+2*v+1}, v{GU+2*v+1}, v{GU+2*v+3}")
    e(f"v_add_f32 v{GU}, v{GU}, v{GU+4}\nv_add_f32 v{GU+1}, v{GU+1}, v{GU+5}")
    e(f"v_add_f32 v{GU+8}, v{GU+8}, v{GU+12}\nv_add_f32 v{GU+9}, v{GU+9}, v{GU+13}")
    e(f"v_add_f32 v{GU}, v{GU}, v{GU+8}\nv_add_f32 v{GU+1}, v{GU+1}, v{GU+9}")
    e(f"""
    v_fma_f32 v{GU}, -v{T0}, v{U1G}, v{GU}
    v_fma_f32 v{GU+1}, -v{T0}, v{U1U}, v{GU+1}
    v_fma_f32 v{GU}, v{GU}, v{T2}, v{U2G}
    v_fma_f32 v{GU+1}, v{GU+1}, v{T2}, v{U2U}
    v_mul_f32 v{T0}, {f32(-LOG2E)}, v{GU}
    v_exp_f32 v{T0}, v{T0}
    v_mul_f32 v{GU}, v{GU}, v{GU+1}
    v_add_f32 v{T0}, 1.0, v{T0}
    v_rcp_f32 v{T0}, v{T0}
    v_mul_f32 v{T0}, v{GU}, v{T0}
    v_cvt_pk_bf16_f32 v{T0}, v{T0}, v{T0}
    ds_write_b16 v{T1}, v{T0} offset:320
    ds_read_b128 v[{V_A}:{V_A+3}], v{P_A64R} offset:320
    v_lshrrev_b32 v{T0}, 3, v{V_LANE}
    v_and_b32 v{T1}, 7, v{V_LANE}
    v_lshlrev_b32 v{T1}, 5, v{T1}
    v_lshl_add_u32 v{T0}, v{T0}, 4, v{T1}
    s_waitcnt lgkmcnt(0)
    """)
    DD = 64
    for t in range(8):
        e(f"v_mfma_f32_16x16x32_bf16 v[{DD+4*t}:{DD+4*t+3}], v[{V_A}:{V_A+3}], v[{W4+4*t}:{W4+4*t+3}], 0")
    zsum64(e, DD, DD)
    for r in range(4):
        e(f"v_mov_b32_dpp v{DD+r}, v{DD+4+r} row_shr:8 row_mask:0xf bank_mask:0xc")
    for r in range(4): tag(e, DD + r)
    e("s_mov_b64 exec, 0xffff")
    store_mode(e, f"buffer_store_dwordx4 v[{DD}:{DD+3}], v{T0}, {WS}, s12 offen {{pol}}")
    e("s_mov_b64 exec, -1")
    e("L_final:")
    e("s_waitcnt lgkmcnt(0)")
    sts(e, cfg, 9)
    lab_end = e.label("L_svc_end")
    e(f"s_cmp_lg_u32 s3, 0\ns_cbranch_scc1 {lab_end}")
    FD = 28
    for r in range(4): e(f"v_mov_b32 v{FD+4+r}, s{S_TAU}")
    sp = e.label("L_hopC"); ok = e.label("L_hopCok")
    e(f"""
    {sp}:
    buffer_load_dwordx4 v[{FD}:{FD+3}], v{P_FV}, {WS}, s14 offen sc1
    s_mov_b32 exec_hi, 0xffff
    buffer_load_dwordx4 v[{FD+4}:{FD+7}], v{P_FV}, {WS}, s15 offen sc1
    s_mov_b32 exec_hi, -1
    s_waitcnt vmcnt(0)
    """)
    check(e, T0, range(FD, FD + 8), T1)
    e(f"s_cbranch_vccz {ok}")
    if cfg.SLEEP_C: e(f"s_sleep {cfg.SLEEP_C}")
    spin_guard(e, sp)
    e(f"{ok}:")
    sts(e, cfg, 10)
    for r in range(4): e(f"v_add_f32 v{FD+r}, v{FD+r}, v{FD+4+r}")
    rs4(e, FD)
    e(f"""
    v_add_f32_dpp v{FD}, v{FD}, v{FD} row_ror:4 row_mask:0xf bank_mask:0xf
    v_add_f32_dpp v{FD}, v{FD}, v{FD} row_ror:8 row_mask:0xf bank_mask:0xf
    v_fma_f32 v{FD}, v{P_GB}, v{FD}, v44
    v_cvt_pk_bf16_f32 v{FD}, v{FD}, v{FD}
    buffer_store_short v{FD}, v{P_OUTV}, s[{S_OUT}:{S_OUT+3}], 0 offen
    """)
    sts(e, cfg, 11)
    if getattr(cfg, "DBGT", 0):
        e(f"""
        s_waitcnt vmcnt(0)
        s_memrealtime s[96:97]
        s_waitcnt lgkmcnt(0)
        s_sub_u32 s96, s96, s101
        v_mov_b32 v4, s96
        s_lshl_b32 s91, s81, 2
        v_mov_b32 v5, s91
        v_cmp_gt_u32 vcc, 32, v5
        s_mov_b64 exec, 1
        s_cmp_ge_u32 s81, 6
        s_cbranch_scc1 {lab_end}
        buffer_store_dword v4, v5, s[{S_DBG}:{S_DBG+3}], 0 offen sc1
        """)
    e(f"{lab_end}:")
    if cfg.TS:
        e(f"""
        s_lshl_b32 s91, s81, 3
        s_add_u32 s91, s91, s3
        s_lshl_b32 s91, s91, 7
        s_add_u32 s91, s91, {WS_TS + 0x10000}
        v_lshlrev_b32 v{T0}, 2, v{V_LANE}
        s_mov_b32 exec_hi, 0
        buffer_store_dword v0, v{T0}, {WS}, s91 offen
        """)
    e("s_endpgm")
```

```python
from kern import *

S_WS, S_DBG, S_X, S_C, S_WMOD, S_WQ, S_WO, S_WG, S_WU, S_WD, S_OUT = 36, 40, 44, 48, 52, 56, 4, 64, 68, 72, 84
L_SVA  = 0
L_CNT  = 1024
L_STAT = 2048
L_STA2 = 2176
L_RA1  = 2304
L_RQ   = 4352
L_RB   = 8448
L_RP1  = 10496
L_RGU  = 18688
L_X1   = 22784
L_WL   = 24832
L_STG  = 24832 + 4096
SVC_LDS = L_STG + 8 * 16384

V_LANE, V_TAU2, V_N = 1, 2, 3
T0, T1, T2, T3 = 4, 5, 6, 7
V_A = 8
P_WLW1, P_WH2, P_COL4, P_COLF4 = 12, 13, 14, 15
P_GA, P_CB1, P_SB, P_X, P_GB = 16, 17, 18, 19, 20
P_PV, P_MV, P_XV, P_FV, P_A64R, P_A128R, P_OUTV = 21, 22, 23, 24, 25, 26, 27
SC = 28
W0, W1, W2, W3, W4 = 96, 128, 160, 192, 224

def unit64_voff(e, dst, stride_bytes, t0, t1):
    e(f"""
    v_lshrrev_b32 v{t0}, 4, v{V_LANE}
    v_lshlrev_b32 v{t0}, 3, v{t0}
    v_bfe_u32 v{t1}, v{V_LANE}, 3, 1
    v_lshlrev_b32 v{t1}, 5, v{t1}
    v_add_u32 v{t0}, v{t0}, v{t1}
    v_mul_u32_u24 v{t0}, {stride_bytes}, v{t0}
    v_and_b32 v{t1}, 7, v{V_LANE}
    v_lshlrev_b32 v{t1}, 4, v{t1}
    v_add_u32 v{dst}, v{t0}, v{t1}
    """)

def unit128_voff(e, dst, stride_bytes, t0, t1):
    e(f"""
    v_lshrrev_b32 v{t0}, 4, v{V_LANE}
    v_mul_u32_u24 v{t0}, {8*stride_bytes}, v{t0}
    v_and_b32 v{t1}, 15, v{V_LANE}
    v_lshlrev_b32 v{t1}, 4, v{t1}
    v_add_u32 v{dst}, v{t0}, v{t1}
    """)

class Stream:
    def __init__(self, e, depth): self.e, self.d = e, depth
    def load(self, dst, voff, srdq, sbase, byte_off, tag):
        e = self.e
        e.wait_vm_n(self.d - 1)
        if byte_off < 4096:
            e.vmem(f"buffer_load_dwordx4 v[{dst}:{dst+3}], v{voff}, s[{srdq}:{srdq+3}], {sbase} offen offset:{byte_off} nt", tag)
        else:
            e(f"s_add_u32 s93, {sbase}, {byte_off}")
            e.vmem(f"buffer_load_dwordx4 v[{dst}:{dst+3}], v{voff}, s[{srdq}:{srdq+3}], s93 offen nt", tag)

def zsum64(e, D, Z):
    for t in range(8):
        e(f"v_add_f32_dpp v{Z+t}, v{D+4*t+1}, v{D+4*t} row_shl:8 row_mask:0xf bank_mask:0xf")

def rs4(e, a):
    e(f"v_permlane32_swap_b32 v{a}, v{a+1}")
    e(f"v_permlane32_swap_b32 v{a+2}, v{a+3}")
    e(f"v_add_f32 v{a}, v{a}, v{a+1}")
    e(f"v_add_f32 v{a+2}, v{a+2}, v{a+3}")
    e(f"v_permlane16_swap_b32 v{a}, v{a+2}")
    e(f"v_add_f32 v{a}, v{a}, v{a+2}")

def store_mode(e, text):
    lf = e.label("L_fast"); le = e.label("L_stend")
    e(f"s_cmp_eq_u32 s98, 1\ns_cbranch_scc1 {lf}")
    e(text.format(pol="sc1"))
    e(f"s_branch {le}\n{lf}:")
    e(text.format(pol=""))
    e(f"{le}:")
    e.vm.append("st")

def sts(e, cfg, k):
    if cfg.TS:
        e(f"s_memrealtime s[96:97]\ns_waitcnt lgkmcnt(0)\nv_writelane_b32 v0, s96, {k}")

def silu(e, dst, src, t):
    e(f"""
    v_mul_f32 v{t}, {f32(-LOG2E)}, v{src}
    v_exp_f32 v{t}, v{t}
    v_add_f32 v{t}, 1.0, v{t}
    v_rcp_f32 v{t}, v{t}
    v_mul_f32 v{dst}, v{src}, v{t}
    """)

DBG_OFF = [0]
def persist_setup(e, cfg):
    DBG_OFF[0] = 128 if getattr(cfg, 'DBGT', 0) else 0
    WS = f"s[{S_WS}:{S_WS+3}]"
    e(f"""
    v_lshrrev_b32 v{T0}, 4, v{V_LANE}
    v_and_b32 v{T1}, 1, v{T0}
    v_lshlrev_b32 v{T1}, 1, v{T1}
    v_lshrrev_b32 v{T2}, 1, v{T0}
    v_or_b32 v{T2}, v{T2}, v{T1}
    s_lshl_b32 s16, s3, 9
    s_add_u32 s16, s16, {L_WL}
    v_lshlrev_b32 v{P_A128R}, 4, v{T0}
    v_add_u32 v{P_A128R}, s16, v{P_A128R}
    v_and_b32 v{P_A64R}, 1, v{V_LANE}
    v_lshlrev_b32 v{P_A64R}, 6, v{P_A64R}
    v_add3_u32 v{P_A64R}, v{P_A64R}, v{P_A128R}, 0
    v_and_b32 v{T1}, 7, v{V_LANE}
    v_lshl_add_u32 v{T1}, v{T1}, 2, v{T2}
    v_lshlrev_b32 v{T1}, 1, v{T1}
    v_add_u32 v{P_WLW1}, s16, v{T1}
    v_and_b32 v{T1}, 15, v{V_LANE}
    v_lshl_add_u32 v{T1}, v{T1}, 2, v{T2}
    v_lshlrev_b32 v{T3}, 1, v{T1}
    v_add_u32 v{P_WH2}, s16, v{T3}
    s_lshl_b32 s91, s3, 6
    v_add_u32 v{T1}, s91, v{T1}
    v_lshlrev_b32 v{P_COL4}, 2, v{T1}
    v_lshlrev_b32 v{T3}, 1, v{T1}
    v_and_b32 v{T1}, 3, v{V_LANE}
    v_lshl_add_u32 v{T1}, v{T1}, 2, v{T2}
    s_lshl_b32 s91, s81, 4
    v_add_u32 v{T1}, s91, v{T1}
    v_lshlrev_b32 v{P_COLF4}, 2, v{T1}
    v_lshlrev_b32 v{T1}, 1, v{T1}
    v_and_b32 v{T0}, 12, v{V_LANE}
    v_cmp_eq_u32 vcc, 0, v{T0}
    v_mov_b32 v{P_OUTV}, {OOB}
    v_cndmask_b32 v{P_OUTV}, v{P_OUTV}, v{T1}, vcc
    s_mov_b32 s8, {WS_MODB}
    s_mov_b32 s9, {WS_MODB + 4096}
    v_mov_b32 v2, v{T3}
    v_and_b32 v92, 31, v{V_LANE}
    v_lshlrev_b32 v92, 2, v92
    """)

def modb_loads(e, track):
    WS = f"s[{S_WS}:{S_WS+3}]"
    L = [f"buffer_load_dword v{P_GA}, v{P_COL4}, {WS}, s8 offen sc1",
         f"buffer_load_dword v{P_SB}, v{P_COL4}, {WS}, s8 offen offset:2048 sc1",
         f"buffer_load_dword v{P_CB1}, v{P_COL4}, {WS}, s9 offen sc1",
         f"buffer_load_dword v{P_GB}, v{P_COLF4}, {WS}, s9 offen offset:2048 sc1",
         f"buffer_load_ushort v{P_X}, v2, s[{S_X}:{S_X+3}], 0 offen",
         f"buffer_load_dword v3, v92, s[{S_DBG}:{S_DBG+3}], 0 offen offset:{DBG_OFF[0]} sc1"]
    for k, t in enumerate(L):
        if track: e.vmem(t, f"MB{k}")
        else: e(t)

def counter_last(e, off, n, lab):
    e(f"""
    s_mov_b64 exec, 1
    v_mov_b32 v{T1}, {L_CNT + off}
    v_mov_b32 v{T2}, 1
    s_waitcnt lgkmcnt(0)
    ds_add_rtn_u32 v{T3}, v{T1}, v{T2}
    s_waitcnt lgkmcnt(0)
    v_readfirstlane_b32 s91, v{T3}
    s_mov_b64 exec, -1
    s_cmp_lg_u32 s91, {n}
    s_cbranch_scc1 {lab}
    """)

def service(e, cfg):
    D = cfg.D_SVC
    WS = f"s[{S_WS}:{S_WS+3}]"
    Z = 76
    pend = []
    def pump(upto_tag):
        while True:
            tag_, fn = pend.pop(0)
            e.wait_vm_n(D - 1)
            fn()
            if tag_ == upto_tag: break
    def rload(dst, voff, srdq, sbase, byte_off, tag_):
        def fn():
            if byte_off < 4096:
                e.vmem(f"buffer_load_dwordx4 v[{dst}:{dst+3}], v{voff}, s[{srdq}:{srdq+3}], {sbase} offen offset:{byte_off} nt", tag_)
            else:
                e(f"s_add_u32 s93, {sbase}, {byte_off}")
                e.vmem(f"buffer_load_dwordx4 v[{dst}:{dst+3}], v{voff}, s[{srdq}:{srdq+3}], s93 offen nt", tag_)
        pend.append((tag_, fn))
    def dma(voff, srdq, sbase, byte_off, lds_off, tag_):
        def fn():
            e(f"s_add_u32 s93, {sbase}, {byte_off}\ns_add_u32 s92, s63, {lds_off}\ns_mov_b32 m0, s92\ns_nop 0")
            e.vmem(f"buffer_load_dwordx4 v{voff}, s[{srdq}:{srdq+3}], s93 offen nt lds", tag_)
        pend.append((tag_, fn))
    e(f"""
    v_mov_b32 v4, {L_CNT}
    v_mov_b32 v6, 0
    v_mov_b32 v7, 0
    ds_write_b64 v4, v[6:7]
    ds_write_b64 v4, v[6:7] offset:8
    s_waitcnt lgkmcnt(0)
    """)
    tag_setup(e)
    e("s_barrier")
    e(f"s_mov_b32 s99, {cfg.SPIN}")
    srd(e, S_C, 26, 27, 1024)
    srd(e, S_WMOD, 28, 29, 512 * 3072 * 2)
    srd(e, S_WS, 34, 35, WS_SIZE)
    srd(e, S_X, 8, 9, 1024)
    srd(e, S_WQ, 14, 15, 512 * 4096 * 2)
    sts(e, cfg, 0)
    e(f"""
    s_and_b32 s83, s81, 15
    s_lshr_b32 s60, s81, 4
    s_lshl_b32 s88, s60, 12
    s_lshl_b32 s89, s83, 8
    s_add_u32 s88, s88, s89
    s_lshl_b32 s82, s3, 9
    s_add_u32 s82, s82, {L_WL}
    s_mov_b32 s94, 0x05040100
    s_mov_b32 s95, 0x07060302
    """)
    lab_noa1 = e.label("L_noa1i")
    e(f"s_cmp_ge_u32 s3, 4\ns_cbranch_scc1 {lab_noa1}")
    e(f"""
    s_lshl_b32 s61, s60, 8
    s_lshl_b32 s62, s3, 6
    s_add_u32 s61, s61, s62
    v_lshlrev_b32 v{T0}, 1, v{V_LANE}
    s_lshl_b32 s91, s61, 1
    buffer_load_ushort v22, v{T0}, s[{S_C}:{S_C+3}], s91 offen
    """)
    unit64_voff(e, 18, 6144, T1, T2)
    e(f"""
    s_mul_i32 s63, s61, 6144
    s_lshl_b32 s62, s83, 7
    s_add_u32 s63, s63, s62
    """)
    AR = 96
    for ee in range(8):
        if ee: e(f"s_add_u32 s63, s63, 6144")
        e(f"buffer_load_dwordx4 v[{AR+4*ee}:{AR+4*ee+3}], v18, s[{S_WMOD}:{S_WMOD+3}], s63 offen nt")
    sts(e, cfg, 16)
    e(f"{lab_noa1}:")
    sts(e, cfg, 18)
    c, x, XA = 16, 17, 32
    V_OQ, V_OB, V_OG, V_ODN, V_OW, FO = 18, 19, 21, 23, 24, 20
    e(f"""
    v_lshlrev_b32 v{T3}, 4, v{V_LANE}
    s_lshl_b32 s91, s3, 7
    v_lshlrev_b32 v{V_TAU2}, 1, v{V_LANE}
    v_add_u32 v{V_TAU2}, s91, v{V_TAU2}
    """)
    unit128_voff(e, V_OQ, 8192, T0, T1)
    e(f"""
    s_lshl_b32 s90, s3, 19
    s_lshl_b32 s91, s81, 8
    s_add_u32 s90, s90, s91
    """)
    e.vmem(f"buffer_load_dwordx4 v[{XA}:{XA+3}], v{T3}, s[{S_X}:{S_X+3}], 0 offen", "xa")
    e.vmem(f"buffer_load_ushort v{x}, v{V_TAU2}, s[{S_X}:{S_X+3}], 0 offen", "x")
    e.vmem(f"buffer_load_ushort v{c}, v{V_TAU2}, s[{S_C}:{S_C+3}], 0 offen", "c")
    for i in range(16):
        ks, ee = divmod(i, 8)
        rload(W3 + 4 * i, V_OQ, S_WQ, "s90", (32 * ks + ee) * 8192, f"wq{i}")
    pump("wq3")
    sts(e, cfg, 14)
    lab = e.label("L_a1done")
    e(f"s_cmp_ge_u32 s3, 4\ns_cbranch_scc1 {lab}")
    e("s_waitcnt vmcnt(7)")
    sts(e, cfg, 17)
    e("v_lshlrev_b32 v22, 16, v22")
    silu(e, 22, 22, T1)
    e(f"""
    v_cvt_pk_bf16_f32 v22, v22, v22
    v_lshl_add_u32 v{T0}, v{V_LANE}, 1, s82
    ds_write_b16 v{T0}, v22
    v_and_b32 v{T1}, 1, v{V_LANE}
    v_lshlrev_b32 v{T1}, 6, v{T1}
    v_lshrrev_b32 v{T2}, 4, v{V_LANE}
    v_lshl_add_u32 v{T1}, v{T2}, 4, v{T1}
    v_add_u32 v{T1}, s82, v{T1}
    ds_read_b128 v[{V_A}:{V_A+3}], v{T1}
    """)
    TB, DA = 44, 128
    transpose_unit(e, AR, TB)
    e("s_waitcnt lgkmcnt(0)")
    for t in range(8):
        e(f"v_mfma_f32_16x16x32_bf16 v[{DA+4*t}:{DA+4*t+3}], v[{V_A}:{V_A+3}], v[{TB+4*t}:{TB+4*t+3}], 0")
    zsum64(e, DA, Z)
    e(f"""
    s_lshl_b32 s91, s3, 8
    v_lshlrev_b32 v{T0}, 5, v{V_LANE}
    v_add_u32 v{T0}, s91, v{T0}
    s_mov_b64 exec, 0xff
    ds_write_b128 v{T0}, v[{Z}:{Z+3}] offset:{L_RA1}
    ds_write_b128 v{T0}, v[{Z+4}:{Z+7}] offset:{L_RA1+16}
    """)
    counter_last(e, 0, 3, lab)
    e(f"v_lshlrev_b32 v{T0}, 2, v{V_LANE}")
    for v in range(4):
        e(f"ds_read_b32 v{Z+v}, v{T0} offset:{L_RA1 + 256*v}")
    e("s_waitcnt lgkmcnt(0)")
    tag_finish(e)
    e(f"""
    v_add_f32 v{Z}, v{Z}, v{Z+1}
    v_add_f32 v{Z+2}, v{Z+2}, v{Z+3}
    v_add_f32 v{Z}, v{Z}, v{Z+2}
    """)
    tag(e, Z)
    e(f"buffer_store_dword v{Z}, v{T0}, {WS}, s88 offen sc1")
    e(f"s_sub_u32 s{S_TAU}, s{S_TAU}, 1")
    sts(e, cfg, 1)
    e(f"{lab}:")
    pump("wq7")
    srd(e, S_DBG, 32, 33, 256)
    srd(e, S_WO, 16, 17, 4096 * 512 * 2)
    srd(e, S_WG, 20, 21, 512 * 1792 * 2)
    srd(e, S_WU, 22, 23, 512 * 1792 * 2)
    srd(e, S_WD, 24, 25, 1792 * 512 * 2)
    srd(e, S_OUT, 30, 31, 1024)
    e("s_waitcnt lgkmcnt(0)")
    tag_finish(e)
    lab = e.label("L_xcc")
    e(f"""
    s_cmp_lg_u32 s3, 0
    s_cbranch_scc1 {lab}
    s_getreg_b32 s91, hwreg(HW_REG_XCC_ID)
    s_and_b32 s91, s91, 15
    s_add_u32 s91, s91, 1
    v_mov_b32 v{T1}, s91
    s_lshl_b32 s92, s81, 2
    v_mov_b32 v{T2}, s92
    s_mov_b64 exec, 1
    buffer_store_dword v{T1}, v{T2}, s[{S_DBG}:{S_DBG+3}], 0 offen offset:{128 if getattr(cfg, "DBGT", 0) else 0} sc1
    s_mov_b64 exec, -1
    {lab}:
    """)
    e.wait_vm("c")
    U = 36
    for k in range(4):
        e(f"v_lshlrev_b32 v{U+2*k}, 16, v{XA+k}\nv_and_b32 v{U+2*k+1}, 0xffff0000, v{XA+k}")
    e(f"v_add_f32 v{V_A}, v{U}, v{U+1}\nv_mul_f32 v{V_A+1}, v{U}, v{U}\nv_fmac_f32 v{V_A+1}, v{U+1}, v{U+1}")
    for k in range(2, 8):
        e(f"v_add_f32 v{V_A}, v{V_A}, v{U+k}\nv_fmac_f32 v{V_A+1}, v{U+k}, v{U+k}")
    e(f"v_permlane32_swap_b32 v{V_A}, v{V_A+1}\nv_add_f32 v{V_A}, v{V_A}, v{V_A+1}")
    xrow(e, "v_add_f32", V_A, T0, 16)
    allreduce16(e, "v_add_f32", V_A)
    e(f"""
    v_lshlrev_b32 v{c}, 16, v{c}
    v_lshlrev_b32 v{x}, 16, v{x}
    v_readlane_b32 s91, v{V_A}, 0
    v_readlane_b32 s92, v{V_A}, 32
    """)
    silu(e, c, c, T0)
    e(f"""
    v_mov_b32 v{T0}, {f32(1/512)}
    v_mul_f32 v{T1}, s91, v{T0}
    v_mul_f32 v{T2}, s92, v{T0}
    v_fma_f32 v{T2}, -v{T1}, v{T1}, v{T2}
    v_add_f32 v{T2}, {f32(1e-5)}, v{T2}
    v_rsq_f32 v{T2}, v{T2}
    v_sub_f32 v{V_N}, v{x}, v{T1}
    v_mul_f32 v{V_N}, v{V_N}, v{T2}
    v_cvt_pk_bf16_f32 v{c}, v{c}, v{c}
    v_lshl_add_u32 v{T0}, v{V_LANE}, 1, s82
    ds_write_b16 v{T0}, v{c} offset:128
    """)
    pump("wq15")
    sts(e, cfg, 15)
    e(f"v_lshlrev_b32 v{FO}, 1, v{V_TAU2}\ns_mov_b32 s89, 4096")
    def moda_loads(track):
        for k, (so, im) in enumerate((("0", 0), ("s89", 0), ("0", 2048), ("s89", 2048))):
            t = f"buffer_load_dword v{Z+k}, v{FO}, {WS}, {so} offen offset:{im} sc1"
            if track: e.vmem(t, f"MA{k}")
            else: e(t)
    e.wait_vm_n(D - 4)
    moda_loads(True)
    unit64_voff(e, V_OB, 6144, T0, T1)
    unit64_voff(e, V_OG, 3584, T0, T1)
    unit64_voff(e, V_ODN, 1024, T0, T1)
    unit128_voff(e, V_OW, 1024, T0, T1)
    e(f"""
    s_mul_i32 s90, s3, {64*6144}
    s_lshl_b32 s91, s81, 7
    s_add_u32 s90, s90, s91
    s_add_u32 s90, s90, 2048
    s_mul_i32 s61, s3, {64*3584}
    s_add_u32 s61, s61, s91
    s_lshl_b32 s62, s81, 16
    s_lshl_b32 s91, s3, 7
    s_add_u32 s62, s62, s91
    s_cmp_lt_u32 s81, 28
    s_cselect_b32 s61, s61, {OOB}
    s_cselect_b32 s62, s62, {OOB}
    s_lshr_b32 s60, s81, 1
    s_lshl_b32 s10, s60, 8
    s_lshl_b32 s63, s3, 5
    s_add_u32 s10, s10, s63
    s_lshl_b32 s10, s10, 10
    s_and_b32 s11, s81, 1
    s_lshl_b32 s63, s11, 9
    s_add_u32 s10, s10, s63
    s_mul_i32 s63, s3, 16384
    s_add_u32 s63, s63, {L_STG}
    """)
    if getattr(cfg, "NOBULK", 0):
        e(f"s_mov_b32 s61, {OOB}\ns_mov_b32 s62, {OOB}\ns_mov_b32 s10, {OOB}")
    for ee in range(8): rload(W1 + 4 * ee, V_OB, S_WMOD, "s90", ee * 6144, f"wb{ee}")
    for ee in range(8):
        for cb in range(2): rload(W2 + 32 * cb + 4 * ee, V_OW, S_WO, "s10", cb * 256 + ee * 1024, f"wo{cb}_{ee}")
    for ee in range(8): rload(W4 + 4 * ee, V_OG, S_WG, "s61", ee * 3584, f"wg{ee}")
    for ee in range(8): dma(V_OG, S_WU, "s61", ee * 3584, ee * 1024, f"wu{ee}")
    for ee in range(8): dma(V_ODN, S_WD, "s62", ee * 1024, 8192 + ee * 1024, f"wd{ee}")
    e.wait_vm("wq7")
    transpose_unit(e, W3, W2)
    pump("wb2")
    e.wait_vm("wq15")
    sts(e, cfg, 19)
    transpose_unit(e, W4, W3)
    e.wait_vm("MA3")
    sp = e.label("L_moda"); ok = e.label("L_modaok")
    check(e, T1, range(Z, Z + 4))
    e(f"s_cbranch_vccz {ok}\n{sp}:\ns_sleep 2")
    moda_loads(False)
    e("s_waitcnt vmcnt(0)")
    check(e, T1, range(Z, Z + 4))
    e(f"s_cbranch_vccz {ok}")
    spin_guard(e, sp)
    e(f"{ok}:")
    sts(e, cfg, 13)
    e(f"""
    v_add_f32 v{Z}, v{Z}, v{Z+1}
    v_add_f32 v{Z+2}, v{Z+2}, v{Z+3}
    v_add_f32 v{Z+2}, 1.0, v{Z+2}
    v_fma_f32 v{Z}, v{V_N}, v{Z+2}, v{Z}
    v_cvt_pk_bf16_f32 v{Z}, v{Z}, v{Z}
    v_lshl_add_u32 v{T0}, v{V_LANE}, 1, s82
    ds_write_b16 v{T0}, v{Z}
    v_lshrrev_b32 v{T0}, 4, v{V_LANE}
    v_lshl_add_u32 v{T0}, v{T0}, 4, s82
    ds_read_b128 v[{V_A}:{V_A+3}], v{T0}
    ds_read_b128 v[{V_A+4}:{V_A+7}], v{T0} offset:64
    s_waitcnt lgkmcnt(0)
    """)
    DQ = 44
    for t in range(8):
        e(f"v_mfma_f32_16x16x32_bf16 v[{DQ+4*t}:{DQ+4*t+3}], v[{V_A}:{V_A+3}], v[{W2+4*t}:{W2+4*t+3}], 0")
    for t in range(8):
        e(f"v_mfma_f32_16x16x32_bf16 v[{DQ+4*t}:{DQ+4*t+3}], v[{V_A+4}:{V_A+7}], v[{W3+4*t}:{W3+4*t+3}], v[{DQ+4*t}:{DQ+4*t+3}]")
    pump("wb5")
    e(f"""
    s_lshl_b32 s91, s3, 9
    s_add_u32 s91, s91, {L_RQ}
    v_lshlrev_b32 v{T0}, 5, v{V_LANE}
    v_add_u32 v{T0}, s91, v{T0}
    s_mov_b64 exec, 0xffff
    """)
    for u in range(4):
        e(f"ds_write2_b32 v{T0}, v{DQ+8*u}, v{DQ+8*u+4} offset0:{2*u} offset1:{2*u+1}")
    lab = e.label("L_qpub")
    counter_last(e, 4, 7, lab)
    e(f"v_lshlrev_b32 v{T0}, 3, v{V_LANE}")
    for v in range(8):
        e(f"ds_read_b64 v[{Z+2*v}:{Z+2*v+1}], v{T0} offset:{L_RQ + 512*v}")
    e("s_waitcnt lgkmcnt(0)")
    e(f"v_add_f32 v{Z}, v{Z}, v{Z+2}\nv_add_f32 v{Z+1}, v{Z+1}, v{Z+3}")
    for v in range(2, 8):
        e(f"v_add_f32 v{Z}, v{Z}, v{Z+2*v}\nv_add_f32 v{Z+1}, v{Z+1}, v{Z+2*v+1}")
    tag(e, Z); tag(e, Z + 1)
    e(f"""
    s_lshl_b32 s91, s81, 9
    s_add_u32 s91, s91, {WS_Q}
    buffer_store_dwordx2 v[{Z}:{Z+1}], v{T0}, {WS}, s91 offen sc1
    {lab}:
    """)
    sts(e, cfg, 3)
    persist_setup(e, cfg)
    pump("wo0_3")
    e.wait_vm("wb7")
    transpose_unit(e, W1, W0)
    e(f"""
    ds_read_b128 v[{V_A}:{V_A+3}], v{P_A64R} offset:128
    s_waitcnt lgkmcnt(0)
    """)
    DB = 44
    for t in range(8):
        e(f"v_mfma_f32_16x16x32_bf16 v[{DB+4*t}:{DB+4*t+3}], v[{V_A}:{V_A+3}], v[{W0+4*t}:{W0+4*t+3}], 0")
    pump("wo0_5")
    zsum64(e, DB, Z)
    e(f"""
    s_lshl_b32 s91, s3, 8
    v_lshlrev_b32 v{T0}, 5, v{V_LANE}
    v_add_u32 v{T0}, s91, v{T0}
    s_mov_b64 exec, 0xff
    ds_write_b128 v{T0}, v[{Z}:{Z+3}] offset:{L_RB}
    ds_write_b128 v{T0}, v[{Z+4}:{Z+7}] offset:{L_RB+16}
    """)
    lab = e.label("L_bpub")
    counter_last(e, 8, 7, lab)
    e(f"v_lshlrev_b32 v{T0}, 2, v{V_LANE}")
    for v in range(8):
        e(f"ds_read_b32 v{Z+v}, v{T0} offset:{L_RB + 256*v}")
    e("s_waitcnt lgkmcnt(0)")
    e(f"v_add_f32 v{Z}, v{Z}, v{Z+1}")
    for v in range(2, 8): e(f"v_add_f32 v{Z}, v{Z}, v{Z+v}")
    tag(e, Z)
    e(f"""
    s_lshl_b32 s91, s81, 8
    s_add_u32 s91, s91, {WS_MODB}
    buffer_store_dword v{Z}, v{T0}, {WS}, s91 offen sc1
    {lab}:
    """)
    UR = 44
    pump("wg6")
    e.wait_vm("wo1_7")
    transpose_unit(e, W2, W0)
    transpose_unit(e, W3, W1)
    pump("wg7")
    e.wait_vm_n(max(D - 6, 0))
    modb_loads(e, True)
    pump("wu5")
    e.wait_vm("wg7")
    transpose_unit(e, W4, W2)
    pump("wd3")
    modb_check(e, cfg)
    e(f"s_mul_i32 s91, s3, 16384\ns_add_u32 s91, s91, {L_STG}\nv_lshl_add_u32 v{T0}, v{V_LANE}, 4, s91")
    e.wait_vm("wu7")
    for ee in range(8): e(f"ds_read_b128 v[{UR+4*ee}:{UR+4*ee+3}], v{T0} offset:{ee*1024}")
    pump("wd7")
    e("s_waitcnt lgkmcnt(0)")
    transpose_unit(e, UR, W3)
    e("s_mov_b32 s61, s11")
    post_addresses(e, cfg)
    u_stage(e, cfg)
    ml_first(e, cfg)
    if cfg.WARM:
        for sb in ("s13", "s17", "s18", "s19"):
            e.vmem(f"buffer_load_dword v92, v{P_XV}, {WS}, {sb} offen sc1", "warm")
        e.vmem(f"buffer_load_dword v92, v{P_FV}, {WS}, s14 offen sc1", "warm")
        e.vmem(f"buffer_load_dword v92, v{P_FV}, {WS}, s15 offen sc1", "warm")
        e.vmem(f"buffer_load_ushort v92, v{P_OUTV}, s[{S_OUT}:{S_OUT+3}], 0 offen", "warm")
    if not cfg.LATE_DOWN:
        down_transpose(e)
    sts(e, cfg, 4)
    post_chain(e, cfg)
    yield "done"

ML_BASE = 76
def ml_loads(e, track):
    WS = f"s[{S_WS}:{S_WS+3}]"
    ML = ML_BASE
    L = [f"buffer_load_dwordx4 v[{ML+4*i}:{ML+4*i+3}], v{P_MV}, {WS}, s88 offen offset:{1024*i} sc1" for i in range(3)]
    for k, t in enumerate(L):
        if track: e.vmem(t, f"ML{k}")
        else: e(t)
    e("s_mov_b32 exec_hi, 0")
    t = f"buffer_load_dwordx4 v[{ML+12}:{ML+15}], v{P_MV}, {WS}, s88 offen offset:3072 sc1"
    if track: e.vmem(t, "ML3")
    else: e(t)
    e("s_mov_b32 exec_hi, -1")

def ml_first(e, cfg):
    ML = ML_BASE
    e(f"v_mov_b32 v{ML+12}, 0xff7fff00\nv_mov_b32 v{ML+13}, s{S_TAU}\nv_mov_b32 v{ML+14}, s{S_TAU}\nv_mov_b32 v{ML+15}, s{S_TAU}")
    tag(e, ML + 12)
    ml_loads(e, True)

def modb_check(e, cfg):
    sp = e.label("L_modb"); ok = e.label("L_modbok")
    e.wait_vm("MB5")
    check(e, T0, [P_GA, P_SB, P_CB1, P_GB])
    e(f"v_cmp_eq_u32 s[82:83], 0, v3\ns_or_b64 vcc, vcc, s[82:83]\ns_cbranch_vccz {ok}\n{sp}:\ns_sleep 2")
    modb_loads(e, False)
    e("s_waitcnt vmcnt(0)")
    check(e, T0, [P_GA, P_SB, P_CB1, P_GB])
    e(f"v_cmp_eq_u32 s[82:83], 0, v3\ns_or_b64 vcc, vcc, s[82:83]\ns_cbranch_vccz {ok}")
    spin_guard(e, sp)
    e(f"{ok}:")
    e(f"""
    v_readfirstlane_b32 s91, v3
    s_nop 1
    v_cmp_ne_u32 vcc, s91, v3
    s_nop 1
    s_cmp_eq_u64 vcc, 0
    s_cselect_b32 s98, {0 if cfg.FORCE_SLOW else 1}, 0
    """)
    e(f"v_add_f32 v{P_CB1}, 1.0, v{P_CB1}\nv_lshlrev_b32 v{P_X}, 16, v{P_X}")

def post_addresses(e, cfg):
    WS = f"s[{S_WS}:{S_WS+3}]"
    e(f"""
    s_lshr_b32 s62, s60, 1
    s_mul_i32 s62, s62, 112
    s_and_b32 s63, s60, 1
    s_lshl_b32 s63, s63, 1
    s_add_u32 s62, s62, s63
    s_lshr_b32 s63, s3, 2
    s_add_u32 s62, s62, s63
    s_lshr_b32 s88, s60, 1
    s_mul_i32 s88, s88, {28*128}
    s_and_b32 s63, s60, 1
    s_lshl_b32 s63, s63, 1
    s_lshr_b32 s89, s3, 2
    s_add_u32 s63, s63, s89
    s_lshl_b32 s63, s63, 4
    s_add_u32 s88, s88, s63
    s_add_u32 s88, s88, {WS_ML}
    s_lshl_b32 s62, s62, 9
    s_and_b32 s63, s3, 3
    s_lshl_b32 s63, s63, 7
    s_add_u32 s62, s62, s63
    s_add_u32 s62, s62, {WS_PART}
    s_add_u32 s63, s62, 16384
    s_add_u32 s89, s62, 32768
    s_add_u32 s90, s62, 49152
    v_lshrrev_b32 v{T0}, 3, v{V_LANE}
    v_and_b32 v{T1}, 7, v{V_LANE}
    v_lshlrev_b32 v{T1}, 4, v{T1}
    v_lshl_add_u32 v{P_PV}, v{T0}, 11, v{T1}
    v_lshlrev_b32 v{P_MV}, 7, v{T0}
    v_lshrrev_b32 v{T0}, 4, v{V_LANE}
    v_and_b32 v{T1}, 15, v{V_LANE}
    v_lshlrev_b32 v{T1}, 4, v{T1}
    v_lshl_add_u32 v{P_XV}, v{T0}, 11, v{T1}
    s_lshl_b32 s91, s3, 8
    v_add_u32 v{P_XV}, s91, v{P_XV}
    v_lshrrev_b32 v{T0}, 2, v{V_LANE}
    v_and_b32 v{T1}, 3, v{V_LANE}
    v_lshlrev_b32 v{T1}, 4, v{T1}
    s_lshl_b32 s91, s81, 6
    v_add_u32 v{T1}, s91, v{T1}
    v_lshl_add_u32 v{P_FV}, v{T0}, 11, v{T1}
    s_lshl_b32 s8, s3, 10
    s_add_u32 s8, s8, {L_RP1}
    s_lshl_b32 s9, s60, 11
    s_lshl_b32 s91, s61, 10
    s_add_u32 s9, s9, s91
    s_add_u32 s9, s9, {WS_X1P}
    s_lshl_b32 s10, s3, 3
    s_add_u32 s10, s10, {L_STA2}
    s_lshl_b32 s11, s3, 9
    s_add_u32 s11, s11, {L_RGU}
    s_lshl_b32 s12, s81, 11
    s_lshl_b32 s91, s3, 8
    s_add_u32 s12, s12, s91
    s_add_u32 s12, s12, {WS_FFP}
    s_cmp_lt_u32 s81, 28
    s_cselect_b32 s12, s12, {OOB}
    s_mov_b32 s13, {WS_X1P}
    s_mov_b32 s17, {WS_X1P + 8192}
    s_mov_b32 s18, {WS_X1P + 16384}
    s_mov_b32 s19, {WS_X1P + 24576}
    s_mov_b32 s14, {WS_FFP}
    s_mov_b32 s15, {WS_FFP + 32768}
    """)

def u_stage(e, cfg):
    U1G, U2G, U1U, U2U = 2, 3, 7, 18
    e(f"""
    v_cvt_pk_bf16_f32 v{T0}, v{P_CB1}, v{P_CB1}
    v_cvt_pk_bf16_f32 v{T1}, v{P_SB}, v{P_SB}
    ds_write_b16 v{P_WH2}, v{T0} offset:64
    ds_write_b16 v{P_WH2}, v{T1} offset:192
    v_bfe_u32 v{T0}, v{V_LANE}, 1, 1
    v_lshl_add_u32 v{T0}, v{T0}, 7, v{P_A64R}
    ds_read_b128 v[{V_A}:{V_A+3}], v{T0} offset:64
    s_waitcnt lgkmcnt(0)
    """)
    for t in range(8):
        e(f"v_mfma_f32_16x16x32_bf16 v[{32+4*t}:{32+4*t+3}], v[{V_A}:{V_A+3}], v[{W2+4*t}:{W2+4*t+3}], 0")
    for t in range(8):
        e(f"v_mfma_f32_16x16x32_bf16 v[{64+4*t}:{64+4*t+3}], v[{V_A}:{V_A+3}], v[{W3+4*t}:{W3+4*t+3}], 0")
    e(f"s_mul_i32 s91, s3, 16384\ns_add_u32 s91, s91, {L_STG}\nv_lshl_add_u32 v{T0}, v{V_LANE}, 5, s91")
    for k, (D, r0) in enumerate(((32, 0), (32, 2), (64, 0), (64, 2))):
        for half in range(2):
            for t in range(4):
                tt = 4 * half + t
                e(f"v_add_f32_dpp v{28+t}, v{D+4*tt+r0+1}, v{D+4*tt+r0} row_shl:8 row_mask:0xf bank_mask:0xf")
            e(f"s_mov_b64 exec, 0xff\nds_write_b128 v{T0}, v[28:31] offset:{256*k + 16*half}\ns_mov_b64 exec, -1\ns_nop 1")
    e(f"v_lshlrev_b32 v{T0}, 2, v{V_LANE}\nv_add_u32 v{T0}, {L_STG}, v{T0}\nv_add_u32 v{T1}, 65536, v{T0}")
    e(f"v_mov_b32 v30, {L_STA2}\nv_mov_b32 v28, 0\nv_mov_b32 v29, 0\nds_write_b64 v30, v[28:29]\ns_waitcnt lgkmcnt(0)\ns_barrier")
    for k, U in enumerate((U1G, U2G, U1U, U2U)):
        for v in range(8):
            e(f"ds_read_b32 v{32+v}, v{T0} offset:{(16384*v + 256*k) % 65536}" if 16384*v + 256*k < 65536 else f"ds_read_b32 v{32+v}, v{T1} offset:{16384*v + 256*k - 65536}")
        if k == 0: pass
        e("s_waitcnt lgkmcnt(0)")
        e(f"v_add_f32 v{U}, v32, v33")
        for v in range(2, 8): e(f"v_add_f32 v{U}, v{U}, v{32+v}")

def down_transpose(e):
    UR = 44
    e(f"s_mul_i32 s91, s3, 16384\ns_add_u32 s91, s91, {L_STG}\nv_lshl_add_u32 v{T0}, v{V_LANE}, 4, s91")
    e.wait_vm("wd7")
    for ee in range(8): e(f"ds_read_b128 v[{UR+4*ee}:{UR+4*ee+3}], v{T0} offset:{8192 + ee*1024}")
    e("s_waitcnt lgkmcnt(0)")
    transpose_unit(e, UR, W4)

def post_chain(e, cfg):
    Z = 76
    WS = f"s[{S_WS}:{S_WS+3}]"
    U1G, U2G, U1U, U2U = 2, 3, 7, 18
    DT, ML = 28, ML_BASE
    for r in range(4): e(f"v_mov_b32 v{DT+12+r}, s{S_TAU}")
    sp = e.label("L_ml"); ok = e.label("L_mlok")
    e.wait_vm("ML3")
    check(e, T0, range(ML, ML + 16), T1)
    e(f"s_cbranch_vccz {ok}\n{sp}:\ns_sleep 4")
    ml_loads(e, False)
    e("s_waitcnt vmcnt(0)")
    check(e, T0, range(ML, ML + 16), T1)
    e(f"s_cbranch_vccz {ok}")
    spin_guard(e, sp)
    e(f"{ok}:")
    m = [ML + 4 * i for i in range(4)]
    e(f"""
    v_max3_f32 v{T0}, v{m[0]}, v{m[1]}, v{m[2]}
    v_max_f32 v{T0}, v{T0}, v{m[3]}
    v_max_f32_dpp v{T0}, v{T0}, v{T0} row_ror:8 row_mask:0xf bank_mask:0xf
    """)
    xrow(e, "v_max_f32", T0, T1, 16)
    xrow(e, "v_max_f32", T0, T1, 32)
    for i in range(4): e(f"v_sub_f32 v{m[i]}, v{m[i]}, v{T0}")
    for i in range(4): e(f"v_exp_f32 v{m[i]}, v{m[i]}")
    e(f"v_mul_f32 v{T2}, v{m[0]}, v{m[0]+1}")
    for i in range(1, 4): e(f"v_fmac_f32 v{T2}, v{m[i]}, v{m[i]+1}")
    e(f"v_add_f32_dpp v{T2}, v{T2}, v{T2} row_ror:8 row_mask:0xf bank_mask:0xf")
    xrow(e, "v_add_f32", T2, T1, 16)
    xrow(e, "v_add_f32", T2, T1, 32)
    e(f"v_rcp_f32 v{T2}, v{T2}")
    for i in range(4): e(f"v_mul_f32 v{m[i]}, v{m[i]}, v{T2}")
    e("s_waitcnt vmcnt(0)")
    e.vm = []
    sts(e, cfg, 5)
    sp = e.label("L_hopA"); ok = e.label("L_hopAok")
    e(f"{sp}:")
    for i, sb in enumerate(("s62", "s63", "s89")):
        e(f"buffer_load_dwordx4 v[{DT+4*i}:{DT+4*i+3}], v{P_PV}, {WS}, {sb} offen sc1")
    e(f"""
    s_mov_b32 exec_hi, 0
    buffer_load_dwordx4 v[{DT+12}:{DT+15}], v{P_PV}, {WS}, s90 offen sc1
    s_mov_b32 exec_hi, -1
    s_waitcnt vmcnt(0)
    """)
    check(e, T0, range(DT, DT + 16, 4))
    e(f"s_cbranch_vccz {ok}")
    if cfg.SLEEP_A: e(f"s_sleep {cfg.SLEEP_A}")
    spin_guard(e, sp)
    e(f"{ok}:")
    sts(e, cfg, 6)
    AC = 60
    for r in range(4): e(f"v_mul_f32 v{AC+r}, v{m[0]}, v{DT+r}")
    for i in range(1, 4):
        for r in range(4): e(f"v_fmac_f32 v{AC+r}, v{m[i]}, v{DT+4*i+r}")
    rs4(e, AC)
    e(f"""
    v_add_f32_dpp v{AC}, v{AC}, v{AC} row_ror:8 row_mask:0xf bank_mask:0xf
    v_cvt_pk_bf16_f32 v{AC}, v{AC}, v{AC}
    ds_write_b16 v{P_WLW1}, v{AC}
    ds_read_b128 v[{V_A}:{V_A+3}], v{P_A128R}
    v_lshl_add_u32 v{T0}, v{V_LANE}, 5, s8
    s_waitcnt lgkmcnt(0)
    """)
    DP = 32
    for cb in range(2):
        for t in range(8):
            d = DP + 4 * (8 * cb + t); b = W0 + 32 * cb + 4 * t
            e(f"v_mfma_f32_16x16x32_bf16 v[{d}:{d+3}], v[{V_A}:{V_A+3}], v[{b}:{b+3}], 0")
    e("s_mov_b64 exec, 0xffff")
    for cb in range(2):
        for u in range(4):
            d = DP + 4 * (8 * cb + 2 * u)
            e(f"ds_write2_b32 v{T0}, v{d}, v{d+4} offset0:{128*cb+2*u} offset1:{128*cb+2*u+1}")
    e(f"""
    s_mov_b64 exec, -1
    v_lshrrev_b32 v{T0}, 3, v{V_LANE}
    v_and_b32 v{T1}, 7, v{V_LANE}
    v_lshlrev_b32 v{T1}, 4, v{T1}
    v_lshl_add_u32 v{T0}, v{T0}, 10, v{T1}
    s_lshl_b32 s91, s3, 7
    v_add_u32 v{T0}, s91, v{T0}
    v_lshrrev_b32 v{T2}, 4, v{V_LANE}
    v_and_b32 v29, 1, v{T2}
    v_lshlrev_b32 v29, 3, v29
    v_lshrrev_b32 v{T2}, 1, v{T2}
    v_lshl_add_u32 v{T2}, v{T2}, 2, v29
    v_add3_u32 v{T2}, v{T2}, v{T1}, s91
    s_waitcnt lgkmcnt(0)
    s_barrier
    ds_read_b128 v[28:31], v{T0} offset:{L_RP1}
    s_waitcnt lgkmcnt(0)
    """)
    rs4(e, 28)
    e(f"v_add_f32_dpp v28, v28, v28 row_ror:8 row_mask:0xf bank_mask:0xf")
    tag(e, 28)
    store_mode(e, f"buffer_store_dword v28, v{T2}, {WS}, s9 offen {{pol}}")
    sts(e, cfg, 7)
    if cfg.LATE_DOWN:
        down_transpose(e)
    if cfg.DELAY:
        for _ in range(cfg.DELAY // 64): e("s_nop 15\ns_nop 15\ns_nop 15\ns_nop 15")
    XD = 28
    sp = e.label("L_hopB"); ok = e.label("L_hopBok")
    e(f"{sp}:")
    for i, sb in enumerate(("s13", "s17", "s18", "s19")):
        e(f"buffer_load_dwordx4 v[{XD+4*i}:{XD+4*i+3}], v{P_XV}, {WS}, {sb} offen sc1")
    e("s_waitcnt vmcnt(0)")
    check(e, T0, range(XD, XD + 16, 4))
    e(f"s_cbranch_vccz {ok}")
    if cfg.SLEEP_B: e(f"s_sleep {cfg.SLEEP_B}")
    spin_guard(e, sp)
    e(f"{ok}:")
    e.vm = []
    sts(e, cfg, 8)
    for r in (0, 2):
        e(f"v_pk_add_f32 v[{XD+r}:{XD+r+1}], v[{XD+r}:{XD+r+1}], v[{XD+4+r}:{XD+5+r}]")
        e(f"v_pk_add_f32 v[{XD+8+r}:{XD+9+r}], v[{XD+8+r}:{XD+9+r}], v[{XD+12+r}:{XD+13+r}]")
    for r in (0, 2):
        e(f"v_pk_add_f32 v[{XD+r}:{XD+r+1}], v[{XD+r}:{XD+r+1}], v[{XD+8+r}:{XD+9+r}]")
    rs4(e, XD)
    X1 = 44
    e(f"""
    v_fma_f32 v{X1}, v{P_GA}, v{XD}, v{P_X}
    v_mul_f32 v{T2}, v{X1}, v{P_CB1}
    v_mov_b32 v{T0}, v{X1}
    v_mul_f32 v{T1}, v{X1}, v{X1}
    v_cvt_pk_bf16_f32 v{T2}, v{T2}, v{T2}
    ds_write_b16 v{P_WH2}, v{T2} offset:64
    ds_read_b128 v[{V_A}:{V_A+3}], v{P_A64R} offset:64
    ds_write_b32 v{P_COL4}, v{X1} offset:{L_X1}
    v_permlane32_swap_b32 v{T0}, v{T1}
    v_add_f32 v{T0}, v{T0}, v{T1}
    """)
    xrow(e, "v_add_f32", T0, T1, 16)
    e("s_waitcnt lgkmcnt(1)")
    mf = [f"v_mfma_f32_16x16x32_bf16 v[{32+4*t}:{32+4*t+3}], v[{V_A}:{V_A+3}], v[{W2+4*t}:{W2+4*t+3}], 0" for t in range(8)] + \
         [f"v_mfma_f32_16x16x32_bf16 v[{64+4*t}:{64+4*t+3}], v[{V_A}:{V_A+3}], v[{W3+4*t}:{W3+4*t+3}], 0" for t in range(8)]
    for n, steps in enumerate((1, 2, 4, 8)):
        e(mf[2 * n]); e(mf[2 * n + 1])
        e(f"v_add_f32_dpp v{T0}, v{T0}, v{T0} row_ror:{steps} row_mask:0xf bank_mask:0xf")
    for n in range(8, 16): e(mf[n])
    e(f"""
    v_lshrrev_b32 v{T1}, 5, v{V_LANE}
    v_lshlrev_b32 v{T1}, 2, v{T1}
    s_mov_b32 exec_lo, 1
    s_mov_b32 exec_hi, 1
    ds_add_f32 v{T1}, v{T0} offset:{L_STA2}
    s_mov_b64 exec, -1
    v_lshl_add_u32 v{T0}, v{V_LANE}, 5, s11
    """)
    zsum64(e, 32, 32)
    zsum64(e, 64, 64)
    e(f"""
    s_mov_b64 exec, 0xff
    ds_write_b128 v{T0}, v[32:35]
    ds_write_b128 v{T0}, v[36:39] offset:16
    ds_write_b128 v{T0}, v[64:67] offset:256
    ds_write_b128 v{T0}, v[68:71] offset:272
    s_mov_b64 exec, -1
    v_lshlrev_b32 v{T0}, 2, v{V_LANE}
    v_add_u32 v{T0}, {L_RGU}, v{T0}
    v_mov_b32 v{T2}, 0
    s_waitcnt lgkmcnt(0)
    s_barrier
    """)
    SZ, GU = 28, 48
    e(f"ds_read_b64 v[{SZ}:{SZ+1}], v{T2} offset:{L_STA2}")
    for v in range(8):
        e(f"ds_read2st64_b32 v[{GU+2*v}:{GU+2*v+1}], v{T0} offset0:{2*v} offset1:{2*v+1}")
    e(f"ds_read_b32 v44, v{P_COLF4} offset:{L_X1}")
    e(f"v_lshlrev_b32 v{T1}, 1, v{V_LANE}\nv_add_u32 v{T1}, s16, v{T1}")
    e("s_waitcnt lgkmcnt(9)")
    e(f"""
    v_mul_f32 v{T0}, {f32(1/512)}, v{SZ}
    v_mul_f32 v{T2}, {f32(1/512)}, v{SZ+1}
    v_fma_f32 v{T2}, -v{T0}, v{T0}, v{T2}
    v_add_f32 v{T2}, {f32(1e-5)}, v{T2}
    v_rsq_f32 v{T2}, v{T2}
    s_waitcnt lgkmcnt(1)
    """)
    for v in range(0, 8, 2):
        e(f"v_pk_add_f32 v[{GU+2*v}:{GU+2*v+1}], v[{GU+2*v}:{GU+2*v+1}], v[{GU+2*v+2}:{GU+2*v+3}]")
    e(f"v_pk_add_f32 v[{GU}:{GU+1}], v[{GU}:{GU+1}], v[{GU+4}:{GU+5}]")
    e(f"v_pk_add_f32 v[{GU+8}:{GU+9}], v[{GU+8}:{GU+9}], v[{GU+12}:{GU+13}]")
    e(f"v_pk_add_f32 v[{GU}:{GU+1}], v[{GU}:{GU+1}], v[{GU+8}:{GU+9}]")
    e(f"""
    v_fma_f32 v{GU}, -v{T0}, v{U1G}, v{GU}
    v_fma_f32 v{GU+1}, -v{T0}, v{U1U}, v{GU+1}
    v_fma_f32 v{GU}, v{GU}, v{T2}, v{U2G}
    v_fma_f32 v{GU+1}, v{GU+1}, v{T2}, v{U2U}
    v_mul_f32 v{T0}, {f32(-LOG2E)}, v{GU}
    v_exp_f32 v{T0}, v{T0}
    v_mul_f32 v{GU}, v{GU}, v{GU+1}
    v_add_f32 v{T0}, 1.0, v{T0}
    v_rcp_f32 v{T0}, v{T0}
    v_mul_f32 v{T0}, v{GU}, v{T0}
    v_cvt_pk_bf16_f32 v{T0}, v{T0}, v{T0}
    ds_write_b16 v{T1}, v{T0} offset:320
    ds_read_b128 v[{V_A}:{V_A+3}], v{P_A64R} offset:320
    v_lshrrev_b32 v{T0}, 3, v{V_LANE}
    v_and_b32 v{T1}, 7, v{V_LANE}
    v_lshlrev_b32 v{T1}, 5, v{T1}
    v_lshl_add_u32 v{T0}, v{T0}, 4, v{T1}
    s_waitcnt lgkmcnt(0)
    """)
    DD = 64
    for t in range(8):
        e(f"v_mfma_f32_16x16x32_bf16 v[{DD+4*t}:{DD+4*t+3}], v[{V_A}:{V_A+3}], v[{W4+4*t}:{W4+4*t+3}], 0")
    zsum64(e, DD, DD)
    for r in range(4):
        e(f"v_mov_b32_dpp v{DD+r}, v{DD+4+r} row_shr:8 row_mask:0xf bank_mask:0xc")
    for r in range(4): tag(e, DD + r)
    e("s_mov_b64 exec, 0xffff")
    store_mode(e, f"buffer_store_dwordx4 v[{DD}:{DD+3}], v{T0}, {WS}, s12 offen {{pol}}")
    e("s_mov_b64 exec, -1")
    e("L_final:")
    e("s_waitcnt lgkmcnt(0)")
    sts(e, cfg, 9)
    lab_end = e.label("L_svc_end")
    e(f"s_cmp_lg_u32 s3, 0\ns_cbranch_scc1 {lab_end}")
    FD = 28
    for r in range(4): e(f"v_mov_b32 v{FD+4+r}, s{S_TAU}")
    sp = e.label("L_hopC"); ok = e.label("L_hopCok")
    e(f"""
    {sp}:
    buffer_load_dwordx4 v[{FD}:{FD+3}], v{P_FV}, {WS}, s14 offen sc1
    s_mov_b32 exec_hi, 0xffff
    buffer_load_dwordx4 v[{FD+4}:{FD+7}], v{P_FV}, {WS}, s15 offen sc1
    s_mov_b32 exec_hi, -1
    s_waitcnt vmcnt(0)
    """)
    check(e, T0, range(FD, FD + 8, 4))
    e(f"s_cbranch_vccz {ok}")
    if cfg.SLEEP_C: e(f"s_sleep {cfg.SLEEP_C}")
    spin_guard(e, sp)
    e(f"{ok}:")
    sts(e, cfg, 10)
    for r in range(4): e(f"v_add_f32 v{FD+r}, v{FD+r}, v{FD+4+r}")
    rs4(e, FD)
    e(f"""
    v_add_f32_dpp v{FD}, v{FD}, v{FD} row_ror:4 row_mask:0xf bank_mask:0xf
    v_add_f32_dpp v{FD}, v{FD}, v{FD} row_ror:8 row_mask:0xf bank_mask:0xf
    v_fma_f32 v{FD}, v{P_GB}, v{FD}, v44
    v_cvt_pk_bf16_f32 v{FD}, v{FD}, v{FD}
    buffer_store_short v{FD}, v{P_OUTV}, s[{S_OUT}:{S_OUT+3}], 0 offen
    """)
    sts(e, cfg, 11)
    if getattr(cfg, "DBGT", 0):
        e(f"""
        s_waitcnt vmcnt(0)
        s_memrealtime s[96:97]
        s_waitcnt lgkmcnt(0)
        s_sub_u32 s96, s96, s101
        v_mov_b32 v4, s96
        s_lshl_b32 s91, s81, 2
        v_mov_b32 v5, s91
        v_cmp_gt_u32 vcc, 32, v5
        s_mov_b64 exec, 1
        s_cmp_ge_u32 s81, 6
        s_cbranch_scc1 {lab_end}
        buffer_store_dword v4, v5, s[{S_DBG}:{S_DBG+3}], 0 offen sc1
        """)
    e(f"{lab_end}:")
    if cfg.TS:
        e(f"""
        s_lshl_b32 s91, s81, 3
        s_add_u32 s91, s91, s3
        s_lshl_b32 s91, s91, 7
        s_add_u32 s91, s91, {WS_TS + 0x10000}
        v_lshlrev_b32 v{T0}, 2, v{V_LANE}
        s_mov_b32 exec_hi, 0
        buffer_store_dword v0, v{T0}, {WS}, s91 offen
        """)
    e("s_endpgm")
```

```python
from kern import *

V_LANE, V_KOFF, V_VOFF, V_QOFF, V_FO2, V_T0, V_T1 = 1, 2, 3, 4, 5, 6, 7
V_Q = 8
V_S = 12
V_M, V_L = 22, 23
V_D = [24, 40]
V_O = 56
V_STG = 88
V_POP = 104
V_KV = 108
NBLK = 37
LDS_OBUF = 0
LDS_MLW = 16384
LDS_FW = 16384 + 256
LDS_CNT = 16384 + 384
LDS_VL = 16384 + 512
def att_lds(cfg): return LDS_VL + 8 * cfg.NVL * 1024

def kv(i): return V_KV + 4 * i

def attention(e, cfg):
    e(f"""
    s_cmp_gt_u32 s80, {cfg.SVC_X}
    s_cselect_b32 s82, 1, 0
    s_sub_u32 s82, s80, s82
    s_lshl_b32 s82, s82, 5
    s_add_u32 s82, s82, s81
    s_mov_b32 s83, {(2**32 + 27) // 28}
    s_mul_hi_u32 s84, s82, s83
    s_mul_i32 s85, s84, 28
    s_sub_u32 s85, s82, s85
    s_lshl_b32 s86, s85, 3
    s_add_u32 s86, s86, s3
    s_lshl_b32 s87, s86, 8
    s_mov_b32 s83, {(2**32 + 6) // 7}
    s_mul_hi_u32 s88, s87, s83
    s_add_u32 s87, s87, 256
    s_mul_hi_u32 s89, s87, s83
    s_sub_u32 s89, s89, s88
    s_lshl_b32 s52, s88, 10
    s_lshl_b32 s90, s84, 23
    v_bfe_u32 v{V_KOFF}, v{V_LANE}, 2, 2
    v_lshlrev_b32 v{V_KOFF}, 8, v{V_KOFF}
    v_lshrrev_b32 v{V_T0}, 4, v{V_LANE}
    v_lshlrev_b32 v{V_T0}, 6, v{V_T0}
    v_and_b32 v{V_T1}, 3, v{V_LANE}
    v_lshlrev_b32 v{V_VOFF}, 4, v{V_T1}
    v_add3_u32 v{V_KOFF}, v{V_KOFF}, v{V_T0}, v{V_VOFF}
    """)
    e("s_waitcnt lgkmcnt(0)")
    tag_setup(e)
    srd(e, 36, 10, 11, 0x800000, add="s90")
    ts(e, cfg, 60)
    D = cfg.D_ATT
    DE = cfg.D_ATT_EVEN
    def throttle(dodd, deven):
        if deven < dodd and len(e.vm) >= deven:
            lab = e.label("L_th")
            e(f"s_cbranch_vccz {lab}\ns_waitcnt vmcnt({deven-1})\n{lab}:")
        e.wait_vm_n(dodd - 1)
    def set_parity():
        e("s_getreg_b32 s51, hwreg(HW_REG_XCC_ID)\ns_bitcmp1_b32 s51, 0\ns_cselect_b64 vcc, 0, -1")
    cur = [None]
    def kload(i):
        hi = (i // 4) * 4096
        if i == NBLK - 1:
            e.vmem(f"buffer_load_dwordx4 v[{kv(i)}:{kv(i)+3}], v{V_KOFF}, s[36:39], s54 offen {cfg.KPOL}", f"K{i}")
            return
        if cur[0] != hi:
            if hi == 0: e("s_mov_b32 s53, s52")
            else: e("s_addk_i32 s53, 0x1000")
            cur[0] = hi
        e.vmem(f"buffer_load_dwordx4 v[{kv(i)}:{kv(i)+3}], v{V_KOFF}, s[36:39], s53 offen offset:{(i%4)*1024} {cfg.KPOL}", f"K{i}")
    D0 = cfg.BURST
    for i in range(D0):
        kload(i)
    e(f"v_mov_b32 v{V_S}, {LDS_CNT}\nv_mov_b32 v{V_S+1}, 0\nds_write_b32 v{V_S}, v{V_S+1}\ns_waitcnt lgkmcnt(0)\ns_barrier")
    srd(e, 40, 12, 13, 0x800000, add="s90")
    srd(e, 44, 34, 35, WS_SIZE)
    e(f"""
    s_add_u32 s54, s52, {(NBLK-1)*1024}
    s_cmp_eq_u32 s89, {NBLK}
    s_cselect_b32 s54, s54, {OOB}
    s_cselect_b32 s56, 0, 0xff800000
    s_lshl_b32 s55, s84, 11
    s_add_u32 s55, s55, {WS_Q}
    s_mov_b32 s57, {f32(SCALE_C)}
    s_mul_i32 s58, s84, 28
    s_add_u32 s58, s58, s85
    s_lshl_b32 s59, s58, 7
    s_add_u32 s59, s59, {WS_ML}
    s_lshl_b32 s58, s58, 11
    s_add_u32 s58, s58, {WS_PART}
    s_mov_b32 s94, 0x05040100
    s_mov_b32 s95, 0x07060302
    s_mov_b32 s99, {cfg.SPIN}
    v_lshlrev_b32 v{V_QOFF}, 9, v{V_T1}
    v_lshl_add_u32 v{V_QOFF}, v{V_T0}, 1, v{V_QOFF}
    v_bfe_u32 v{V_T0}, v{V_LANE}, 2, 2
    v_lshl_add_u32 v{V_QOFF}, v{V_T0}, 5, v{V_QOFF}
    v_lshlrev_b32 v{V_VOFF}, 4, v{V_LANE}
    v_mov_b32 v{V_S+9}, 0xff800000
    """)
    Q_AT = cfg.Q_AT
    NVL = cfg.NVL
    QR = V_D[0]
    def qloads(track):
        for k in range(2):
            t = f"buffer_load_dwordx4 v[{QR+4*k}:{QR+4*k+3}], v{V_QOFF}, s[44:47], s55 offen offset:{16*k} sc1"
            if track: e.vmem(t, f"Q{k}")
            else: e(t)
    e(f"s_mul_i32 s48, s3, {NVL*1024}\ns_add_u32 s48, s48, {LDS_VL}")
    def vdma(k):
        if k % 4 == 0:
            e(f"s_add_u32 s49, s52, {k*1024}\ns_add_u32 s50, s48, {k*1024}\ns_mov_b32 m0, s50\ns_nop 0")
        e.vmem(f"buffer_load_dwordx4 v{V_VOFF}, s[40:43], s49 offen offset:{(k%4)*1024} {cfg.KPOL} lds", f"L{k}")
    set_parity()
    for i in range(D0, NBLK + NVL):
        if i == Q_AT:
            throttle(D, DE)
            qloads(True)
        if i < cfg.RAMP_N: e.wait_vm_n(cfg.RAMP_D - 1)
        throttle(D, DE)
        if i < NBLK: kload(i)
        else: vdma(i - NBLK)
        if cfg.TS and getattr(cfg, "TSK", 0):
            if i == 8: ts(e, cfg, 67)
            if i == 20: ts(e, cfg, 68)
            if i == 36: ts(e, cfg, 69)
    ts(e, cfg, 61)
    e("s_waitcnt lgkmcnt(0)")
    tag_finish(e)
    e.wait_vm("Q1")
    ok = e.label("L_qok"); sp = e.label("L_qspin")
    check(e, V_T0, range(QR, QR + 8, 4))
    e(f"s_cbranch_vccz {ok}\n{sp}:\ns_sleep 8")
    qloads(False)
    e("s_waitcnt vmcnt(0)")
    check(e, V_T0, range(QR, QR + 8, 4))
    e(f"s_cbranch_vccz {ok}")
    spin_guard(e, sp)
    e(f"{ok}:")
    for k in range(4):
        e(f"v_cvt_pk_bf16_f32 v{V_Q+k}, v{QR+2*k}, v{QR+2*k+1}")
    ts(e, cfg, 62)
    curv = [None]
    def vload(i):
        hi = (i // 4) * 4096
        if i == NBLK - 1:
            e.vmem(f"buffer_load_dwordx4 v[{kv(i)}:{kv(i)+3}], v{V_VOFF}, s[40:43], s54 offen {cfg.KPOL}", f"V{i}")
            return
        if curv[0] != hi:
            if hi == 0: e("s_mov_b32 s53, s52")
            else: e(f"s_add_u32 s53, s52, {hi}")
            curv[0] = hi
        e.vmem(f"buffer_load_dwordx4 v[{kv(i)}:{kv(i)+3}], v{V_VOFF}, s[40:43], s53 offen offset:{(i%4)*1024} {cfg.KPOL}", f"V{i}")
    def tile_blocks(T): return list(range(4 * T, min(4 * T + 4, NBLK)))
    def reduce_tile(T, par):
        Db = V_D[par]
        S = V_S + T
        for t, blk in enumerate(tile_blocks(T)):
            for b in range(4):
                rot = (4 * (t - b)) % 16
                ctl = f"row_ror:{rot}" if rot else "quad_perm:[0,1,2,3]"
                if b == 0:
                    e(f"v_mov_b32_dpp v{S}, v{Db + 4*t + b} {ctl} row_mask:0xf bank_mask:0x{1 << t:x}")
                else:
                    e(f"v_add_f32_dpp v{S}, v{Db + 4*t + b}, v{S} {ctl} row_mask:0xf bank_mask:0x{1 << t:x}")
    NT = 10
    DV = cfg.D_V
    DVE = cfg.D_V_EVEN
    set_parity()
    NVT = NVL // 4
    order = list(range(NVT, NT)) + list(range(NVT))
    vnext = [NVL]
    def v_issue_upto(n):
        while vnext[0] < min(n, NBLK):
            throttle(DV, DVE)
            vload(vnext[0]); vnext[0] += 1
    e(f"v_lshl_add_u32 v{V_FO2}, v{V_LANE}, 4, s48")
    prev = None
    for n, T in enumerate(order):
        bl = tile_blocks(T)
        e.wait_vm(f"K{bl[-1]}")
        for t, blk in enumerate(bl):
            Dd = V_D[n & 1] + 4 * t
            e(f"v_mfma_f32_16x16x32_bf16 v[{Dd}:{Dd+3}], v[{kv(blk)}:{kv(blk)+3}], v[{V_Q}:{V_Q+3}], 0")
        if prev is not None: reduce_tile(prev, (n - 1) & 1)
        if n < cfg.V_EARLY_TILES and T >= NVT:
            for blk in bl:
                if blk == vnext[0]:
                    vload(blk); vnext[0] += 1
        if T < NVT:
            e.wait_vm(f"L{bl[-1]}")
            for blk in bl:
                e(f"ds_read_b128 v[{kv(blk)}:{kv(blk)+3}], v{V_FO2} offset:{blk*1024}")
        prev = T
    reduce_tile(prev, (NT - 1) & 1)
    e(f"v_add_f32 v{V_S+9}, s56, v{V_S+9}")
    ts(e, cfg, 63)
    e(f"v_max3_f32 v{V_M}, v{V_S}, v{V_S+1}, v{V_S+2}")
    for k in range(3, 9, 2):
        e(f"v_max3_f32 v{V_M}, v{V_M}, v{V_S+k}, v{V_S+k+1}")
    e(f"v_max_f32 v{V_M}, v{V_M}, v{V_S+9}")
    allreduce16(e, "v_max_f32", V_M, steps=(4, 8))
    xrow(e, "v_max_f32", V_M, V_T0, 16)
    xrow(e, "v_max_f32", V_M, V_T0, 32)
    e(f"v_mul_f32 v{V_M}, s57, v{V_M}")
    for T in range(NT):
        e(f"v_fma_f32 v{V_S+T}, v{V_S+T}, s57, -v{V_M}")
    for T in range(NT):
        e(f"v_exp_f32 v{V_S+T}, v{V_S+T}")
    v_issue_upto(vnext[0] + 2)
    e(f"v_add_f32 v{V_L}, v{V_S}, v{V_S+1}")
    for T in range(2, NT):
        e(f"v_add_f32 v{V_L}, v{V_L}, v{V_S+T}")
    for g in range(5):
        e(f"v_cvt_pk_bf16_f32 v{V_S+2*g}, v{V_S+2*g}, v{V_S+2*g+1}")
    allreduce16(e, "v_add_f32", V_L, steps=(4, 8))
    xrow(e, "v_add_f32", V_L, V_T0, 16)
    xrow(e, "v_add_f32", V_L, V_T0, 32)
    lab = e.label("L_mlpub")
    e(f"""
    s_lshl_b32 s91, s3, 5
    v_lshlrev_b32 v{V_T0}, 3, v{V_LANE}
    v_add_u32 v{V_T0}, s91, v{V_T0}
    s_mov_b64 exec, 0xf
    ds_write_b64 v{V_T0}, v[{V_M}:{V_M+1}] offset:{LDS_MLW}
    s_mov_b64 exec, 1
    v_mov_b32 v{V_T0}, {LDS_CNT}
    v_mov_b32 v{V_T1}, 1
    s_waitcnt lgkmcnt(0)
    ds_add_rtn_u32 v30, v{V_T0}, v{V_T1}
    s_waitcnt lgkmcnt(0)
    v_readfirstlane_b32 s91, v30
    s_mov_b64 exec, -1
    s_cmp_lg_u32 s91, 7
    s_cbranch_scc1 {lab}
    v_and_b32 v{V_T0}, 31, v{V_LANE}
    v_lshlrev_b32 v{V_T1}, 3, v{V_T0}
    ds_read_b64 v[30:31], v{V_T1} offset:{LDS_MLW}
    v_lshlrev_b32 v{V_T0}, 2, v{V_T0}
    s_waitcnt lgkmcnt(0)
    v_mov_b32 v36, v30
    """)
    allreduce16(e, "v_max_f32", 36, steps=(4, 8))
    xrow(e, "v_max_f32", 36, 32, 16)
    tag(e, 36)
    e(f"""
    v_sub_f32 v30, v30, v36
    v_exp_f32 v30, v30
    v_mul_f32 v37, v30, v31
    ds_write_b32 v{V_T0}, v30 offset:{LDS_FW}
    """)
    allreduce16(e, "v_add_f32", 37, steps=(4, 8))
    xrow(e, "v_add_f32", 37, 32, 16)
    tag(e, 37)
    e(f"""
    v_mov_b32 v38, v36
    v_mov_b32 v39, v37
    v_and_b32 v{V_T0}, 3, v{V_LANE}
    v_lshlrev_b32 v{V_T0}, 4, v{V_T0}
    v_bfe_u32 v{V_T1}, v{V_LANE}, 2, 1
    v_lshl_add_u32 v{V_T0}, v{V_T1}, 6, v{V_T0}
    s_mov_b64 exec, 0xff
    buffer_store_dwordx4 v[36:39], v{V_T0}, s[44:47], s59 offen sc1
    s_mov_b64 exec, -1
    {lab}:
    """)
    A0, AF, AP, AW0, AW1 = 24, 25, 26, 27, 28
    e(f"""
    v_lshrrev_b32 v{V_T0}, 2, v{V_LANE}
    s_lshl_b32 s91, s3, 4
    v_add_u32 v{V_T0}, s91, v{V_T0}
    v_lshlrev_b32 v{V_T0}, 4, v{V_T0}
    v_and_b32 v{V_T1}, 3, v{V_LANE}
    v_lshl_add_u32 v{A0}, v{V_T1}, 12, v{V_T0}
    v_cmp_eq_u32 s[92:93], 0, v{V_T1}
    v_mov_b32 v{AP}, {OOB}
    v_cndmask_b32 v{AP}, v{AP}, v{V_T0}, s[92:93]
    s_lshr_b32 s91, s3, 1
    s_lshl_b32 s91, s91, 2
    s_add_u32 s91, s91, {LDS_FW}
    v_lshl_add_u32 v{AF}, v{V_T1}, 5, s91
    s_lshl_b32 s91, s3, 11
    v_lshl_add_u32 v{AW0}, v{V_LANE}, 5, s91
    v_add_u32 v{AW1}, 1024, v{AW0}
    """)
    for g in range(5):
        last_blk = tile_blocks(min(2 * g + 1, NT - 1))[-1]
        if last_blk < NVL:
            v_issue_upto(vnext[0] + cfg.V_PER_LDS_GROUP)
            e("s_waitcnt lgkmcnt(0)")
        else:
            v_issue_upto(last_blk + 1 + DV)
            e.wait_vm(f"V{last_blk}")
        X = V_S + 2 * g
        e(f"v_mov_b32 v{V_POP}, v{X}")
        for m in range(1, 4):
            e(f"v_mov_b32_dpp v{V_POP+m}, v{X} row_shl:{4*m} row_mask:0xf bank_mask:0xf")
        for j in range(4):
            st = V_STG + 8 * (j & 1)
            for m in range(4):
                x = kv(8 * g + m) + j
                yb = 8 * g + 4 + m
                y = (kv(yb) if yb < NBLK else kv(8 * g + m)) + j
                e(f"v_perm_b32 v{st + m}, v{y}, v{x}, s94")
                e(f"v_perm_b32 v{st + 4 + m}, v{y}, v{x}, s95")
            for q in range(2):
                O = V_O + 4 * (2 * j + q)
                C = "0" if g == 0 else f"v[{O}:{O+3}]"
                e(f"v_mfma_f32_16x16x32_bf16 v[{O}:{O+3}], v[{V_POP}:{V_POP+3}], v[{st+4*q}:{st+4*q+3}], {C}")
    ts(e, cfg, 64)
    e("s_mov_b64 exec, 0xffff")
    for u in range(4):
        for r in range(4):
            a = AW0 if r < 2 else AW1
            o0 = (r & 1) * 128 + 2 * u
            e(f"ds_write2_b32 v{a}, v{V_O + 4*(2*u) + r}, v{V_O + 4*(2*u+1) + r} offset0:{o0} offset1:{o0+1}")
    e(f"""
    s_mov_b64 exec, -1
    s_waitcnt lgkmcnt(0)
    s_barrier
    ds_read2_b32 v[30:31], v{AF} offset0:0 offset1:4
    ds_read_b128 v[36:39], v{A0}
    ds_read_b128 v[40:43], v{A0} offset:2048
    s_waitcnt lgkmcnt(1)
    """)
    for r in range(4):
        e(f"v_mul_f32 v{36+r}, v30, v{36+r}")
    e("s_waitcnt lgkmcnt(0)")
    for r in range(4):
        e(f"v_fmac_f32 v{36+r}, v31, v{40+r}")
    for qp in ("[1,0,3,2]", "[2,3,0,1]"):
        for r in (36, 37, 38, 39):
            e(f"v_add_f32_dpp v{r}, v{r}, v{r} quad_perm:{qp} row_mask:0xf bank_mask:0xf")
    for r in (36, 37, 38, 39):
        tag(e, r)
    e.vmem(f"buffer_store_dwordx4 v[36:39], v{AP}, s[44:47], s58 offen {cfg.PPOL}", "PS")
    ts(e, cfg, 65)
    if getattr(cfg, "DBGT", 0):
        lab = e.label("L_dbgt")
        e(f"""
        s_cmp_lg_u32 s3, 0
        s_cbranch_scc1 {lab}
        s_cmp_lg_u32 s81, 31
        s_cbranch_scc1 {lab}
        s_waitcnt vmcnt(0)
        s_memrealtime s[96:97]
        s_waitcnt lgkmcnt(0)
        s_sub_u32 s96, s96, s101
        v_mov_b32 v4, s96
        s_add_u32 s91, s80, 6
        s_lshl_b32 s91, s91, 2
        v_mov_b32 v5, s91
        s_mov_b32 s48, s32
        s_mov_b32 s49, s33
        s_mov_b32 s50, 256
        s_mov_b32 s51, 0x20000
        s_mov_b64 exec, 1
        buffer_store_dword v4, v5, s[48:51], 0 offen sc1
        {lab}:
        """)
    if cfg.TS:
        e.wait_vm_all()
        ts(e, cfg, 66)
        e(f"""
        s_lshl_b32 s91, s2, 3
        s_add_u32 s91, s91, s3
        s_lshl_b32 s91, s91, 5
        s_add_u32 s91, s91, {WS_TS}
        v_mov_b32 v6, {OOB}
        v_cmp_eq_u32 vcc, 0, v{V_LANE}
        v_cndmask_b32 v6, v6, 0, vcc
        """)
        for k in range(7): e(f"v_mov_b32 v{36+k}, s{60+k}")
        e("v_mov_b32 v43, s89")
        if getattr(cfg, "TSK", 0):
            e("v_mov_b32 v41, s67\nv_mov_b32 v42, s68\nv_mov_b32 v43, s69")
            if getattr(cfg, "TSE", 0): e("v_mov_b32 v41, s70")
        e("buffer_store_dwordx4 v[36:39], v6, s[44:47], s91 offen")
        e("buffer_store_dwordx4 v[40:43], v6, s[44:47], s91 offen offset:16")
    e("s_endpgm")
```

```python
from kern import *

S_WS, S_DBG, S_X, S_C, S_WMOD, S_WQ, S_WO, S_WG, S_WU, S_WD, S_OUT = 36, 40, 44, 48, 52, 56, 4, 64, 68, 72, 84
L_SVA  = 0
L_CNT  = 1024
L_STAT = 2048
L_STA2 = 2176
L_RA1  = 2304
L_RQ   = 4352
L_RB   = 8448
L_RP1  = 10496
L_RGU  = 18688
L_X1   = 22784
L_WL   = 24832
L_STG  = 24832 + 4096
SVC_LDS = L_STG + 8 * 16384

V_LANE, V_TAU2, V_N = 1, 2, 3
T0, T1, T2, T3 = 4, 5, 6, 7
V_A = 8
P_WLW1, P_WH2, P_COL4, P_COLF4 = 12, 13, 14, 15
P_GA, P_CB1, P_SB, P_X, P_GB = 16, 17, 18, 19, 20
P_PV, P_MV, P_XV, P_FV, P_A64R, P_A128R, P_OUTV = 21, 22, 23, 24, 25, 26, 27
SC = 28
W0, W1, W2, W3, W4 = 96, 128, 160, 192, 224

def unit64_voff(e, dst, stride_bytes, t0, t1):
    e(f"""
    v_lshrrev_b32 v{t0}, 4, v{V_LANE}
    v_lshlrev_b32 v{t0}, 3, v{t0}
    v_bfe_u32 v{t1}, v{V_LANE}, 3, 1
    v_lshlrev_b32 v{t1}, 5, v{t1}
    v_add_u32 v{t0}, v{t0}, v{t1}
    v_mul_u32_u24 v{t0}, {stride_bytes}, v{t0}
    v_and_b32 v{t1}, 7, v{V_LANE}
    v_lshlrev_b32 v{t1}, 4, v{t1}
    v_add_u32 v{dst}, v{t0}, v{t1}
    """)

def unit128_voff(e, dst, stride_bytes, t0, t1):
    e(f"""
    v_lshrrev_b32 v{t0}, 4, v{V_LANE}
    v_mul_u32_u24 v{t0}, {8*stride_bytes}, v{t0}
    v_and_b32 v{t1}, 15, v{V_LANE}
    v_lshlrev_b32 v{t1}, 4, v{t1}
    v_add_u32 v{dst}, v{t0}, v{t1}
    """)

class Stream:
    def __init__(self, e, depth): self.e, self.d = e, depth
    def load(self, dst, voff, srdq, sbase, byte_off, tag):
        e = self.e
        e.wait_vm_n(self.d - 1)
        if byte_off < 4096:
            e.vmem(f"buffer_load_dwordx4 v[{dst}:{dst+3}], v{voff}, s[{srdq}:{srdq+3}], {sbase} offen offset:{byte_off} nt", tag)
        else:
            e(f"s_add_u32 s93, {sbase}, {byte_off}")
            e.vmem(f"buffer_load_dwordx4 v[{dst}:{dst+3}], v{voff}, s[{srdq}:{srdq+3}], s93 offen nt", tag)

def zsum64(e, D, Z):
    for t in range(8):
        e(f"v_add_f32_dpp v{Z+t}, v{D+4*t+1}, v{D+4*t} row_shl:8 row_mask:0xf bank_mask:0xf")

def rs4(e, a):
    e(f"v_permlane32_swap_b32 v{a}, v{a+1}")
    e(f"v_permlane32_swap_b32 v{a+2}, v{a+3}")
    e(f"v_add_f32 v{a}, v{a}, v{a+1}")
    e(f"v_add_f32 v{a+2}, v{a+2}, v{a+3}")
    e(f"v_permlane16_swap_b32 v{a}, v{a+2}")
    e(f"v_add_f32 v{a}, v{a}, v{a+2}")

def store_mode(e, text):
    lf = e.label("L_fast"); le = e.label("L_stend")
    e(f"s_cmp_eq_u32 s98, 1\ns_cbranch_scc1 {lf}")
    e(text.format(pol="sc1"))
    e(f"s_branch {le}\n{lf}:")
    e(text.format(pol=""))
    e(f"{le}:")
    e.vm.append("st")

def sts(e, cfg, k):
    if cfg.TS:
        e(f"s_memrealtime s[96:97]\ns_waitcnt lgkmcnt(0)\nv_writelane_b32 v0, s96, {k}")

def silu(e, dst, src, t):
    e(f"""
    v_mul_f32 v{t}, {f32(-LOG2E)}, v{src}
    v_exp_f32 v{t}, v{t}
    v_add_f32 v{t}, 1.0, v{t}
    v_rcp_f32 v{t}, v{t}
    v_mul_f32 v{dst}, v{src}, v{t}
    """)

DBG_OFF = [0]
def persist_setup(e, cfg):
    DBG_OFF[0] = 128 if getattr(cfg, 'DBGT', 0) else 0
    WS = f"s[{S_WS}:{S_WS+3}]"
    e(f"""
    v_lshrrev_b32 v{T0}, 4, v{V_LANE}
    v_and_b32 v{T1}, 1, v{T0}
    v_lshlrev_b32 v{T1}, 1, v{T1}
    v_lshrrev_b32 v{T2}, 1, v{T0}
    v_or_b32 v{T2}, v{T2}, v{T1}
    s_lshl_b32 s16, s3, 9
    s_add_u32 s16, s16, {L_WL}
    v_lshlrev_b32 v{P_A128R}, 4, v{T0}
    v_add_u32 v{P_A128R}, s16, v{P_A128R}
    v_and_b32 v{P_A64R}, 1, v{V_LANE}
    v_lshlrev_b32 v{P_A64R}, 6, v{P_A64R}
    v_add3_u32 v{P_A64R}, v{P_A64R}, v{P_A128R}, 0
    v_and_b32 v{T1}, 7, v{V_LANE}
    v_lshl_add_u32 v{T1}, v{T1}, 2, v{T2}
    v_lshlrev_b32 v{T1}, 1, v{T1}
    v_add_u32 v{P_WLW1}, s16, v{T1}
    v_and_b32 v{T1}, 15, v{V_LANE}
    v_lshl_add_u32 v{T1}, v{T1}, 2, v{T2}
    v_lshlrev_b32 v{T3}, 1, v{T1}
    v_add_u32 v{P_WH2}, s16, v{T3}
    s_lshl_b32 s91, s3, 6
    v_add_u32 v{T1}, s91, v{T1}
    v_lshlrev_b32 v{P_COL4}, 2, v{T1}
    v_lshlrev_b32 v{T3}, 1, v{T1}
    v_and_b32 v{T1}, 3, v{V_LANE}
    v_lshl_add_u32 v{T1}, v{T1}, 2, v{T2}
    s_lshl_b32 s91, s81, 4
    v_add_u32 v{T1}, s91, v{T1}
    v_lshlrev_b32 v{P_COLF4}, 2, v{T1}
    v_lshlrev_b32 v{T1}, 1, v{T1}
    v_and_b32 v{T0}, 12, v{V_LANE}
    v_cmp_eq_u32 vcc, 0, v{T0}
    v_mov_b32 v{P_OUTV}, {OOB}
    v_cndmask_b32 v{P_OUTV}, v{P_OUTV}, v{T1}, vcc
    s_mov_b32 s8, {WS_MODB}
    s_mov_b32 s9, {WS_MODB + 4096}
    v_mov_b32 v2, v{T3}
    v_and_b32 v92, 31, v{V_LANE}
    v_lshlrev_b32 v92, 2, v92
    """)

def modb_loads(e, track):
    WS = f"s[{S_WS}:{S_WS+3}]"
    L = [f"buffer_load_dword v{P_GA}, v{P_COL4}, {WS}, s8 offen sc1",
         f"buffer_load_dword v{P_SB}, v{P_COL4}, {WS}, s8 offen offset:2048 sc1",
         f"buffer_load_dword v{P_CB1}, v{P_COL4}, {WS}, s9 offen sc1",
         f"buffer_load_dword v{P_GB}, v{P_COLF4}, {WS}, s9 offen offset:2048 sc1",
         f"buffer_load_ushort v{P_X}, v2, s[{S_X}:{S_X+3}], 0 offen",
         f"buffer_load_dword v3, v92, s[{S_DBG}:{S_DBG+3}], 0 offen offset:{DBG_OFF[0]} sc1"]
    for k, t in enumerate(L):
        if track: e.vmem(t, f"MB{k}")
        else: e(t)

def counter_last(e, off, n, lab):
    e(f"""
    s_mov_b64 exec, 1
    v_mov_b32 v{T1}, {L_CNT + off}
    v_mov_b32 v{T2}, 1
    s_waitcnt lgkmcnt(0)
    ds_add_rtn_u32 v{T3}, v{T1}, v{T2}
    s_waitcnt lgkmcnt(0)
    v_readfirstlane_b32 s91, v{T3}
    s_mov_b64 exec, -1
    s_cmp_lg_u32 s91, {n}
    s_cbranch_scc1 {lab}
    """)

def service(e, cfg):
    Dd = [cfg.D_SVC]
    WS = f"s[{S_WS}:{S_WS+3}]"
    Z = 76
    pend = []
    def pump(upto_tag):
        while True:
            tag_, fn = pend.pop(0)
            e.wait_vm_n(Dd[0] - 1)
            fn()
            if tag_ == upto_tag: break
    def rload(dst, voff, srdq, sbase, byte_off, tag_):
        def fn():
            if byte_off < 4096:
                e.vmem(f"buffer_load_dwordx4 v[{dst}:{dst+3}], v{voff}, s[{srdq}:{srdq+3}], {sbase} offen offset:{byte_off} nt", tag_)
            else:
                e(f"s_add_u32 s93, {sbase}, {byte_off}")
                e.vmem(f"buffer_load_dwordx4 v[{dst}:{dst+3}], v{voff}, s[{srdq}:{srdq+3}], s93 offen nt", tag_)
        pend.append((tag_, fn))
    def dma(voff, srdq, sbase, byte_off, lds_off, tag_):
        def fn():
            e(f"s_add_u32 s93, {sbase}, {byte_off}\ns_add_u32 s92, s63, {lds_off}\ns_mov_b32 m0, s92\ns_nop 0")
            e.vmem(f"buffer_load_dwordx4 v{voff}, s[{srdq}:{srdq+3}], s93 offen nt lds", tag_)
        pend.append((tag_, fn))
    e(f"""
    v_mov_b32 v4, {L_CNT}
    v_mov_b32 v6, 0
    v_mov_b32 v7, 0
    ds_write_b64 v4, v[6:7]
    ds_write_b64 v4, v[6:7] offset:8
    s_waitcnt lgkmcnt(0)
    """)
    tag_setup(e)
    e("s_barrier")
    e(f"s_mov_b32 s99, {cfg.SPIN}")
    srd(e, S_C, 26, 27, 1024)
    srd(e, S_WMOD, 28, 29, 512 * 3072 * 2)
    srd(e, S_WS, 34, 35, WS_SIZE)
    srd(e, S_X, 8, 9, 1024)
    srd(e, S_WQ, 14, 15, 512 * 4096 * 2)
    sts(e, cfg, 0)
    e(f"""
    s_and_b32 s83, s81, 15
    s_lshr_b32 s60, s81, 4
    s_lshl_b32 s88, s60, 12
    s_lshl_b32 s89, s83, 8
    s_add_u32 s88, s88, s89
    s_lshl_b32 s82, s3, 9
    s_add_u32 s82, s82, {L_WL}
    s_mov_b32 s94, 0x05040100
    s_mov_b32 s95, 0x07060302
    """)
    lab_noa1 = e.label("L_noa1i")
    e(f"s_cmp_ge_u32 s3, 4\ns_cbranch_scc1 {lab_noa1}")
    e(f"""
    s_lshl_b32 s61, s60, 8
    s_lshl_b32 s62, s3, 6
    s_add_u32 s61, s61, s62
    v_lshlrev_b32 v{T0}, 1, v{V_LANE}
    s_lshl_b32 s91, s61, 1
    buffer_load_ushort v22, v{T0}, s[{S_C}:{S_C+3}], s91 offen
    """)
    unit64_voff(e, 19, 6144, T1, T2)
    e(f"""
    s_mul_i32 s63, s61, 6144
    s_lshl_b32 s62, s83, 7
    s_add_u32 s63, s63, s62
    """)
    AR = 96
    for ee in range(8):
        if ee: e(f"s_add_u32 s63, s63, 6144")
        e(f"buffer_load_dwordx4 v[{AR+4*ee}:{AR+4*ee+3}], v19, s[{S_WMOD}:{S_WMOD+3}], s63 offen nt")
    sts(e, cfg, 16)
    e(f"{lab_noa1}:")
    sts(e, cfg, 18)
    c, x, XA = 16, 17, 32
    V_OQ, V_OB, V_OG, V_ODN, V_OW, FO = 18, 19, 21, 23, 24, 20
    e(f"""
    v_lshlrev_b32 v{T3}, 4, v{V_LANE}
    s_lshl_b32 s91, s3, 7
    v_lshlrev_b32 v{V_TAU2}, 1, v{V_LANE}
    v_add_u32 v{V_TAU2}, s91, v{V_TAU2}
    """)
    unit128_voff(e, V_OQ, 8192, T0, T1)
    e(f"""
    s_lshl_b32 s90, s3, 19
    s_lshl_b32 s91, s81, 8
    s_add_u32 s90, s90, s91
    """)
    e.vmem(f"buffer_load_dwordx4 v[{XA}:{XA+3}], v{T3}, s[{S_X}:{S_X+3}], 0 offen", "xa")
    e.vmem(f"buffer_load_ushort v{x}, v{V_TAU2}, s[{S_X}:{S_X+3}], 0 offen", "x")
    e.vmem(f"buffer_load_ushort v{c}, v{V_TAU2}, s[{S_C}:{S_C+3}], 0 offen", "c")
    for i in range(16):
        ks, ee = divmod(i, 8)
        rload(W3 + 4 * i, V_OQ, S_WQ, "s90", (32 * ks + ee) * 8192, f"wq{i}")
    pump("wq3")
    sts(e, cfg, 14)
    lab = e.label("L_a1done")
    e(f"s_cmp_ge_u32 s3, 4\ns_cbranch_scc1 {lab}")
    e("s_waitcnt vmcnt(7)")
    sts(e, cfg, 17)
    e("v_lshlrev_b32 v22, 16, v22")
    silu(e, 22, 22, T1)
    e(f"""
    v_cvt_pk_bf16_f32 v22, v22, v22
    v_lshl_add_u32 v{T0}, v{V_LANE}, 1, s82
    ds_write_b16 v{T0}, v22
    v_and_b32 v{T1}, 1, v{V_LANE}
    v_lshlrev_b32 v{T1}, 6, v{T1}
    v_lshrrev_b32 v{T2}, 4, v{V_LANE}
    v_lshl_add_u32 v{T1}, v{T2}, 4, v{T1}
    v_add_u32 v{T1}, s82, v{T1}
    ds_read_b128 v[{V_A}:{V_A+3}], v{T1}
    """)
    TB, DA = 44, 128
    transpose_unit(e, AR, TB)
    e("s_waitcnt lgkmcnt(0)")
    for t in range(8):
        e(f"v_mfma_f32_16x16x32_bf16 v[{DA+4*t}:{DA+4*t+3}], v[{V_A}:{V_A+3}], v[{TB+4*t}:{TB+4*t+3}], 0")
    zsum64(e, DA, Z)
    e(f"""
    s_lshl_b32 s91, s3, 8
    v_lshlrev_b32 v{T0}, 5, v{V_LANE}
    v_add_u32 v{T0}, s91, v{T0}
    s_mov_b64 exec, 0xff
    ds_write_b128 v{T0}, v[{Z}:{Z+3}] offset:{L_RA1}
    ds_write_b128 v{T0}, v[{Z+4}:{Z+7}] offset:{L_RA1+16}
    """)
    counter_last(e, 0, 3, lab)
    e(f"v_lshlrev_b32 v{T0}, 2, v{V_LANE}")
    for v in range(4):
        e(f"ds_read_b32 v{Z+v}, v{T0} offset:{L_RA1 + 256*v}")
    e("s_waitcnt lgkmcnt(0)")
    tag_finish(e)
    e(f"""
    v_add_f32 v{Z}, v{Z}, v{Z+1}
    v_add_f32 v{Z+2}, v{Z+2}, v{Z+3}
    v_add_f32 v{Z}, v{Z}, v{Z+2}
    """)
    tag(e, Z)
    e(f"buffer_store_dword v{Z}, v{T0}, {WS}, s88 offen sc1")
    e(f"s_sub_u32 s{S_TAU}, s{S_TAU}, 1")
    sts(e, cfg, 1)
    e(f"{lab}:")
    pump("wq7")
    srd(e, S_DBG, 32, 33, 256)
    srd(e, S_WO, 16, 17, 4096 * 512 * 2)
    srd(e, S_WG, 20, 21, 512 * 1792 * 2)
    srd(e, S_WU, 22, 23, 512 * 1792 * 2)
    srd(e, S_WD, 24, 25, 1792 * 512 * 2)
    srd(e, S_OUT, 30, 31, 1024)
    e("s_waitcnt lgkmcnt(0)")
    tag_finish(e)
    lab = e.label("L_xcc")
    e(f"""
    s_cmp_lg_u32 s3, 0
    s_cbranch_scc1 {lab}
    s_getreg_b32 s91, hwreg(HW_REG_XCC_ID)
    s_and_b32 s91, s91, 15
    s_add_u32 s91, s91, 1
    v_mov_b32 v{T1}, s91
    s_lshl_b32 s92, s81, 2
    v_mov_b32 v{T2}, s92
    s_mov_b64 exec, 1
    buffer_store_dword v{T1}, v{T2}, s[{S_DBG}:{S_DBG+3}], 0 offen offset:{128 if getattr(cfg, "DBGT", 0) else 0} sc1
    s_mov_b64 exec, -1
    {lab}:
    """)
    e.wait_vm("c")
    U = 36
    for k in range(4):
        e(f"v_lshlrev_b32 v{U+2*k}, 16, v{XA+k}\nv_and_b32 v{U+2*k+1}, 0xffff0000, v{XA+k}")
    e(f"v_add_f32 v{V_A}, v{U}, v{U+1}\nv_mul_f32 v{V_A+1}, v{U}, v{U}\nv_fmac_f32 v{V_A+1}, v{U+1}, v{U+1}")
    for k in range(2, 8):
        e(f"v_add_f32 v{V_A}, v{V_A}, v{U+k}\nv_fmac_f32 v{V_A+1}, v{U+k}, v{U+k}")
    e(f"v_permlane32_swap_b32 v{V_A}, v{V_A+1}\nv_add_f32 v{V_A}, v{V_A}, v{V_A+1}")
    xrow(e, "v_add_f32", V_A, T0, 16)
    allreduce16(e, "v_add_f32", V_A)
    e(f"""
    v_lshlrev_b32 v{c}, 16, v{c}
    v_lshlrev_b32 v{x}, 16, v{x}
    v_readlane_b32 s91, v{V_A}, 0
    v_readlane_b32 s92, v{V_A}, 32
    """)
    silu(e, c, c, T0)
    e(f"""
    v_mov_b32 v{T0}, {f32(1/512)}
    v_mul_f32 v{T1}, s91, v{T0}
    v_mul_f32 v{T2}, s92, v{T0}
    v_fma_f32 v{T2}, -v{T1}, v{T1}, v{T2}
    v_add_f32 v{T2}, {f32(1e-5)}, v{T2}
    v_rsq_f32 v{T2}, v{T2}
    v_sub_f32 v{V_N}, v{x}, v{T1}
    v_mul_f32 v{V_N}, v{V_N}, v{T2}
    v_cvt_pk_bf16_f32 v{c}, v{c}, v{c}
    v_lshl_add_u32 v{T0}, v{V_LANE}, 1, s82
    ds_write_b16 v{T0}, v{c} offset:128
    """)
    pump("wq15")
    sts(e, cfg, 15)
    e(f"v_lshlrev_b32 v{FO}, 1, v{V_TAU2}\ns_mov_b32 s89, 4096")
    def moda_loads(track):
        for k, (so, im) in enumerate((("0", 0), ("s89", 0), ("0", 2048), ("s89", 2048))):
            t = f"buffer_load_dword v{Z+k}, v{FO}, {WS}, {so} offen offset:{im} sc1"
            if track: e.vmem(t, f"MA{k}")
            else: e(t)
    e.wait_vm_n(Dd[0] - 4)
    moda_loads(True)
    unit64_voff(e, V_OB, 6144, T0, T1)
    unit64_voff(e, V_OG, 3584, T0, T1)
    unit64_voff(e, V_ODN, 1024, T0, T1)
    unit128_voff(e, V_OW, 1024, T0, T1)
    e(f"""
    s_mul_i32 s90, s3, {64*6144}
    s_lshl_b32 s91, s81, 7
    s_add_u32 s90, s90, s91
    s_add_u32 s90, s90, 2048
    s_mul_i32 s61, s3, {64*3584}
    s_add_u32 s61, s61, s91
    s_lshl_b32 s62, s81, 16
    s_lshl_b32 s91, s3, 7
    s_add_u32 s62, s62, s91
    s_cmp_lt_u32 s81, 28
    s_cselect_b32 s61, s61, {OOB}
    s_cselect_b32 s62, s62, {OOB}
    s_lshr_b32 s60, s81, 1
    s_lshl_b32 s10, s60, 8
    s_lshl_b32 s63, s3, 5
    s_add_u32 s10, s10, s63
    s_lshl_b32 s10, s10, 10
    s_and_b32 s11, s81, 1
    s_lshl_b32 s63, s11, 9
    s_add_u32 s10, s10, s63
    s_mul_i32 s63, s3, 16384
    s_add_u32 s63, s63, {L_STG}
    """)
    if getattr(cfg, "NOBULK", 0):
        e(f"s_mov_b32 s61, {OOB}\ns_mov_b32 s62, {OOB}\ns_mov_b32 s10, {OOB}")
    for ee in range(8): rload(W1 + 4 * ee, V_OB, S_WMOD, "s90", ee * 6144, f"wb{ee}")
    for ee in range(8):
        for cb in range(2): rload(W2 + 32 * cb + 4 * ee, V_OW, S_WO, "s10", cb * 256 + ee * 1024, f"wo{cb}_{ee}")
    for ee in range(8): rload(W4 + 4 * ee, V_OG, S_WG, "s61", ee * 3584, f"wg{ee}")
    for ee in range(8): dma(V_OG, S_WU, "s61", ee * 3584, ee * 1024, f"wu{ee}")
    for ee in range(8): dma(V_ODN, S_WD, "s62", ee * 1024, 8192 + ee * 1024, f"wd{ee}")
    e.wait_vm("wq7")
    transpose_unit(e, W3, W2)
    pump("wb2")
    e.wait_vm("wq15")
    sts(e, cfg, 19)
    transpose_unit(e, W4, W3)
    e.wait_vm("MA3")
    sp = e.label("L_moda"); ok = e.label("L_modaok")
    check(e, T1, range(Z, Z + 4))
    e(f"s_cbranch_vccz {ok}\n{sp}:\ns_sleep 2")
    moda_loads(False)
    e("s_waitcnt vmcnt(0)")
    check(e, T1, range(Z, Z + 4))
    e(f"s_cbranch_vccz {ok}")
    spin_guard(e, sp)
    e(f"{ok}:")
    sts(e, cfg, 13)
    e(f"""
    v_add_f32 v{Z}, v{Z}, v{Z+1}
    v_add_f32 v{Z+2}, v{Z+2}, v{Z+3}
    v_add_f32 v{Z+2}, 1.0, v{Z+2}
    v_fma_f32 v{Z}, v{V_N}, v{Z+2}, v{Z}
    v_cvt_pk_bf16_f32 v{Z}, v{Z}, v{Z}
    v_lshl_add_u32 v{T0}, v{V_LANE}, 1, s82
    ds_write_b16 v{T0}, v{Z}
    v_lshrrev_b32 v{T0}, 4, v{V_LANE}
    v_lshl_add_u32 v{T0}, v{T0}, 4, s82
    ds_read_b128 v[{V_A}:{V_A+3}], v{T0}
    ds_read_b128 v[{V_A+4}:{V_A+7}], v{T0} offset:64
    s_waitcnt lgkmcnt(0)
    """)
    DQ = 44
    for t in range(8):
        e(f"v_mfma_f32_16x16x32_bf16 v[{DQ+4*t}:{DQ+4*t+3}], v[{V_A}:{V_A+3}], v[{W2+4*t}:{W2+4*t+3}], 0")
    for t in range(8):
        e(f"v_mfma_f32_16x16x32_bf16 v[{DQ+4*t}:{DQ+4*t+3}], v[{V_A+4}:{V_A+7}], v[{W3+4*t}:{W3+4*t+3}], v[{DQ+4*t}:{DQ+4*t+3}]")
    pump("wb5")
    e(f"""
    s_lshl_b32 s91, s3, 9
    s_add_u32 s91, s91, {L_RQ}
    v_lshlrev_b32 v{T0}, 5, v{V_LANE}
    v_add_u32 v{T0}, s91, v{T0}
    s_mov_b64 exec, 0xffff
    """)
    for u in range(4):
        e(f"ds_write2_b32 v{T0}, v{DQ+8*u}, v{DQ+8*u+4} offset0:{2*u} offset1:{2*u+1}")
    lab = e.label("L_qpub")
    counter_last(e, 4, 7, lab)
    e(f"v_lshlrev_b32 v{T0}, 3, v{V_LANE}")
    for v in range(8):
        e(f"ds_read_b64 v[{Z+2*v}:{Z+2*v+1}], v{T0} offset:{L_RQ + 512*v}")
    e("s_waitcnt lgkmcnt(0)")
    e(f"v_add_f32 v{Z}, v{Z}, v{Z+2}\nv_add_f32 v{Z+1}, v{Z+1}, v{Z+3}")
    for v in range(2, 8):
        e(f"v_add_f32 v{Z}, v{Z}, v{Z+2*v}\nv_add_f32 v{Z+1}, v{Z+1}, v{Z+2*v+1}")
    tag(e, Z); tag(e, Z + 1)
    e(f"""
    s_lshl_b32 s91, s81, 9
    s_add_u32 s91, s91, {WS_Q}
    buffer_store_dwordx2 v[{Z}:{Z+1}], v{T0}, {WS}, s91 offen sc1
    {lab}:
    """)
    sts(e, cfg, 3)
    Dd[0] = cfg.D_SVC2
    persist_setup(e, cfg)
    pump("wo0_3")
    e.wait_vm("wb7")
    transpose_unit(e, W1, W0)
    e(f"""
    ds_read_b128 v[{V_A}:{V_A+3}], v{P_A64R} offset:128
    s_waitcnt lgkmcnt(0)
    """)
    DB = 44
    for t in range(8):
        e(f"v_mfma_f32_16x16x32_bf16 v[{DB+4*t}:{DB+4*t+3}], v[{V_A}:{V_A+3}], v[{W0+4*t}:{W0+4*t+3}], 0")
    pump("wo0_5")
    zsum64(e, DB, Z)
    e(f"""
    s_lshl_b32 s91, s3, 8
    v_lshlrev_b32 v{T0}, 5, v{V_LANE}
    v_add_u32 v{T0}, s91, v{T0}
    s_mov_b64 exec, 0xff
    ds_write_b128 v{T0}, v[{Z}:{Z+3}] offset:{L_RB}
    ds_write_b128 v{T0}, v[{Z+4}:{Z+7}] offset:{L_RB+16}
    """)
    lab = e.label("L_bpub")
    counter_last(e, 8, 7, lab)
    e(f"v_lshlrev_b32 v{T0}, 2, v{V_LANE}")
    for v in range(8):
        e(f"ds_read_b32 v{Z+v}, v{T0} offset:{L_RB + 256*v}")
    e("s_waitcnt lgkmcnt(0)")
    e(f"v_add_f32 v{Z}, v{Z}, v{Z+1}")
    for v in range(2, 8): e(f"v_add_f32 v{Z}, v{Z}, v{Z+v}")
    tag(e, Z)
    e(f"""
    s_lshl_b32 s91, s81, 8
    s_add_u32 s91, s91, {WS_MODB}
    buffer_store_dword v{Z}, v{T0}, {WS}, s91 offen sc1
    {lab}:
    """)
    UR = 44
    pump("wg6")
    e.wait_vm("wo1_7")
    transpose_unit(e, W2, W0)
    transpose_unit(e, W3, W1)
    pump("wg7")
    e.wait_vm_n(max(Dd[0] - 6, 0))
    modb_loads(e, True)
    pump("wu5")
    e.wait_vm("wg7")
    transpose_unit(e, W4, W2)
    pump("wd7")
    modb_check(e, cfg)
    e(f"s_mul_i32 s91, s3, 16384\ns_add_u32 s91, s91, {L_STG}\nv_lshl_add_u32 v{T0}, v{V_LANE}, 4, s91")
    e.wait_vm("wu7")
    for ee in range(8): e(f"ds_read_b128 v[{UR+4*ee}:{UR+4*ee+3}], v{T0} offset:{ee*1024}")
    e("s_waitcnt lgkmcnt(0)")
    transpose_unit(e, UR, W3)
    e("s_mov_b32 s61, s11")
    post_addresses(e, cfg)
    u_stage(e, cfg)
    ml_first(e, cfg)
    if cfg.WARM:
        for sb in ("s13", "s17", "s18", "s19"):
            e.vmem(f"buffer_load_dword v92, v{P_XV}, {WS}, {sb} offen sc1", "warm")
        e.vmem(f"buffer_load_dword v92, v{P_FV}, {WS}, s14 offen sc1", "warm")
        e.vmem(f"buffer_load_dword v92, v{P_FV}, {WS}, s15 offen sc1", "warm")
        e.vmem(f"buffer_load_ushort v92, v{P_OUTV}, s[{S_OUT}:{S_OUT+3}], 0 offen", "warm")
    if not cfg.LATE_DOWN:
        down_transpose(e)
    sts(e, cfg, 4)
    post_chain(e, cfg)
    yield "done"

ML_BASE = 76
def ml_loads(e, track):
    WS = f"s[{S_WS}:{S_WS+3}]"
    ML = ML_BASE
    L = [f"buffer_load_dwordx4 v[{ML+4*i}:{ML+4*i+3}], v{P_MV}, {WS}, s88 offen offset:{1024*i} sc1" for i in range(3)]
    for k, t in enumerate(L):
        if track: e.vmem(t, f"ML{k}")
        else: e(t)
    e("s_mov_b32 exec_hi, 0")
    t = f"buffer_load_dwordx4 v[{ML+12}:{ML+15}], v{P_MV}, {WS}, s88 offen offset:3072 sc1"
    if track: e.vmem(t, "ML3")
    else: e(t)
    e("s_mov_b32 exec_hi, -1")

def ml_first(e, cfg):
    ML = ML_BASE
    e(f"v_mov_b32 v{ML+12}, 0xff7fff00\nv_mov_b32 v{ML+13}, s{S_TAU}\nv_mov_b32 v{ML+14}, s{S_TAU}\nv_mov_b32 v{ML+15}, s{S_TAU}")
    tag(e, ML + 12)
    ml_loads(e, True)

def modb_check(e, cfg):
    sp = e.label("L_modb"); ok = e.label("L_modbok")
    e.wait_vm("MB5")
    check(e, T0, [P_GA, P_SB, P_CB1, P_GB])
    e(f"v_cmp_eq_u32 s[82:83], 0, v3\ns_or_b64 vcc, vcc, s[82:83]\ns_cbranch_vccz {ok}\n{sp}:\ns_sleep 2")
    modb_loads(e, False)
    e("s_waitcnt vmcnt(0)")
    check(e, T0, [P_GA, P_SB, P_CB1, P_GB])
    e(f"v_cmp_eq_u32 s[82:83], 0, v3\ns_or_b64 vcc, vcc, s[82:83]\ns_cbranch_vccz {ok}")
    spin_guard(e, sp)
    e(f"{ok}:")
    e(f"""
    v_readfirstlane_b32 s91, v3
    s_nop 1
    v_cmp_ne_u32 vcc, s91, v3
    s_nop 1
    s_cmp_eq_u64 vcc, 0
    s_cselect_b32 s98, {0 if cfg.FORCE_SLOW else 1}, 0
    """)
    e(f"v_add_f32 v{P_CB1}, 1.0, v{P_CB1}\nv_lshlrev_b32 v{P_X}, 16, v{P_X}")

def post_addresses(e, cfg):
    WS = f"s[{S_WS}:{S_WS+3}]"
    e(f"""
    s_lshr_b32 s62, s60, 1
    s_mul_i32 s62, s62, 112
    s_and_b32 s63, s60, 1
    s_lshl_b32 s63, s63, 1
    s_add_u32 s62, s62, s63
    s_lshr_b32 s63, s3, 2
    s_add_u32 s62, s62, s63
    s_lshr_b32 s88, s60, 1
    s_mul_i32 s88, s88, {28*128}
    s_and_b32 s63, s60, 1
    s_lshl_b32 s63, s63, 1
    s_lshr_b32 s89, s3, 2
    s_add_u32 s63, s63, s89
    s_lshl_b32 s63, s63, 4
    s_add_u32 s88, s88, s63
    s_add_u32 s88, s88, {WS_ML}
    s_lshl_b32 s62, s62, 9
    s_and_b32 s63, s3, 3
    s_lshl_b32 s63, s63, 7
    s_add_u32 s62, s62, s63
    s_add_u32 s62, s62, {WS_PART}
    s_add_u32 s63, s62, 16384
    s_add_u32 s89, s62, 32768
    s_add_u32 s90, s62, 49152
    v_lshrrev_b32 v{T0}, 3, v{V_LANE}
    v_and_b32 v{T1}, 7, v{V_LANE}
    v_lshlrev_b32 v{T1}, 4, v{T1}
    v_lshl_add_u32 v{P_PV}, v{T0}, 11, v{T1}
    v_lshlrev_b32 v{P_MV}, 7, v{T0}
    v_lshrrev_b32 v{T0}, 4, v{V_LANE}
    v_and_b32 v{T1}, 15, v{V_LANE}
    v_lshlrev_b32 v{T1}, 4, v{T1}
    v_lshl_add_u32 v{P_XV}, v{T0}, 11, v{T1}
    s_lshl_b32 s91, s3, 8
    v_add_u32 v{P_XV}, s91, v{P_XV}
    v_lshrrev_b32 v{T0}, 2, v{V_LANE}
    v_and_b32 v{T1}, 3, v{V_LANE}
    v_lshlrev_b32 v{T1}, 4, v{T1}
    s_lshl_b32 s91, s81, 6
    v_add_u32 v{T1}, s91, v{T1}
    v_lshl_add_u32 v{P_FV}, v{T0}, 11, v{T1}
    s_lshl_b32 s8, s3, 10
    s_add_u32 s8, s8, {L_RP1}
    s_lshl_b32 s9, s60, 11
    s_lshl_b32 s91, s61, 10
    s_add_u32 s9, s9, s91
    s_add_u32 s9, s9, {WS_X1P}
    s_lshl_b32 s10, s3, 3
    s_add_u32 s10, s10, {L_STA2}
    s_lshl_b32 s11, s3, 9
    s_add_u32 s11, s11, {L_RGU}
    s_lshl_b32 s12, s81, 11
    s_lshl_b32 s91, s3, 8
    s_add_u32 s12, s12, s91
    s_add_u32 s12, s12, {WS_FFP}
    s_cmp_lt_u32 s81, 28
    s_cselect_b32 s12, s12, {OOB}
    s_mov_b32 s13, {WS_X1P}
    s_mov_b32 s17, {WS_X1P + 8192}
    s_mov_b32 s18, {WS_X1P + 16384}
    s_mov_b32 s19, {WS_X1P + 24576}
    s_mov_b32 s14, {WS_FFP}
    s_mov_b32 s15, {WS_FFP + 32768}
    """)

def u_stage(e, cfg):
    U1G, U2G, U1U, U2U = 2, 3, 7, 18
    e(f"""
    v_cvt_pk_bf16_f32 v{T0}, v{P_CB1}, v{P_CB1}
    v_cvt_pk_bf16_f32 v{T1}, v{P_SB}, v{P_SB}
    ds_write_b16 v{P_WH2}, v{T0} offset:64
    ds_write_b16 v{P_WH2}, v{T1} offset:192
    v_bfe_u32 v{T0}, v{V_LANE}, 1, 1
    v_lshl_add_u32 v{T0}, v{T0}, 7, v{P_A64R}
    ds_read_b128 v[{V_A}:{V_A+3}], v{T0} offset:64
    s_waitcnt lgkmcnt(0)
    """)
    for t in range(8):
        e(f"v_mfma_f32_16x16x32_bf16 v[{32+4*t}:{32+4*t+3}], v[{V_A}:{V_A+3}], v[{W2+4*t}:{W2+4*t+3}], 0")
    for t in range(8):
        e(f"v_mfma_f32_16x16x32_bf16 v[{64+4*t}:{64+4*t+3}], v[{V_A}:{V_A+3}], v[{W3+4*t}:{W3+4*t+3}], 0")
    e(f"s_mul_i32 s91, s3, 16384\ns_add_u32 s91, s91, {L_STG}\nv_lshl_add_u32 v{T0}, v{V_LANE}, 5, s91")
    for k, (D, r0) in enumerate(((32, 0), (32, 2), (64, 0), (64, 2))):
        for half in range(2):
            for t in range(4):
                tt = 4 * half + t
                e(f"v_add_f32_dpp v{28+t}, v{D+4*tt+r0+1}, v{D+4*tt+r0} row_shl:8 row_mask:0xf bank_mask:0xf")
            e(f"s_mov_b64 exec, 0xff\nds_write_b128 v{T0}, v[28:31] offset:{256*k + 16*half}\ns_mov_b64 exec, -1\ns_nop 1")
    e(f"v_lshlrev_b32 v{T0}, 2, v{V_LANE}\nv_add_u32 v{T0}, {L_STG}, v{T0}\nv_add_u32 v{T1}, 65536, v{T0}")
    e(f"v_mov_b32 v30, {L_STA2}\nv_mov_b32 v28, 0\nv_mov_b32 v29, 0\nds_write_b64 v30, v[28:29]\ns_waitcnt lgkmcnt(0)\ns_barrier")
    for k, U in enumerate((U1G, U2G, U1U, U2U)):
        for v in range(8):
            e(f"ds_read_b32 v{32+v}, v{T0} offset:{(16384*v + 256*k) % 65536}" if 16384*v + 256*k < 65536 else f"ds_read_b32 v{32+v}, v{T1} offset:{16384*v + 256*k - 65536}")
        if k == 0: pass
        e("s_waitcnt lgkmcnt(0)")
        e(f"v_add_f32 v{U}, v32, v33")
        for v in range(2, 8): e(f"v_add_f32 v{U}, v{U}, v{32+v}")

def down_transpose(e):
    UR = 44
    e(f"s_mul_i32 s91, s3, 16384\ns_add_u32 s91, s91, {L_STG}\nv_lshl_add_u32 v{T0}, v{V_LANE}, 4, s91")
    e.wait_vm("wd7")
    for ee in range(8): e(f"ds_read_b128 v[{UR+4*ee}:{UR+4*ee+3}], v{T0} offset:{8192 + ee*1024}")
    e("s_waitcnt lgkmcnt(0)")
    transpose_unit(e, UR, W4)

def post_chain(e, cfg):
    Z = 76
    WS = f"s[{S_WS}:{S_WS+3}]"
    U1G, U2G, U1U, U2U = 2, 3, 7, 18
    DT, ML = 28, ML_BASE
    for r in range(4): e(f"v_mov_b32 v{DT+12+r}, s{S_TAU}")
    sp = e.label("L_ml"); ok = e.label("L_mlok")
    e.wait_vm("ML3")
    check(e, T0, range(ML, ML + 16), T1)
    e(f"s_cbranch_vccz {ok}\n{sp}:\ns_sleep 4")
    ml_loads(e, False)
    e("s_waitcnt vmcnt(0)")
    check(e, T0, range(ML, ML + 16), T1)
    e(f"s_cbranch_vccz {ok}")
    spin_guard(e, sp)
    e(f"{ok}:")
    m = [ML + 4 * i for i in range(4)]
    e(f"""
    v_max3_f32 v{T0}, v{m[0]}, v{m[1]}, v{m[2]}
    v_max_f32 v{T0}, v{T0}, v{m[3]}
    v_max_f32_dpp v{T0}, v{T0}, v{T0} row_ror:8 row_mask:0xf bank_mask:0xf
    """)
    xrow(e, "v_max_f32", T0, T1, 16)
    xrow(e, "v_max_f32", T0, T1, 32)
    for i in range(4): e(f"v_sub_f32 v{m[i]}, v{m[i]}, v{T0}")
    for i in range(4): e(f"v_exp_f32 v{m[i]}, v{m[i]}")
    e(f"v_mul_f32 v{T2}, v{m[0]}, v{m[0]+1}")
    for i in range(1, 4): e(f"v_fmac_f32 v{T2}, v{m[i]}, v{m[i]+1}")
    e(f"v_add_f32_dpp v{T2}, v{T2}, v{T2} row_ror:8 row_mask:0xf bank_mask:0xf")
    xrow(e, "v_add_f32", T2, T1, 16)
    xrow(e, "v_add_f32", T2, T1, 32)
    e(f"v_rcp_f32 v{T2}, v{T2}")
    for i in range(4): e(f"v_mul_f32 v{m[i]}, v{m[i]}, v{T2}")
    e("s_waitcnt vmcnt(0)")
    e.vm = []
    sts(e, cfg, 5)
    sp = e.label("L_hopA"); ok = e.label("L_hopAok")
    e(f"{sp}:")
    for i, sb in enumerate(("s62", "s63", "s89")):
        e(f"buffer_load_dwordx4 v[{DT+4*i}:{DT+4*i+3}], v{P_PV}, {WS}, {sb} offen {cfg.LPOL}")
    e(f"""
    s_mov_b32 exec_hi, 0
    buffer_load_dwordx4 v[{DT+12}:{DT+15}], v{P_PV}, {WS}, s90 offen {cfg.LPOL}
    s_mov_b32 exec_hi, -1
    s_waitcnt vmcnt(0)
    """)
    check(e, T0, range(DT, DT + 16, 4))
    e(f"s_cbranch_vccz {ok}")
    if cfg.SLEEP_A: e(f"s_sleep {cfg.SLEEP_A}")
    spin_guard(e, sp)
    e(f"{ok}:")
    sts(e, cfg, 6)
    AC = 60
    for r in range(4): e(f"v_mul_f32 v{AC+r}, v{m[0]}, v{DT+r}")
    for i in range(1, 4):
        for r in range(4): e(f"v_fmac_f32 v{AC+r}, v{m[i]}, v{DT+4*i+r}")
    rs4(e, AC)
    e(f"""
    v_add_f32_dpp v{AC}, v{AC}, v{AC} row_ror:8 row_mask:0xf bank_mask:0xf
    v_cvt_pk_bf16_f32 v{AC}, v{AC}, v{AC}
    ds_write_b16 v{P_WLW1}, v{AC}
    ds_read_b128 v[{V_A}:{V_A+3}], v{P_A128R}
    v_lshl_add_u32 v{T0}, v{V_LANE}, 5, s8
    s_waitcnt lgkmcnt(0)
    """)
    DP = 32
    for cb in range(2):
        for t in range(8):
            d = DP + 4 * (8 * cb + t); b = W0 + 32 * cb + 4 * t
            e(f"v_mfma_f32_16x16x32_bf16 v[{d}:{d+3}], v[{V_A}:{V_A+3}], v[{b}:{b+3}], 0")
    e("s_mov_b64 exec, 0xffff")
    for cb in range(2):
        for u in range(4):
            d = DP + 4 * (8 * cb + 2 * u)
            e(f"ds_write2_b32 v{T0}, v{d}, v{d+4} offset0:{128*cb+2*u} offset1:{128*cb+2*u+1}")
    e(f"""
    s_mov_b64 exec, -1
    v_lshrrev_b32 v{T0}, 3, v{V_LANE}
    v_and_b32 v{T1}, 7, v{V_LANE}
    v_lshlrev_b32 v{T1}, 4, v{T1}
    v_lshl_add_u32 v{T0}, v{T0}, 10, v{T1}
    s_lshl_b32 s91, s3, 7
    v_add_u32 v{T0}, s91, v{T0}
    v_lshrrev_b32 v{T2}, 4, v{V_LANE}
    v_and_b32 v29, 1, v{T2}
    v_lshlrev_b32 v29, 3, v29
    v_lshrrev_b32 v{T2}, 1, v{T2}
    v_lshl_add_u32 v{T2}, v{T2}, 2, v29
    v_add3_u32 v{T2}, v{T2}, v{T1}, s91
    s_waitcnt lgkmcnt(0)
    s_barrier
    ds_read_b128 v[28:31], v{T0} offset:{L_RP1}
    s_waitcnt lgkmcnt(0)
    """)
    rs4(e, 28)
    e(f"v_add_f32_dpp v28, v28, v28 row_ror:8 row_mask:0xf bank_mask:0xf")
    tag(e, 28)
    store_mode(e, f"buffer_store_dword v28, v{T2}, {WS}, s9 offen {{pol}}")
    sts(e, cfg, 7)
    if cfg.LATE_DOWN:
        down_transpose(e)
    if cfg.DELAY:
        for _ in range(cfg.DELAY // 64): e("s_nop 15\ns_nop 15\ns_nop 15\ns_nop 15")
    XD = 28
    sp = e.label("L_hopB"); ok = e.label("L_hopBok")
    e(f"{sp}:")
    for i, sb in enumerate(("s13", "s17", "s18", "s19")):
        e(f"buffer_load_dwordx4 v[{XD+4*i}:{XD+4*i+3}], v{P_XV}, {WS}, {sb} offen sc1")
    e("s_waitcnt vmcnt(0)")
    check(e, T0, range(XD, XD + 16, 4))
    e(f"s_cbranch_vccz {ok}")
    if cfg.SLEEP_B: e(f"s_sleep {cfg.SLEEP_B}")
    spin_guard(e, sp)
    e(f"{ok}:")
    e.vm = []
    sts(e, cfg, 8)
    for r in (0, 2):
        e(f"v_pk_add_f32 v[{XD+r}:{XD+r+1}], v[{XD+r}:{XD+r+1}], v[{XD+4+r}:{XD+5+r}]")
        e(f"v_pk_add_f32 v[{XD+8+r}:{XD+9+r}], v[{XD+8+r}:{XD+9+r}], v[{XD+12+r}:{XD+13+r}]")
    for r in (0, 2):
        e(f"v_pk_add_f32 v[{XD+r}:{XD+r+1}], v[{XD+r}:{XD+r+1}], v[{XD+8+r}:{XD+9+r}]")
    rs4(e, XD)
    X1 = 44
    e(f"""
    v_fma_f32 v{X1}, v{P_GA}, v{XD}, v{P_X}
    v_mul_f32 v{T2}, v{X1}, v{P_CB1}
    v_mov_b32 v{T0}, v{X1}
    v_mul_f32 v{T1}, v{X1}, v{X1}
    v_cvt_pk_bf16_f32 v{T2}, v{T2}, v{T2}
    ds_write_b16 v{P_WH2}, v{T2} offset:64
    ds_read_b128 v[{V_A}:{V_A+3}], v{P_A64R} offset:64
    ds_write_b32 v{P_COL4}, v{X1} offset:{L_X1}
    v_permlane32_swap_b32 v{T0}, v{T1}
    v_add_f32 v{T0}, v{T0}, v{T1}
    """)
    xrow(e, "v_add_f32", T0, T1, 16)
    e("s_waitcnt lgkmcnt(1)")
    mf = [f"v_mfma_f32_16x16x32_bf16 v[{32+4*t}:{32+4*t+3}], v[{V_A}:{V_A+3}], v[{W2+4*t}:{W2+4*t+3}], 0" for t in range(8)] + \
         [f"v_mfma_f32_16x16x32_bf16 v[{64+4*t}:{64+4*t+3}], v[{V_A}:{V_A+3}], v[{W3+4*t}:{W3+4*t+3}], 0" for t in range(8)]
    for n, steps in enumerate((1, 2, 4, 8)):
        e(mf[2 * n]); e(mf[2 * n + 1])
        e(f"v_add_f32_dpp v{T0}, v{T0}, v{T0} row_ror:{steps} row_mask:0xf bank_mask:0xf")
    for n in range(8, 16): e(mf[n])
    e(f"""
    v_lshrrev_b32 v{T1}, 5, v{V_LANE}
    v_lshlrev_b32 v{T1}, 2, v{T1}
    s_mov_b32 exec_lo, 1
    s_mov_b32 exec_hi, 1
    ds_add_f32 v{T1}, v{T0} offset:{L_STA2}
    s_mov_b64 exec, -1
    v_lshl_add_u32 v{T0}, v{V_LANE}, 5, s11
    """)
    zsum64(e, 32, 32)
    zsum64(e, 64, 64)
    e(f"""
    s_mov_b64 exec, 0xff
    ds_write_b128 v{T0}, v[32:35]
    ds_write_b128 v{T0}, v[36:39] offset:16
    ds_write_b128 v{T0}, v[64:67] offset:256
    ds_write_b128 v{T0}, v[68:71] offset:272
    s_mov_b64 exec, -1
    v_lshlrev_b32 v{T0}, 2, v{V_LANE}
    v_add_u32 v{T0}, {L_RGU}, v{T0}
    v_mov_b32 v{T2}, 0
    s_waitcnt lgkmcnt(0)
    s_barrier
    """)
    SZ, GU = 28, 48
    e(f"ds_read_b64 v[{SZ}:{SZ+1}], v{T2} offset:{L_STA2}")
    for v in range(8):
        e(f"ds_read2st64_b32 v[{GU+2*v}:{GU+2*v+1}], v{T0} offset0:{2*v} offset1:{2*v+1}")
    e(f"ds_read_b32 v44, v{P_COLF4} offset:{L_X1}")
    e(f"v_lshlrev_b32 v{T1}, 1, v{V_LANE}\nv_add_u32 v{T1}, s16, v{T1}")
    e("s_waitcnt lgkmcnt(9)")
    e(f"""
    v_mul_f32 v{T0}, {f32(1/512)}, v{SZ}
    v_mul_f32 v{T2}, {f32(1/512)}, v{SZ+1}
    v_fma_f32 v{T2}, -v{T0}, v{T0}, v{T2}
    v_add_f32 v{T2}, {f32(1e-5)}, v{T2}
    v_rsq_f32 v{T2}, v{T2}
    s_waitcnt lgkmcnt(1)
    """)
    for v in range(0, 8, 2):
        e(f"v_pk_add_f32 v[{GU+2*v}:{GU+2*v+1}], v[{GU+2*v}:{GU+2*v+1}], v[{GU+2*v+2}:{GU+2*v+3}]")
    e(f"v_pk_add_f32 v[{GU}:{GU+1}], v[{GU}:{GU+1}], v[{GU+4}:{GU+5}]")
    e(f"v_pk_add_f32 v[{GU+8}:{GU+9}], v[{GU+8}:{GU+9}], v[{GU+12}:{GU+13}]")
    e(f"v_pk_add_f32 v[{GU}:{GU+1}], v[{GU}:{GU+1}], v[{GU+8}:{GU+9}]")
    e(f"""
    v_fma_f32 v{GU}, -v{T0}, v{U1G}, v{GU}
    v_fma_f32 v{GU+1}, -v{T0}, v{U1U}, v{GU+1}
    v_fma_f32 v{GU}, v{GU}, v{T2}, v{U2G}
    v_fma_f32 v{GU+1}, v{GU+1}, v{T2}, v{U2U}
    v_mul_f32 v{T0}, {f32(-LOG2E)}, v{GU}
    v_exp_f32 v{T0}, v{T0}
    v_mul_f32 v{GU}, v{GU}, v{GU+1}
    v_add_f32 v{T0}, 1.0, v{T0}
    v_rcp_f32 v{T0}, v{T0}
    v_mul_f32 v{T0}, v{GU}, v{T0}
    v_cvt_pk_bf16_f32 v{T0}, v{T0}, v{T0}
    ds_write_b16 v{T1}, v{T0} offset:320
    ds_read_b128 v[{V_A}:{V_A+3}], v{P_A64R} offset:320
    v_lshrrev_b32 v{T0}, 3, v{V_LANE}
    v_and_b32 v{T1}, 7, v{V_LANE}
    v_lshlrev_b32 v{T1}, 5, v{T1}
    v_lshl_add_u32 v{T0}, v{T0}, 4, v{T1}
    s_waitcnt lgkmcnt(0)
    """)
    DD = 64
    for t in range(8):
        e(f"v_mfma_f32_16x16x32_bf16 v[{DD+4*t}:{DD+4*t+3}], v[{V_A}:{V_A+3}], v[{W4+4*t}:{W4+4*t+3}], 0")
    zsum64(e, DD, DD)
    for r in range(4):
        e(f"v_mov_b32_dpp v{DD+r}, v{DD+4+r} row_shr:8 row_mask:0xf bank_mask:0xc")
    for r in range(4): tag(e, DD + r)
    e("s_mov_b64 exec, 0xffff")
    store_mode(e, f"buffer_store_dwordx4 v[{DD}:{DD+3}], v{T0}, {WS}, s12 offen {{pol}}")
    e("s_mov_b64 exec, -1")
    e("L_final:")
    e("s_waitcnt lgkmcnt(0)")
    sts(e, cfg, 9)
    lab_end = e.label("L_svc_end")
    e(f"s_cmp_lg_u32 s3, 0\ns_cbranch_scc1 {lab_end}")
    FD = 28
    for r in range(4): e(f"v_mov_b32 v{FD+4+r}, s{S_TAU}")
    sp = e.label("L_hopC"); ok = e.label("L_hopCok")
    e(f"""
    {sp}:
    buffer_load_dwordx4 v[{FD}:{FD+3}], v{P_FV}, {WS}, s14 offen sc1
    s_mov_b32 exec_hi, 0xffff
    buffer_load_dwordx4 v[{FD+4}:{FD+7}], v{P_FV}, {WS}, s15 offen sc1
    s_mov_b32 exec_hi, -1
    s_waitcnt vmcnt(0)
    """)
    check(e, T0, range(FD, FD + 8, 4))
    e(f"s_cbranch_vccz {ok}")
    if cfg.SLEEP_C: e(f"s_sleep {cfg.SLEEP_C}")
    spin_guard(e, sp)
    e(f"{ok}:")
    sts(e, cfg, 10)
    for r in range(4): e(f"v_add_f32 v{FD+r}, v{FD+r}, v{FD+4+r}")
    rs4(e, FD)
    e(f"""
    v_add_f32_dpp v{FD}, v{FD}, v{FD} row_ror:4 row_mask:0xf bank_mask:0xf
    v_add_f32_dpp v{FD}, v{FD}, v{FD} row_ror:8 row_mask:0xf bank_mask:0xf
    v_fma_f32 v{FD}, v{P_GB}, v{FD}, v44
    v_cvt_pk_bf16_f32 v{FD}, v{FD}, v{FD}
    buffer_store_short v{FD}, v{P_OUTV}, s[{S_OUT}:{S_OUT+3}], 0 offen
    """)
    sts(e, cfg, 11)
    if getattr(cfg, "DBGT", 0):
        e(f"""
        s_waitcnt vmcnt(0)
        s_memrealtime s[96:97]
        s_waitcnt lgkmcnt(0)
        s_sub_u32 s96, s96, s101
        v_mov_b32 v4, s96
        s_lshl_b32 s91, s81, 2
        v_mov_b32 v5, s91
        v_cmp_gt_u32 vcc, 32, v5
        s_mov_b64 exec, 1
        s_cmp_ge_u32 s81, 6
        s_cbranch_scc1 {lab_end}
        buffer_store_dword v4, v5, s[{S_DBG}:{S_DBG+3}], 0 offen sc1
        """)
    e(f"{lab_end}:")
    if cfg.TS:
        e(f"""
        s_lshl_b32 s91, s81, 3
        s_add_u32 s91, s91, s3
        s_lshl_b32 s91, s91, 7
        s_add_u32 s91, s91, {WS_TS + 0x10000}
        v_lshlrev_b32 v{T0}, 2, v{V_LANE}
        s_mov_b32 exec_hi, 0
        buffer_store_dword v0, v{T0}, {WS}, s91 offen
        """)
    e("s_endpgm")
```

```python
import sys
sys.path.insert(0, "gen")
from kern import *
import att, svc

def pf_code(cfg):
    if cfg.PFMODE == 0:
        return f"""s_cmp_ge_u32 s2, {cfg.PF_WGS}
    s_cbranch_scc1 L_nopf0
    s_movk_i32 s80, 0x2000
    buffer_load_dwordx4 v[248:251], v3, s[76:79], 0 offen
    buffer_load_dwordx4 v[252:255], v3, s[76:79], s80 offen"""
    return f"""s_cmp_ge_u32 s2, {cfg.PF_WGS}
    s_cbranch_scc1 L_nopf0
    s_and_b32 s80, s2, 7
    s_cmp_eq_u32 s80, {cfg.SVC_X}
    s_cselect_b32 s80, L_service-L_pc, 0
    buffer_load_dwordx4 v[248:251], v3, s[76:79], s80 offen
    s_cbranch_scc0 L_nopf0
    s_add_u32 s80, s80, 0x2000
    buffer_load_dwordx4 v[252:255], v3, s[76:79], s80 offen"""

def build(cfg):
    e = Emitter()
    e(f"""
    L_entry:
    s_getpc_b64 s[76:77]
    L_pc:
    {"s_memrealtime s[98:99]" if getattr(cfg, "DBGT", 0) else ""}
    {"s_memrealtime s[70:71]" if getattr(cfg, "TSE", 0) else ""}
    s_load_dwordx16 s[8:23], s[0:1], 0
    s_load_dwordx4 s[32:35], s[0:1], 96
    s_load_dwordx8 s[24:31], s[0:1], 64
    s_cmp_ge_u32 s2, 256
    s_cbranch_scc1 L_exit
    s_mov_b32 s78, L_code_end-L_pc
    s_mov_b32 s79, 0x20000
    v_lshlrev_b32 v3, 4, v0
    {pf_code(cfg)}
    L_nopf0:
    v_lshrrev_b32 v2, 6, v0
    v_and_b32 v1, 63, v0
    s_and_b32 s80, s2, 7
    s_lshr_b32 s81, s2, 3
    v_readfirstlane_b32 s3, v2
    {"s_waitcnt lgkmcnt(0)" if getattr(cfg, "DBGT", 0) else ""}
    {"s_mov_b32 s101, s98" if getattr(cfg, "DBGT", 0) else ""}
    s_cmp_lg_u32 s80, {cfg.SVC_X}
    s_cbranch_scc1 L_attention
    v_mov_b32 v4, 0
    v_mov_b32 v5, 0x200000
    s_waitcnt lgkmcnt(0)
    global_load_dword v240, v4, s[14:15]
    global_load_dword v241, v4, s[28:29]
    global_load_dword v242, v5, s[14:15]
    global_load_dword v243, v5, s[28:29]
    global_load_dword v244, v4, s[8:9]
    global_load_dword v245, v4, s[26:27]
    global_load_dword v246, v4, s[34:35]
    s_branch L_service
    L_attention:
    """)
    att.attention(e, cfg)
    e.vm = []
    e("L_service:")
    for _ in svc.service(e, cfg): pass
    e("L_exit:\ns_endpgm\nL_code_end:")
    lds = max(att.att_lds(cfg), svc.SVC_LDS)
    lds = (lds + 255) // 256 * 256
    return wrap_single(e.text(), 256, 512, lds, 256)

def mkcfg(**kw):
    c = Cfg()
    c.Q_AT = 45
    c.NVL = 16
    c.MODA_AFTER = 12
    c.D_V = 4
    c.V_EARLY_TILES = 1
    c.V_PER_LDS_GROUP = 2
    c.NQ1 = 2
    c.NWB_EARLY = 8
    c.PF_WGS = 16
    c.KPOL = 'nt'
    c.PPOL = 'sc1'
    c.LPOL = 'sc1'
    c.WARM = 1
    c.PFMODE = 1
    c.DELAY = 0
    c.ML_DEFER = 0
    c.ML_CHK = 0
    c.QSLEEP = 8
    c.BURST = 4
    c.RAMP_N = 0
    c.RAMP_D = 2
    c.LATE_DOWN = 1
    c.D_SVC2 = 7
    c.SVC_X = 0
    c.D_ATT_EVEN = None
    c.D_V_EVEN = None
    for k, v in kw.items(): setattr(c, k, v)
    if c.D_ATT_EVEN is None: c.D_ATT_EVEN = c.D_ATT
    if c.D_V_EVEN is None: c.D_V_EVEN = c.D_V
    return c

if __name__ == "__main__":
    out = sys.argv[1] if len(sys.argv) > 1 else "k0.s"
    kw = {}
    for a in sys.argv[2:]:
        k, v = a.split("=")
        kw[k] = int(v) if v.lstrip("-").isdigit() else (v == "True" if v in ("True", "False") else v.replace("+", " "))
    open(out, "w").write(build(mkcfg(**kw)))
    print("wrote", out)
```

```python
from kern import *

V_LANE, V_KOFF, V_VOFF, V_QOFF, V_FO2, V_T0, V_T1 = 1, 2, 3, 4, 5, 6, 7
V_Q = 8
V_S = 12
V_M, V_L = 22, 23
V_D = [24, 40]
V_O = 56
V_STG = 88
V_POP = 104
V_KV = 108
NBLK = 37
LDS_OBUF = 0
LDS_MLW = 16384
LDS_FW = 16384 + 256
LDS_CNT = 16384 + 384
LDS_VL = 16384 + 512
def att_lds(cfg): return LDS_VL + 8 * cfg.NVL * 1024

def kv(i): return V_KV + 4 * i

def attention(e, cfg):
    e(f"""
    s_cmp_gt_u32 s80, {cfg.SVC_X}
    s_cselect_b32 s82, 1, 0
    s_sub_u32 s82, s80, s82
    s_lshl_b32 s82, s82, 5
    s_add_u32 s82, s82, s81
    s_mov_b32 s83, {(2**32 + 27) // 28}
    s_mul_hi_u32 s84, s82, s83
    s_mul_i32 s85, s84, 28
    s_sub_u32 s85, s82, s85
    s_lshl_b32 s86, s85, 3
    s_add_u32 s86, s86, s3
    s_lshl_b32 s87, s86, 8
    s_mov_b32 s83, {(2**32 + 6) // 7}
    s_mul_hi_u32 s88, s87, s83
    s_add_u32 s87, s87, 256
    s_mul_hi_u32 s89, s87, s83
    s_sub_u32 s89, s89, s88
    s_lshl_b32 s52, s88, 10
    s_lshl_b32 s90, s84, 23
    v_bfe_u32 v{V_KOFF}, v{V_LANE}, 2, 2
    v_lshlrev_b32 v{V_KOFF}, 8, v{V_KOFF}
    v_lshrrev_b32 v{V_T0}, 4, v{V_LANE}
    v_lshlrev_b32 v{V_T0}, 6, v{V_T0}
    v_and_b32 v{V_T1}, 3, v{V_LANE}
    v_lshlrev_b32 v{V_VOFF}, 4, v{V_T1}
    v_add3_u32 v{V_KOFF}, v{V_KOFF}, v{V_T0}, v{V_VOFF}
    """)
    e("s_waitcnt lgkmcnt(0)")
    tag_setup(e)
    srd(e, 36, 10, 11, 0x800000, add="s90")
    ts(e, cfg, 60)
    D = cfg.D_ATT
    DE = cfg.D_ATT_EVEN
    def throttle(dodd, deven):
        def nwait(d):
            big = [i for i, t_ in enumerate(e.vm) if not (t_ and t_.startswith("Q"))]
            if len(big) < d: return None
            idx = big[len(big) - d]
            return len(e.vm) - 1 - idx
        if deven < dodd:
            n = nwait(deven)
            if n is not None:
                lab = e.label("L_th")
                e(f"s_cbranch_vccz {lab}\ns_waitcnt vmcnt({n})\n{lab}:")
        n = nwait(dodd)
        if n is not None: e.wait_vm_n(n)
    def set_parity():
        e("s_getreg_b32 s51, hwreg(HW_REG_XCC_ID)\ns_bitcmp1_b32 s51, 0\ns_cselect_b64 vcc, 0, -1")
    cur = [None]
    def kload(i):
        hi = (i // 4) * 4096
        if i == NBLK - 1:
            e.vmem(f"buffer_load_dwordx4 v[{kv(i)}:{kv(i)+3}], v{V_KOFF}, s[36:39], s54 offen {cfg.KPOL}", f"K{i}")
            return
        if cur[0] != hi:
            if hi == 0: e("s_mov_b32 s53, s52")
            else: e("s_addk_i32 s53, 0x1000")
            cur[0] = hi
        e.vmem(f"buffer_load_dwordx4 v[{kv(i)}:{kv(i)+3}], v{V_KOFF}, s[36:39], s53 offen offset:{(i%4)*1024} {cfg.KPOL}", f"K{i}")
    D0 = cfg.BURST
    for i in range(D0):
        kload(i)
    e(f"v_mov_b32 v{V_S}, {LDS_CNT}\nv_mov_b32 v{V_S+1}, 0\nds_write_b32 v{V_S}, v{V_S+1}\ns_waitcnt lgkmcnt(0)\ns_barrier")
    srd(e, 40, 12, 13, 0x800000, add="s90")
    srd(e, 44, 34, 35, WS_SIZE)
    e(f"""
    s_add_u32 s54, s52, {(NBLK-1)*1024}
    s_cmp_eq_u32 s89, {NBLK}
    s_cselect_b32 s54, s54, {OOB}
    s_cselect_b32 s56, 0, 0xff800000
    s_lshl_b32 s55, s84, 11
    s_add_u32 s55, s55, {WS_Q}
    s_mov_b32 s57, {f32(SCALE_C)}
    s_mul_i32 s58, s84, 28
    s_add_u32 s58, s58, s85
    s_lshl_b32 s59, s58, 7
    s_add_u32 s59, s59, {WS_ML}
    s_lshl_b32 s58, s58, 11
    s_add_u32 s58, s58, {WS_PART}
    s_mov_b32 s94, 0x05040100
    s_mov_b32 s95, 0x07060302
    s_mov_b32 s99, {cfg.SPIN}
    v_lshlrev_b32 v{V_QOFF}, 9, v{V_T1}
    v_lshl_add_u32 v{V_QOFF}, v{V_T0}, 1, v{V_QOFF}
    v_bfe_u32 v{V_T0}, v{V_LANE}, 2, 2
    v_lshl_add_u32 v{V_QOFF}, v{V_T0}, 5, v{V_QOFF}
    v_lshlrev_b32 v{V_VOFF}, 4, v{V_LANE}
    v_mov_b32 v{V_S+9}, 0xff800000
    """)
    Q_AT = cfg.Q_AT
    NVL = cfg.NVL
    QR = V_D[0]
    def qloads(track):
        for kb in range(4):
            if kb: e(f"s_add_u32 s50, s55, {16384*kb}")
            so = "s50" if kb else "s55"
            for k in range(2):
                t = f"buffer_load_dwordx4 v[{QR+8*kb+4*k}:{QR+8*kb+4*k+3}], v{V_QOFF}, s[44:47], {so} offen offset:{16*k} sc1"
                if track: e.vmem(t, f"Q{2*kb+k}")
                else: e(t)
    e(f"s_mul_i32 s48, s3, {NVL*1024}\ns_add_u32 s48, s48, {LDS_VL}")
    def vdma(k):
        if k % 4 == 0:
            e(f"s_add_u32 s49, s52, {k*1024}\ns_add_u32 s50, s48, {k*1024}\ns_mov_b32 m0, s50\ns_nop 0")
        e.vmem(f"buffer_load_dwordx4 v{V_VOFF}, s[40:43], s49 offen offset:{(k%4)*1024} {cfg.KPOL} lds", f"L{k}")
    set_parity()
    for i in range(D0, NBLK + NVL):
        if i == Q_AT:
            throttle(D, DE)
            qloads(True)
        if i < cfg.RAMP_N: e.wait_vm_n(cfg.RAMP_D - 1)
        throttle(D, DE)
        if i < NBLK: kload(i)
        else: vdma(i - NBLK)
        if cfg.TS and getattr(cfg, "TSK", 0):
            if i == 8: ts(e, cfg, 67)
            if i == 20: ts(e, cfg, 68)
            if i == 36: ts(e, cfg, 69)
    ts(e, cfg, 61)
    for _ in range(getattr(cfg, "DELAY_Q", 0) // 64): e("s_nop 15")
    e("s_waitcnt lgkmcnt(0)")
    tag_finish(e)
    e.wait_vm("Q7")
    ok = e.label("L_qok"); sp = e.label("L_qspin")
    check(e, V_T0, range(QR, QR + 32, 4), V_T1)
    e(f"s_cbranch_vccz {ok}\n{sp}:\ns_sleep {cfg.QSLEEP}")
    qloads(False)
    e("s_waitcnt vmcnt(0)")
    check(e, V_T0, range(QR, QR + 32, 4), V_T1)
    e(f"s_cbranch_vccz {ok}")
    spin_guard(e, sp)
    e(f"{ok}:")
    for r in range(0, 8, 2):
        e(f"v_pk_add_f32 v[{QR+r}:{QR+r+1}], v[{QR+r}:{QR+r+1}], v[{QR+8+r}:{QR+9+r}]")
        e(f"v_pk_add_f32 v[{QR+16+r}:{QR+17+r}], v[{QR+16+r}:{QR+17+r}], v[{QR+24+r}:{QR+25+r}]")
    for r in range(0, 8, 2):
        e(f"v_pk_add_f32 v[{QR+r}:{QR+r+1}], v[{QR+r}:{QR+r+1}], v[{QR+16+r}:{QR+17+r}]")
    for k in range(4):
        e(f"v_cvt_pk_bf16_f32 v{V_Q+k}, v{QR+2*k}, v{QR+2*k+1}")
    ts(e, cfg, 62)
    curv = [None]
    def vload(i):
        hi = (i // 4) * 4096
        if i == NBLK - 1:
            e.vmem(f"buffer_load_dwordx4 v[{kv(i)}:{kv(i)+3}], v{V_VOFF}, s[40:43], s54 offen {cfg.KPOL}", f"V{i}")
            return
        if curv[0] != hi:
            if hi == 0: e("s_mov_b32 s53, s52")
            else: e(f"s_add_u32 s53, s52, {hi}")
            curv[0] = hi
        e.vmem(f"buffer_load_dwordx4 v[{kv(i)}:{kv(i)+3}], v{V_VOFF}, s[40:43], s53 offen offset:{(i%4)*1024} {cfg.KPOL}", f"V{i}")
    def tile_blocks(T): return list(range(4 * T, min(4 * T + 4, NBLK)))
    def reduce_tile(T, par):
        Db = V_D[par]
        S = V_S + T
        for t, blk in enumerate(tile_blocks(T)):
            for b in range(4):
                rot = (4 * (t - b)) % 16
                ctl = f"row_ror:{rot}" if rot else "quad_perm:[0,1,2,3]"
                if b == 0:
                    e(f"v_mov_b32_dpp v{S}, v{Db + 4*t + b} {ctl} row_mask:0xf bank_mask:0x{1 << t:x}")
                else:
                    e(f"v_add_f32_dpp v{S}, v{Db + 4*t + b}, v{S} {ctl} row_mask:0xf bank_mask:0x{1 << t:x}")
    NT = 10
    DV = cfg.D_V
    DVE = cfg.D_V_EVEN
    set_parity()
    NVT = NVL // 4
    order = list(range(NVT, NT)) + list(range(NVT))
    vnext = [NVL]
    def v_issue_upto(n):
        while vnext[0] < min(n, NBLK):
            throttle(DV, DVE)
            vload(vnext[0]); vnext[0] += 1
    e(f"v_lshl_add_u32 v{V_FO2}, v{V_LANE}, 4, s48")
    prev = None
    for n, T in enumerate(order):
        bl = tile_blocks(T)
        e.wait_vm(f"K{bl[-1]}")
        for t, blk in enumerate(bl):
            Dd = V_D[n & 1] + 4 * t
            e(f"v_mfma_f32_16x16x32_bf16 v[{Dd}:{Dd+3}], v[{kv(blk)}:{kv(blk)+3}], v[{V_Q}:{V_Q+3}], 0")
        if prev is not None: reduce_tile(prev, (n - 1) & 1)
        if n < cfg.V_EARLY_TILES and T >= NVT:
            for blk in bl:
                if blk == vnext[0]:
                    vload(blk); vnext[0] += 1
        if T < NVT:
            e.wait_vm(f"L{bl[-1]}")
            for blk in bl:
                e(f"ds_read_b128 v[{kv(blk)}:{kv(blk)+3}], v{V_FO2} offset:{blk*1024}")
        prev = T
    reduce_tile(prev, (NT - 1) & 1)
    e(f"v_add_f32 v{V_S+9}, s56, v{V_S+9}")
    ts(e, cfg, 63)
    e(f"v_max3_f32 v{V_M}, v{V_S}, v{V_S+1}, v{V_S+2}")
    for k in range(3, 9, 2):
        e(f"v_max3_f32 v{V_M}, v{V_M}, v{V_S+k}, v{V_S+k+1}")
    e(f"v_max_f32 v{V_M}, v{V_M}, v{V_S+9}")
    allreduce16(e, "v_max_f32", V_M, steps=(4, 8))
    xrow(e, "v_max_f32", V_M, V_T0, 16)
    xrow(e, "v_max_f32", V_M, V_T0, 32)
    e(f"v_mul_f32 v{V_M}, s57, v{V_M}")
    for T in range(NT):
        e(f"v_fma_f32 v{V_S+T}, v{V_S+T}, s57, -v{V_M}")
    for T in range(NT):
        e(f"v_exp_f32 v{V_S+T}, v{V_S+T}")
    v_issue_upto(vnext[0] + 2)
    e(f"v_add_f32 v{V_L}, v{V_S}, v{V_S+1}")
    for T in range(2, NT):
        e(f"v_add_f32 v{V_L}, v{V_L}, v{V_S+T}")
    for g in range(5):
        e(f"v_cvt_pk_bf16_f32 v{V_S+2*g}, v{V_S+2*g}, v{V_S+2*g+1}")
    allreduce16(e, "v_add_f32", V_L, steps=(4, 8))
    xrow(e, "v_add_f32", V_L, V_T0, 16)
    xrow(e, "v_add_f32", V_L, V_T0, 32)
    lab = e.label("L_mlpub")
    e(f"""
    s_lshl_b32 s91, s3, 5
    v_lshlrev_b32 v{V_T0}, 3, v{V_LANE}
    v_add_u32 v{V_T0}, s91, v{V_T0}
    s_mov_b64 exec, 0xf
    ds_write_b64 v{V_T0}, v[{V_M}:{V_M+1}] offset:{LDS_MLW}
    s_mov_b64 exec, 1
    v_mov_b32 v{V_T0}, {LDS_CNT}
    v_mov_b32 v{V_T1}, 1
    s_waitcnt lgkmcnt(0)
    ds_add_rtn_u32 v30, v{V_T0}, v{V_T1}
    s_waitcnt lgkmcnt(0)
    v_readfirstlane_b32 s91, v30
    s_mov_b64 exec, -1
    s_cmp_lg_u32 s91, 7
    s_cbranch_scc1 {lab}
    v_and_b32 v{V_T0}, 31, v{V_LANE}
    v_lshlrev_b32 v{V_T1}, 3, v{V_T0}
    ds_read_b64 v[30:31], v{V_T1} offset:{LDS_MLW}
    v_lshlrev_b32 v{V_T0}, 2, v{V_T0}
    s_waitcnt lgkmcnt(0)
    v_mov_b32 v36, v30
    """)
    allreduce16(e, "v_max_f32", 36, steps=(4, 8))
    xrow(e, "v_max_f32", 36, 32, 16)
    tag(e, 36)
    e(f"""
    v_sub_f32 v30, v30, v36
    v_exp_f32 v30, v30
    v_mul_f32 v37, v30, v31
    ds_write_b32 v{V_T0}, v30 offset:{LDS_FW}
    """)
    allreduce16(e, "v_add_f32", 37, steps=(4, 8))
    xrow(e, "v_add_f32", 37, 32, 16)
    tag(e, 37)
    e(f"""
    v_mov_b32 v38, v36
    v_mov_b32 v39, v37
    v_and_b32 v{V_T0}, 3, v{V_LANE}
    v_lshlrev_b32 v{V_T0}, 4, v{V_T0}
    v_bfe_u32 v{V_T1}, v{V_LANE}, 2, 1
    v_lshl_add_u32 v{V_T0}, v{V_T1}, 6, v{V_T0}
    s_mov_b64 exec, 0xff
    buffer_store_dwordx4 v[36:39], v{V_T0}, s[44:47], s59 offen sc1
    s_mov_b64 exec, -1
    {lab}:
    """)
    A0, AF, AP, AW0, AW1 = 24, 25, 26, 27, 28
    e(f"""
    v_lshrrev_b32 v{V_T0}, 2, v{V_LANE}
    s_lshl_b32 s91, s3, 4
    v_add_u32 v{V_T0}, s91, v{V_T0}
    v_lshlrev_b32 v{V_T0}, 4, v{V_T0}
    v_and_b32 v{V_T1}, 3, v{V_LANE}
    v_lshl_add_u32 v{A0}, v{V_T1}, 12, v{V_T0}
    v_cmp_eq_u32 s[92:93], 0, v{V_T1}
    v_mov_b32 v{AP}, {OOB}
    v_cndmask_b32 v{AP}, v{AP}, v{V_T0}, s[92:93]
    s_lshr_b32 s91, s3, 1
    s_lshl_b32 s91, s91, 2
    s_add_u32 s91, s91, {LDS_FW}
    v_lshl_add_u32 v{AF}, v{V_T1}, 5, s91
    s_lshl_b32 s91, s3, 11
    v_lshl_add_u32 v{AW0}, v{V_LANE}, 5, s91
    v_add_u32 v{AW1}, 1024, v{AW0}
    """)
    if getattr(cfg, "PRETOUCH", 0):
        e(f"s_add_u32 s91, s{S_TAU}, 128\nv_mov_b32 v32, s91\nv_mov_b32 v33, s91\nv_mov_b32 v34, s91\nv_mov_b32 v35, s91")
        e.vmem(f"buffer_store_dwordx4 v[32:35], v{AP}, s[44:47], s58 offen sc1", "PT")
    for g in range(5):
        last_blk = tile_blocks(min(2 * g + 1, NT - 1))[-1]
        if last_blk < NVL:
            v_issue_upto(vnext[0] + cfg.V_PER_LDS_GROUP)
            e("s_waitcnt lgkmcnt(0)")
        else:
            v_issue_upto(last_blk + 1 + DV)
            e.wait_vm(f"V{last_blk}")
        X = V_S + 2 * g
        e(f"v_mov_b32 v{V_POP}, v{X}")
        for m in range(1, 4):
            e(f"v_mov_b32_dpp v{V_POP+m}, v{X} row_shl:{4*m} row_mask:0xf bank_mask:0xf")
        for j in range(4):
            st = V_STG + 8 * (j & 1)
            for m in range(4):
                x = kv(8 * g + m) + j
                yb = 8 * g + 4 + m
                y = (kv(yb) if yb < NBLK else kv(8 * g + m)) + j
                e(f"v_perm_b32 v{st + m}, v{y}, v{x}, s94")
                e(f"v_perm_b32 v{st + 4 + m}, v{y}, v{x}, s95")
            for q in range(2):
                O = V_O + 4 * (2 * j + q)
                C = "0" if g == 0 else f"v[{O}:{O+3}]"
                e(f"v_mfma_f32_16x16x32_bf16 v[{O}:{O+3}], v[{V_POP}:{V_POP+3}], v[{st+4*q}:{st+4*q+3}], {C}")
    ts(e, cfg, 64)
    for _ in range(getattr(cfg, "DELAY_ATT", 0) // 64): e("s_nop 15")
    e("s_mov_b64 exec, 0xffff")
    for u in range(4):
        for r in range(4):
            a = AW0 if r < 2 else AW1
            o0 = (r & 1) * 128 + 2 * u
            e(f"ds_write2_b32 v{a}, v{V_O + 4*(2*u) + r}, v{V_O + 4*(2*u+1) + r} offset0:{o0} offset1:{o0+1}")
    e(f"""
    s_mov_b64 exec, -1
    s_waitcnt lgkmcnt(0)
    s_barrier
    ds_read2_b32 v[30:31], v{AF} offset0:0 offset1:4
    ds_read_b128 v[36:39], v{A0}
    ds_read_b128 v[40:43], v{A0} offset:2048
    s_waitcnt lgkmcnt(1)
    """)
    for r in range(4):
        e(f"v_mul_f32 v{36+r}, v30, v{36+r}")
    e("s_waitcnt lgkmcnt(0)")
    for r in range(4):
        e(f"v_fmac_f32 v{36+r}, v31, v{40+r}")
    for qp in ("[1,0,3,2]", "[2,3,0,1]"):
        for r in (36, 37, 38, 39):
            e(f"v_add_f32_dpp v{r}, v{r}, v{r} quad_perm:{qp} row_mask:0xf bank_mask:0xf")
    for r in (36, 37, 38, 39):
        tag(e, r)
    e.vmem(f"buffer_store_dwordx4 v[36:39], v{AP}, s[44:47], s58 offen {cfg.PPOL}", "PS")
    ts(e, cfg, 65)
    if getattr(cfg, "DBGT", 0):
        lab = e.label("L_dbgt")
        e(f"""
        s_cmp_lg_u32 s3, 0
        s_cbranch_scc1 {lab}
        s_cmp_lg_u32 s81, 31
        s_cbranch_scc1 {lab}
        s_waitcnt vmcnt(0)
        s_memrealtime s[96:97]
        s_waitcnt lgkmcnt(0)
        s_sub_u32 s96, s96, s101
        v_mov_b32 v4, s96
        s_add_u32 s91, s80, 6
        s_lshl_b32 s91, s91, 2
        v_mov_b32 v5, s91
        s_mov_b32 s48, s32
        s_mov_b32 s49, s33
        s_mov_b32 s50, 256
        s_mov_b32 s51, 0x20000
        s_mov_b64 exec, 1
        buffer_store_dword v4, v5, s[48:51], 0 offen sc1
        {lab}:
        """)
    if cfg.TS:
        e.wait_vm_all()
        ts(e, cfg, 66)
        e(f"""
        s_lshl_b32 s91, s2, 3
        s_add_u32 s91, s91, s3
        s_lshl_b32 s91, s91, 5
        s_add_u32 s91, s91, {WS_TS}
        v_mov_b32 v6, {OOB}
        v_cmp_eq_u32 vcc, 0, v{V_LANE}
        v_cndmask_b32 v6, v6, 0, vcc
        """)
        for k in range(7): e(f"v_mov_b32 v{36+k}, s{60+k}")
        e("v_mov_b32 v43, s89")
        if getattr(cfg, "TSK", 0):
            e("v_mov_b32 v41, s67\nv_mov_b32 v42, s68\nv_mov_b32 v43, s69")
            if getattr(cfg, "TSE", 0): e("v_mov_b32 v41, s70")
        e("buffer_store_dwordx4 v[36:39], v6, s[44:47], s91 offen")
        e("buffer_store_dwordx4 v[40:43], v6, s[44:47], s91 offen offset:16")
    e("s_endpgm")
```

```python
from kern import *

S_WS, S_DBG, S_X, S_C, S_WMOD, S_WQ, S_WO, S_WG, S_WU, S_WD, S_OUT = 36, 40, 44, 48, 52, 56, 4, 64, 68, 72, 84
L_SVA  = 0
L_CNT  = 1024
L_STAT = 2048
L_STA2 = 2176
L_RA1  = 2304
L_RQ   = 4352
L_RB   = 8448
L_RP1  = 10496
L_RGU  = 18688
L_X1   = 22784
L_WL   = 24832
L_STG  = 24832 + 4096
SVC_LDS = L_STG + 8 * 16384

V_LANE, V_TAU2, V_N = 1, 2, 3
T0, T1, T2, T3 = 4, 5, 6, 7
V_A = 8
P_WLW1, P_WH2, P_COL4, P_COLF4 = 12, 13, 14, 15
P_GA, P_CB1, P_SB, P_X, P_GB = 16, 17, 18, 19, 20
P_PV, P_MV, P_XV, P_FV, P_A64R, P_A128R, P_OUTV = 21, 22, 23, 24, 25, 26, 27
SC = 28
W0, W1, W2, W3, W4 = 96, 128, 160, 192, 224

def unit64_voff(e, dst, stride_bytes, t0, t1):
    e(f"""
    v_lshrrev_b32 v{t0}, 4, v{V_LANE}
    v_lshlrev_b32 v{t0}, 3, v{t0}
    v_bfe_u32 v{t1}, v{V_LANE}, 3, 1
    v_lshlrev_b32 v{t1}, 5, v{t1}
    v_add_u32 v{t0}, v{t0}, v{t1}
    v_mul_u32_u24 v{t0}, {stride_bytes}, v{t0}
    v_and_b32 v{t1}, 7, v{V_LANE}
    v_lshlrev_b32 v{t1}, 4, v{t1}
    v_add_u32 v{dst}, v{t0}, v{t1}
    """)

def unit128_voff(e, dst, stride_bytes, t0, t1):
    e(f"""
    v_lshrrev_b32 v{t0}, 4, v{V_LANE}
    v_mul_u32_u24 v{t0}, {8*stride_bytes}, v{t0}
    v_and_b32 v{t1}, 15, v{V_LANE}
    v_lshlrev_b32 v{t1}, 4, v{t1}
    v_add_u32 v{dst}, v{t0}, v{t1}
    """)

class Stream:
    def __init__(self, e, depth): self.e, self.d = e, depth
    def load(self, dst, voff, srdq, sbase, byte_off, tag):
        e = self.e
        e.wait_vm_n(self.d - 1)
        if byte_off < 4096:
            e.vmem(f"buffer_load_dwordx4 v[{dst}:{dst+3}], v{voff}, s[{srdq}:{srdq+3}], {sbase} offen offset:{byte_off} nt", tag)
        else:
            e(f"s_add_u32 s93, {sbase}, {byte_off}")
            e.vmem(f"buffer_load_dwordx4 v[{dst}:{dst+3}], v{voff}, s[{srdq}:{srdq+3}], s93 offen nt", tag)

def zsum64(e, D, Z):
    for t in range(8):
        e(f"v_add_f32_dpp v{Z+t}, v{D+4*t+1}, v{D+4*t} row_shl:8 row_mask:0xf bank_mask:0xf")

def rs4(e, a):
    e(f"v_permlane32_swap_b32 v{a}, v{a+1}")
    e(f"v_permlane32_swap_b32 v{a+2}, v{a+3}")
    e(f"v_add_f32 v{a}, v{a}, v{a+1}")
    e(f"v_add_f32 v{a+2}, v{a+2}, v{a+3}")
    e(f"v_permlane16_swap_b32 v{a}, v{a+2}")
    e(f"v_add_f32 v{a}, v{a}, v{a+2}")

def store_mode(e, text):
    lf = e.label("L_fast"); le = e.label("L_stend")
    e(f"s_cmp_eq_u32 s98, 1\ns_cbranch_scc1 {lf}")
    e(text.format(pol="sc1"))
    e(f"s_branch {le}\n{lf}:")
    e(text.format(pol=""))
    e(f"{le}:")
    e.vm.append("st")

def sts(e, cfg, k):
    if cfg.TS:
        e(f"s_memrealtime s[96:97]\ns_waitcnt lgkmcnt(0)\nv_writelane_b32 v0, s96, {k}")

def silu(e, dst, src, t):
    e(f"""
    v_mul_f32 v{t}, {f32(-LOG2E)}, v{src}
    v_exp_f32 v{t}, v{t}
    v_add_f32 v{t}, 1.0, v{t}
    v_rcp_f32 v{t}, v{t}
    v_mul_f32 v{dst}, v{src}, v{t}
    """)

DBG_OFF = [0]
def persist_setup(e, cfg):
    DBG_OFF[0] = 128 if getattr(cfg, 'DBGT', 0) else 0
    WS = f"s[{S_WS}:{S_WS+3}]"
    e(f"""
    v_lshrrev_b32 v{T0}, 4, v{V_LANE}
    v_and_b32 v{T1}, 1, v{T0}
    v_lshlrev_b32 v{T1}, 1, v{T1}
    v_lshrrev_b32 v{T2}, 1, v{T0}
    v_or_b32 v{T2}, v{T2}, v{T1}
    s_lshl_b32 s16, s3, 9
    s_add_u32 s16, s16, {L_WL}
    v_lshlrev_b32 v{P_A128R}, 4, v{T0}
    v_add_u32 v{P_A128R}, s16, v{P_A128R}
    v_and_b32 v{P_A64R}, 1, v{V_LANE}
    v_lshlrev_b32 v{P_A64R}, 6, v{P_A64R}
    v_add3_u32 v{P_A64R}, v{P_A64R}, v{P_A128R}, 0
    v_and_b32 v{T1}, 7, v{V_LANE}
    v_lshl_add_u32 v{T1}, v{T1}, 2, v{T2}
    v_lshlrev_b32 v{T1}, 1, v{T1}
    v_add_u32 v{P_WLW1}, s16, v{T1}
    v_and_b32 v{T1}, 15, v{V_LANE}
    v_lshl_add_u32 v{T1}, v{T1}, 2, v{T2}
    v_lshlrev_b32 v{T3}, 1, v{T1}
    v_add_u32 v{P_WH2}, s16, v{T3}
    s_lshl_b32 s91, s3, 6
    v_add_u32 v{T1}, s91, v{T1}
    v_lshlrev_b32 v{P_COL4}, 2, v{T1}
    v_lshlrev_b32 v{T3}, 1, v{T1}
    v_and_b32 v{T1}, 3, v{V_LANE}
    v_lshl_add_u32 v{T1}, v{T1}, 2, v{T2}
    s_lshl_b32 s91, s81, 4
    v_add_u32 v{T1}, s91, v{T1}
    v_lshlrev_b32 v{P_COLF4}, 2, v{T1}
    v_lshlrev_b32 v{T1}, 1, v{T1}
    v_and_b32 v{T0}, 12, v{V_LANE}
    v_cmp_eq_u32 vcc, 0, v{T0}
    v_mov_b32 v{P_OUTV}, {OOB}
    v_cndmask_b32 v{P_OUTV}, v{P_OUTV}, v{T1}, vcc
    s_mov_b32 s8, {WS_MODB}
    s_mov_b32 s9, {WS_MODB + 4096}
    v_mov_b32 v2, v{T3}
    v_and_b32 v92, 31, v{V_LANE}
    v_lshlrev_b32 v92, 2, v92
    """)

def modb_loads(e, track):
    WS = f"s[{S_WS}:{S_WS+3}]"
    L = [f"buffer_load_dword v{P_GA}, v{P_COL4}, {WS}, s8 offen sc1",
         f"buffer_load_dword v{P_SB}, v{P_COL4}, {WS}, s8 offen offset:2048 sc1",
         f"buffer_load_dword v{P_CB1}, v{P_COL4}, {WS}, s9 offen sc1",
         f"buffer_load_dword v{P_GB}, v{P_COLF4}, {WS}, s9 offen offset:2048 sc1",
         f"buffer_load_ushort v{P_X}, v2, s[{S_X}:{S_X+3}], 0 offen",
         f"buffer_load_dword v3, v92, s[{S_DBG}:{S_DBG+3}], 0 offen offset:{DBG_OFF[0]} sc1"]
    for k, t in enumerate(L):
        if track: e.vmem(t, f"MB{k}")
        else: e(t)

def counter_last(e, off, n, lab):
    e(f"""
    s_mov_b64 exec, 1
    v_mov_b32 v{T1}, {L_CNT + off}
    v_mov_b32 v{T2}, 1
    s_waitcnt lgkmcnt(0)
    ds_add_rtn_u32 v{T3}, v{T1}, v{T2}
    s_waitcnt lgkmcnt(0)
    v_readfirstlane_b32 s91, v{T3}
    s_mov_b64 exec, -1
    s_cmp_lg_u32 s91, {n}
    s_cbranch_scc1 {lab}
    """)

def service(e, cfg):
    Dd = [cfg.D_SVC]
    WS = f"s[{S_WS}:{S_WS+3}]"
    Z = 76
    pend = []
    def pump(upto_tag):
        while True:
            tag_, fn = pend.pop(0)
            e.wait_vm_n(Dd[0] - 1)
            fn()
            if tag_ == upto_tag: break
    def rload(dst, voff, srdq, sbase, byte_off, tag_):
        def fn():
            if byte_off < 4096:
                e.vmem(f"buffer_load_dwordx4 v[{dst}:{dst+3}], v{voff}, s[{srdq}:{srdq+3}], {sbase} offen offset:{byte_off} nt", tag_)
            else:
                e(f"s_add_u32 s93, {sbase}, {byte_off}")
                e.vmem(f"buffer_load_dwordx4 v[{dst}:{dst+3}], v{voff}, s[{srdq}:{srdq+3}], s93 offen nt", tag_)
        pend.append((tag_, fn))
    def dma(voff, srdq, sbase, byte_off, lds_off, tag_):
        def fn():
            e(f"s_add_u32 s93, {sbase}, {byte_off}\ns_add_u32 s92, s63, {lds_off}\ns_mov_b32 m0, s92\ns_nop 0")
            e.vmem(f"buffer_load_dwordx4 v{voff}, s[{srdq}:{srdq+3}], s93 offen nt lds", tag_)
        pend.append((tag_, fn))
    e(f"""
    v_mov_b32 v4, {L_CNT}
    v_mov_b32 v6, 0
    v_mov_b32 v7, 0
    ds_write_b64 v4, v[6:7]
    ds_write_b64 v4, v[6:7] offset:8
    s_waitcnt lgkmcnt(0)
    """)
    tag_setup(e)
    e("s_barrier")
    e(f"s_mov_b32 s99, {cfg.SPIN}")
    srd(e, S_C, 26, 27, 1024)
    srd(e, S_WMOD, 28, 29, 512 * 3072 * 2)
    srd(e, S_WS, 34, 35, WS_SIZE)
    srd(e, S_X, 8, 9, 1024)
    srd(e, S_WQ, 14, 15, 512 * 4096 * 2)
    sts(e, cfg, 0)
    e(f"""
    s_and_b32 s83, s81, 15
    s_lshr_b32 s60, s81, 4
    s_lshl_b32 s88, s60, 12
    s_lshl_b32 s89, s83, 8
    s_add_u32 s88, s88, s89
    s_lshl_b32 s82, s3, 9
    s_add_u32 s82, s82, {L_WL}
    s_mov_b32 s94, 0x05040100
    s_mov_b32 s95, 0x07060302
    """)
    lab_noa1 = e.label("L_noa1i")
    e(f"s_cmp_ge_u32 s3, 4\ns_cbranch_scc1 {lab_noa1}")
    e(f"""
    s_lshl_b32 s61, s60, 8
    s_lshl_b32 s62, s3, 6
    s_add_u32 s61, s61, s62
    v_lshlrev_b32 v{T0}, 1, v{V_LANE}
    s_lshl_b32 s91, s61, 1
    buffer_load_ushort v22, v{T0}, s[{S_C}:{S_C+3}], s91 offen
    """)
    unit64_voff(e, 19, 6144, T1, T2)
    e(f"""
    s_mul_i32 s63, s61, 6144
    s_lshl_b32 s62, s83, 7
    s_add_u32 s63, s63, s62
    """)
    AR = 96
    for ee in range(8):
        if ee: e(f"s_add_u32 s63, s63, 6144")
        e(f"buffer_load_dwordx4 v[{AR+4*ee}:{AR+4*ee+3}], v19, s[{S_WMOD}:{S_WMOD+3}], s63 offen nt")
    sts(e, cfg, 16)
    e(f"{lab_noa1}:")
    sts(e, cfg, 18)
    c, x, XA = 16, 17, 32
    V_OQ, V_OB, V_OG, V_ODN, V_OW, FO = 18, 19, 21, 23, 24, 20
    e(f"""
    v_lshlrev_b32 v{T3}, 4, v{V_LANE}
    s_lshl_b32 s91, s3, 7
    v_lshlrev_b32 v{V_TAU2}, 1, v{V_LANE}
    v_add_u32 v{V_TAU2}, s91, v{V_TAU2}
    """)
    unit128_voff(e, V_OQ, 8192, T0, T1)
    e(f"""
    s_lshr_b32 s90, s81, 3
    s_lshl_b32 s90, s90, 7
    s_lshr_b32 s91, s3, 1
    s_lshl_b32 s91, s91, 5
    s_add_u32 s91, s91, s90
    v_and_b32 v{FO}, 31, v{V_LANE}
    v_add_u32 v{FO}, s91, v{FO}
    v_lshlrev_b32 v{FO}, 1, v{FO}
    s_lshl_b32 s90, s91, 13
    s_and_b32 s91, s81, 7
    s_lshl_b32 s91, s91, 10
    s_add_u32 s90, s90, s91
    s_and_b32 s91, s3, 1
    s_lshl_b32 s91, s91, 9
    s_add_u32 s90, s90, s91
    """)
    e.vmem(f"buffer_load_dwordx4 v[{XA}:{XA+3}], v{T3}, s[{S_X}:{S_X+3}], 0 offen", "xa")
    e.vmem(f"buffer_load_ushort v{x}, v{FO}, s[{S_X}:{S_X+3}], 0 offen", "x")
    e.vmem(f"buffer_load_ushort v{c}, v{V_TAU2}, s[{S_C}:{S_C+3}], 0 offen", "c")
    for i in range(16):
        ee, ci = divmod(i, 2)
        rload(W3 + 32 * ci + 4 * ee, V_OQ, S_WQ, "s90", ee * 8192 + ci * 256, f"wq{i}")
    pump("wq3")
    sts(e, cfg, 14)
    lab = e.label("L_a1done")
    e(f"s_cmp_ge_u32 s3, 4\ns_cbranch_scc1 {lab}")
    e("s_waitcnt vmcnt(7)")
    sts(e, cfg, 17)
    e("v_lshlrev_b32 v22, 16, v22")
    silu(e, 22, 22, T1)
    e(f"""
    v_cvt_pk_bf16_f32 v22, v22, v22
    v_lshl_add_u32 v{T0}, v{V_LANE}, 1, s82
    ds_write_b16 v{T0}, v22
    v_and_b32 v{T1}, 1, v{V_LANE}
    v_lshlrev_b32 v{T1}, 6, v{T1}
    v_lshrrev_b32 v{T2}, 4, v{V_LANE}
    v_lshl_add_u32 v{T1}, v{T2}, 4, v{T1}
    v_add_u32 v{T1}, s82, v{T1}
    ds_read_b128 v[{V_A}:{V_A+3}], v{T1}
    """)
    TB, DA = 44, 128
    transpose_unit(e, AR, TB)
    e("s_waitcnt lgkmcnt(0)")
    for t in range(8):
        e(f"v_mfma_f32_16x16x32_bf16 v[{DA+4*t}:{DA+4*t+3}], v[{V_A}:{V_A+3}], v[{TB+4*t}:{TB+4*t+3}], 0")
    zsum64(e, DA, Z)
    e(f"""
    s_lshl_b32 s91, s3, 8
    v_lshlrev_b32 v{T0}, 5, v{V_LANE}
    v_add_u32 v{T0}, s91, v{T0}
    s_mov_b64 exec, 0xff
    ds_write_b128 v{T0}, v[{Z}:{Z+3}] offset:{L_RA1}
    ds_write_b128 v{T0}, v[{Z+4}:{Z+7}] offset:{L_RA1+16}
    """)
    counter_last(e, 0, 3, lab)
    e(f"v_lshlrev_b32 v{T0}, 2, v{V_LANE}")
    for v in range(4):
        e(f"ds_read_b32 v{Z+v}, v{T0} offset:{L_RA1 + 256*v}")
    e("s_waitcnt lgkmcnt(0)")
    tag_finish(e)
    e(f"""
    v_add_f32 v{Z}, v{Z}, v{Z+1}
    v_add_f32 v{Z+2}, v{Z+2}, v{Z+3}
    v_add_f32 v{Z}, v{Z}, v{Z+2}
    """)
    tag(e, Z)
    e(f"buffer_store_dword v{Z}, v{T0}, {WS}, s88 offen sc1")
    e(f"s_sub_u32 s{S_TAU}, s{S_TAU}, 1")
    sts(e, cfg, 1)
    e(f"{lab}:")
    pump("wq7")
    srd(e, S_DBG, 32, 33, 256)
    srd(e, S_WO, 16, 17, 4096 * 512 * 2)
    srd(e, S_WG, 20, 21, 512 * 1792 * 2)
    srd(e, S_WU, 22, 23, 512 * 1792 * 2)
    srd(e, S_WD, 24, 25, 1792 * 512 * 2)
    srd(e, S_OUT, 30, 31, 1024)
    e("s_waitcnt lgkmcnt(0)")
    tag_finish(e)
    lab = e.label("L_xcc")
    e(f"""
    s_cmp_lg_u32 s3, 0
    s_cbranch_scc1 {lab}
    s_getreg_b32 s91, hwreg(HW_REG_XCC_ID)
    s_and_b32 s91, s91, 15
    s_add_u32 s91, s91, 1
    v_mov_b32 v{T1}, s91
    s_lshl_b32 s92, s81, 2
    v_mov_b32 v{T2}, s92
    s_mov_b64 exec, 1
    buffer_store_dword v{T1}, v{T2}, s[{S_DBG}:{S_DBG+3}], 0 offen offset:{128 if getattr(cfg, "DBGT", 0) else 0} sc1
    s_mov_b64 exec, -1
    {lab}:
    """)
    e.wait_vm("c")
    U = 36
    for k in range(4):
        e(f"v_lshlrev_b32 v{U+2*k}, 16, v{XA+k}\nv_and_b32 v{U+2*k+1}, 0xffff0000, v{XA+k}")
    e(f"v_add_f32 v{V_A}, v{U}, v{U+1}\nv_mul_f32 v{V_A+1}, v{U}, v{U}\nv_fmac_f32 v{V_A+1}, v{U+1}, v{U+1}")
    for k in range(2, 8):
        e(f"v_add_f32 v{V_A}, v{V_A}, v{U+k}\nv_fmac_f32 v{V_A+1}, v{U+k}, v{U+k}")
    e(f"v_permlane32_swap_b32 v{V_A}, v{V_A+1}\nv_add_f32 v{V_A}, v{V_A}, v{V_A+1}")
    xrow(e, "v_add_f32", V_A, T0, 16)
    allreduce16(e, "v_add_f32", V_A)
    e(f"""
    v_lshlrev_b32 v{c}, 16, v{c}
    v_lshlrev_b32 v{x}, 16, v{x}
    v_readlane_b32 s91, v{V_A}, 0
    v_readlane_b32 s92, v{V_A}, 32
    """)
    silu(e, c, c, T0)
    e(f"""
    v_mov_b32 v{T0}, {f32(1/512)}
    v_mul_f32 v{T1}, s91, v{T0}
    v_mul_f32 v{T2}, s92, v{T0}
    v_fma_f32 v{T2}, -v{T1}, v{T1}, v{T2}
    v_add_f32 v{T2}, {f32(1e-5)}, v{T2}
    v_rsq_f32 v{T2}, v{T2}
    v_sub_f32 v{V_N}, v{x}, v{T1}
    v_mul_f32 v{V_N}, v{V_N}, v{T2}
    v_cvt_pk_bf16_f32 v{c}, v{c}, v{c}
    v_lshl_add_u32 v{T0}, v{V_LANE}, 1, s82
    ds_write_b16 v{T0}, v{c} offset:128
    """)
    pump("wq15")
    sts(e, cfg, 15)
    e(f"v_lshlrev_b32 v{FO}, 1, v{FO}\ns_mov_b32 s89, 4096")
    def moda_loads(track):
        for k, (so, im) in enumerate((("0", 0), ("s89", 0), ("0", 2048), ("s89", 2048))):
            t = f"buffer_load_dword v{Z+k}, v{FO}, {WS}, {so} offen offset:{im} sc1"
            if track: e.vmem(t, f"MA{k}")
            else: e(t)
    e.wait_vm_n(Dd[0] - 4)
    moda_loads(True)
    unit64_voff(e, V_OB, 6144, T0, T1)
    unit64_voff(e, V_OG, 3584, T0, T1)
    unit64_voff(e, V_ODN, 1024, T0, T1)
    unit128_voff(e, V_OW, 1024, T0, T1)
    e(f"""
    s_mul_i32 s90, s3, {64*6144}
    s_lshl_b32 s91, s81, 7
    s_add_u32 s90, s90, s91
    s_add_u32 s90, s90, 2048
    s_mul_i32 s61, s3, {64*3584}
    s_add_u32 s61, s61, s91
    s_lshl_b32 s62, s81, 16
    s_lshl_b32 s91, s3, 7
    s_add_u32 s62, s62, s91
    s_cmp_lt_u32 s81, 28
    s_cselect_b32 s61, s61, {OOB}
    s_cselect_b32 s62, s62, {OOB}
    s_lshr_b32 s60, s81, 1
    s_lshl_b32 s10, s60, 8
    s_lshl_b32 s63, s3, 5
    s_add_u32 s10, s10, s63
    s_lshl_b32 s10, s10, 10
    s_and_b32 s11, s81, 1
    s_lshl_b32 s63, s11, 9
    s_add_u32 s10, s10, s63
    s_mul_i32 s63, s3, 16384
    s_add_u32 s63, s63, {L_STG}
    """)
    if getattr(cfg, "NOBULK", 0):
        e(f"s_mov_b32 s61, {OOB}\ns_mov_b32 s62, {OOB}\ns_mov_b32 s10, {OOB}")
    for ee in range(8): rload(W1 + 4 * ee, V_OB, S_WMOD, "s90", ee * 6144, f"wb{ee}")
    for ee in range(8):
        for cb in range(2): rload(W2 + 32 * cb + 4 * ee, V_OW, S_WO, "s10", cb * 256 + ee * 1024, f"wo{cb}_{ee}")
    for ee in range(8): rload(W4 + 4 * ee, V_OG, S_WG, "s61", ee * 3584, f"wg{ee}")
    for ee in range(8): dma(V_OG, S_WU, "s61", ee * 3584, ee * 1024, f"wu{ee}")
    for ee in range(8): dma(V_ODN, S_WD, "s62", ee * 1024, 8192 + ee * 1024, f"wd{ee}")
    pump("wb2")
    e.wait_vm("wq15")
    sts(e, cfg, 19)
    transpose_unit(e, W3, W2)
    transpose_unit(e, W4, W3)
    e.wait_vm("MA3")
    sp = e.label("L_moda"); ok = e.label("L_modaok")
    check(e, T1, range(Z, Z + 4))
    e(f"s_cbranch_vccz {ok}\n{sp}:\ns_sleep 2")
    moda_loads(False)
    e("s_waitcnt vmcnt(0)")
    check(e, T1, range(Z, Z + 4))
    e(f"s_cbranch_vccz {ok}")
    spin_guard(e, sp)
    e(f"{ok}:")
    sts(e, cfg, 13)
    e(f"""
    v_add_f32 v{Z}, v{Z}, v{Z+1}
    v_add_f32 v{Z+2}, v{Z+2}, v{Z+3}
    v_add_f32 v{Z+2}, 1.0, v{Z+2}
    v_fma_f32 v{Z}, v{V_N}, v{Z+2}, v{Z}
    v_cvt_pk_bf16_f32 v{Z}, v{Z}, v{Z}
    v_lshl_add_u32 v{T0}, v{V_LANE}, 1, s82
    ds_write_b16 v{T0}, v{Z}
    v_lshrrev_b32 v{T0}, 4, v{V_LANE}
    v_lshl_add_u32 v{T0}, v{T0}, 4, s82
    ds_read_b128 v[{V_A}:{V_A+3}], v{T0}
    s_waitcnt lgkmcnt(0)
    """)
    DQ, DQ2 = 44, W0
    for t in range(8):
        e(f"v_mfma_f32_16x16x32_bf16 v[{DQ+4*t}:{DQ+4*t+3}], v[{V_A}:{V_A+3}], v[{W2+4*t}:{W2+4*t+3}], 0")
    for t in range(8):
        e(f"v_mfma_f32_16x16x32_bf16 v[{DQ2+4*t}:{DQ2+4*t+3}], v[{V_A}:{V_A+3}], v[{W3+4*t}:{W3+4*t+3}], 0")
    pump("wb5")
    e(f"""
    s_lshl_b32 s91, s3, 10
    s_add_u32 s91, s91, {L_RP1}
    v_lshlrev_b32 v{T0}, 5, v{V_LANE}
    v_add_u32 v{T0}, s91, v{T0}
    s_mov_b64 exec, 0xffff
    """)
    for ci, D_ in enumerate((DQ, DQ2)):
        for u in range(4):
            e(f"ds_write2_b32 v{T0}, v{D_+8*u}, v{D_+8*u+4} offset0:{128*ci+2*u} offset1:{128*ci+2*u+1}")
    lab = e.label("L_qpub")
    counter_last(e, 4, 7, lab)
    e(f"v_lshlrev_b32 v{T0}, 5, v{V_LANE}")
    for ks in range(4):
        e(f"ds_read_b128 v[{44+8*ks}:{44+8*ks+3}], v{T0} offset:{L_RP1 + 2048*ks}")
        e(f"ds_read_b128 v[{48+8*ks}:{48+8*ks+3}], v{T0} offset:{L_RP1 + 2048*ks + 16}")
    e("s_waitcnt lgkmcnt(0)")
    for ks in range(1, 4):
        for r in range(0, 8, 2):
            e(f"v_pk_add_f32 v[{44+r}:{45+r}], v[{44+r}:{45+r}], v[{44+8*ks+r}:{45+8*ks+r}]")
    for r in range(8): tag(e, 44 + r)
    e(f"""
    s_lshr_b32 s91, s81, 3
    s_lshl_b32 s91, s91, 14
    s_and_b32 s92, s81, 7
    s_lshl_b32 s92, s92, 11
    s_add_u32 s91, s91, s92
    s_add_u32 s91, s91, {WS_Q}
    buffer_store_dwordx4 v[44:47], v{T0}, {WS}, s91 offen sc1
    buffer_store_dwordx4 v[48:51], v{T0}, {WS}, s91 offen offset:16 sc1
    {lab}:
    """)
    sts(e, cfg, 3)
    Dd[0] = cfg.D_SVC2
    persist_setup(e, cfg)
    pump("wo0_3")
    e.wait_vm("wb7")
    transpose_unit(e, W1, W0)
    e(f"""
    ds_read_b128 v[{V_A}:{V_A+3}], v{P_A64R} offset:128
    s_waitcnt lgkmcnt(0)
    """)
    DB = 44
    for t in range(8):
        e(f"v_mfma_f32_16x16x32_bf16 v[{DB+4*t}:{DB+4*t+3}], v[{V_A}:{V_A+3}], v[{W0+4*t}:{W0+4*t+3}], 0")
    pump("wo0_5")
    zsum64(e, DB, Z)
    e(f"""
    s_lshl_b32 s91, s3, 8
    v_lshlrev_b32 v{T0}, 5, v{V_LANE}
    v_add_u32 v{T0}, s91, v{T0}
    s_mov_b64 exec, 0xff
    ds_write_b128 v{T0}, v[{Z}:{Z+3}] offset:{L_RB}
    ds_write_b128 v{T0}, v[{Z+4}:{Z+7}] offset:{L_RB+16}
    """)
    lab = e.label("L_bpub")
    counter_last(e, 8, 7, lab)
    e(f"v_lshlrev_b32 v{T0}, 2, v{V_LANE}")
    for v in range(8):
        e(f"ds_read_b32 v{Z+v}, v{T0} offset:{L_RB + 256*v}")
    e("s_waitcnt lgkmcnt(0)")
    e(f"v_add_f32 v{Z}, v{Z}, v{Z+1}")
    for v in range(2, 8): e(f"v_add_f32 v{Z}, v{Z}, v{Z+v}")
    tag(e, Z)
    e(f"""
    s_lshl_b32 s91, s81, 8
    s_add_u32 s91, s91, {WS_MODB}
    buffer_store_dword v{Z}, v{T0}, {WS}, s91 offen sc1
    {lab}:
    """)
    UR = 44
    pump("wg6")
    e.wait_vm("wo1_7")
    transpose_unit(e, W2, W0)
    transpose_unit(e, W3, W1)
    pump("wg7")
    e.wait_vm_n(max(Dd[0] - 6, 0))
    modb_loads(e, True)
    pump("wu5")
    e.wait_vm("wg7")
    transpose_unit(e, W4, W2)
    pump("wd7")
    modb_check(e, cfg)
    e(f"s_mul_i32 s91, s3, 16384\ns_add_u32 s91, s91, {L_STG}\nv_lshl_add_u32 v{T0}, v{V_LANE}, 4, s91")
    e.wait_vm("wu7")
    for ee in range(8): e(f"ds_read_b128 v[{UR+4*ee}:{UR+4*ee+3}], v{T0} offset:{ee*1024}")
    e("s_waitcnt lgkmcnt(0)")
    transpose_unit(e, UR, W3)
    e("s_mov_b32 s61, s11")
    post_addresses(e, cfg)
    u_stage(e, cfg)
    ml_first(e, cfg)
    if cfg.WARM:
        for sb in ("s13", "s17", "s18", "s19"):
            e.vmem(f"buffer_load_dword v92, v{P_XV}, {WS}, {sb} offen sc1", "warm")
        e.vmem(f"buffer_load_dword v92, v{P_FV}, {WS}, s14 offen sc1", "warm")
        e.vmem(f"buffer_load_dword v92, v{P_FV}, {WS}, s15 offen sc1", "warm")
        e.vmem(f"buffer_load_ushort v92, v{P_OUTV}, s[{S_OUT}:{S_OUT+3}], 0 offen", "warm")
    for _ in range(getattr(cfg, "DELAY_SVC", 0) // 64): e("s_nop 15")
    if not cfg.LATE_DOWN:
        down_transpose(e)
    sts(e, cfg, 4)
    post_chain(e, cfg)
    yield "done"

ML_BASE = 76
def ml_loads(e, track):
    WS = f"s[{S_WS}:{S_WS+3}]"
    ML = ML_BASE
    L = [f"buffer_load_dwordx4 v[{ML+4*i}:{ML+4*i+3}], v{P_MV}, {WS}, s88 offen offset:{1024*i} sc1" for i in range(3)]
    for k, t in enumerate(L):
        if track: e.vmem(t, f"ML{k}")
        else: e(t)
    e("s_mov_b32 exec_hi, 0")
    t = f"buffer_load_dwordx4 v[{ML+12}:{ML+15}], v{P_MV}, {WS}, s88 offen offset:3072 sc1"
    if track: e.vmem(t, "ML3")
    else: e(t)
    e("s_mov_b32 exec_hi, -1")

def ml_first(e, cfg):
    ML = ML_BASE
    e(f"v_mov_b32 v{ML+12}, 0xff7fff00\nv_mov_b32 v{ML+13}, s{S_TAU}\nv_mov_b32 v{ML+14}, s{S_TAU}\nv_mov_b32 v{ML+15}, s{S_TAU}")
    tag(e, ML + 12)
    ml_loads(e, True)

def modb_check(e, cfg):
    sp = e.label("L_modb"); ok = e.label("L_modbok")
    e.wait_vm("MB5")
    check(e, T0, [P_GA, P_SB, P_CB1, P_GB])
    e(f"v_cmp_eq_u32 s[82:83], 0, v3\ns_or_b64 vcc, vcc, s[82:83]\ns_cbranch_vccz {ok}\n{sp}:\ns_sleep 2")
    modb_loads(e, False)
    e("s_waitcnt vmcnt(0)")
    check(e, T0, [P_GA, P_SB, P_CB1, P_GB])
    e(f"v_cmp_eq_u32 s[82:83], 0, v3\ns_or_b64 vcc, vcc, s[82:83]\ns_cbranch_vccz {ok}")
    spin_guard(e, sp)
    e(f"{ok}:")
    e(f"""
    v_readfirstlane_b32 s91, v3
    s_nop 1
    v_cmp_ne_u32 vcc, s91, v3
    s_nop 1
    s_cmp_eq_u64 vcc, 0
    s_cselect_b32 s98, {0 if cfg.FORCE_SLOW else 1}, 0
    """)
    e(f"v_add_f32 v{P_CB1}, 1.0, v{P_CB1}\nv_lshlrev_b32 v{P_X}, 16, v{P_X}")

def post_addresses(e, cfg):
    WS = f"s[{S_WS}:{S_WS+3}]"
    e(f"""
    s_lshr_b32 s62, s60, 1
    s_mul_i32 s62, s62, 112
    s_and_b32 s63, s60, 1
    s_lshl_b32 s63, s63, 1
    s_add_u32 s62, s62, s63
    s_lshr_b32 s63, s3, 2
    s_add_u32 s62, s62, s63
    s_lshr_b32 s88, s60, 1
    s_mul_i32 s88, s88, {28*128}
    s_and_b32 s63, s60, 1
    s_lshl_b32 s63, s63, 1
    s_lshr_b32 s89, s3, 2
    s_add_u32 s63, s63, s89
    s_lshl_b32 s63, s63, 4
    s_add_u32 s88, s88, s63
    s_add_u32 s88, s88, {WS_ML}
    s_lshl_b32 s62, s62, 9
    s_and_b32 s63, s3, 3
    s_lshl_b32 s63, s63, 7
    s_add_u32 s62, s62, s63
    s_add_u32 s62, s62, {WS_PART}
    s_add_u32 s63, s62, 16384
    s_add_u32 s89, s62, 32768
    s_add_u32 s90, s62, 49152
    v_lshrrev_b32 v{T0}, 3, v{V_LANE}
    v_and_b32 v{T1}, 7, v{V_LANE}
    v_lshlrev_b32 v{T1}, 4, v{T1}
    v_lshl_add_u32 v{P_PV}, v{T0}, 11, v{T1}
    v_lshlrev_b32 v{P_MV}, 7, v{T0}
    v_lshrrev_b32 v{T0}, 4, v{V_LANE}
    v_and_b32 v{T1}, 15, v{V_LANE}
    v_lshlrev_b32 v{T1}, 4, v{T1}
    v_lshl_add_u32 v{P_XV}, v{T0}, 11, v{T1}
    s_lshl_b32 s91, s3, 8
    v_add_u32 v{P_XV}, s91, v{P_XV}
    v_lshrrev_b32 v{T0}, 2, v{V_LANE}
    v_and_b32 v{T1}, 3, v{V_LANE}
    v_lshlrev_b32 v{T1}, 4, v{T1}
    s_lshl_b32 s91, s81, 6
    v_add_u32 v{T1}, s91, v{T1}
    v_lshl_add_u32 v{P_FV}, v{T0}, 11, v{T1}
    s_lshl_b32 s8, s3, 10
    s_add_u32 s8, s8, {L_RP1}
    s_lshl_b32 s9, s60, 11
    s_lshl_b32 s91, s61, 10
    s_add_u32 s9, s9, s91
    s_add_u32 s9, s9, {WS_X1P}
    s_lshl_b32 s10, s3, 3
    s_add_u32 s10, s10, {L_STA2}
    s_lshl_b32 s11, s3, 9
    s_add_u32 s11, s11, {L_RGU}
    s_lshl_b32 s12, s81, 11
    s_lshl_b32 s91, s3, 8
    s_add_u32 s12, s12, s91
    s_add_u32 s12, s12, {WS_FFP}
    s_cmp_lt_u32 s81, 28
    s_cselect_b32 s12, s12, {OOB}
    s_mov_b32 s13, {WS_X1P}
    s_mov_b32 s17, {WS_X1P + 8192}
    s_mov_b32 s18, {WS_X1P + 16384}
    s_mov_b32 s19, {WS_X1P + 24576}
    s_mov_b32 s14, {WS_FFP}
    s_mov_b32 s15, {WS_FFP + 32768}
    """)

def u_stage(e, cfg):
    U1G, U2G, U1U, U2U = 2, 3, 7, 18
    e(f"""
    v_cvt_pk_bf16_f32 v{T0}, v{P_CB1}, v{P_CB1}
    v_cvt_pk_bf16_f32 v{T1}, v{P_SB}, v{P_SB}
    ds_write_b16 v{P_WH2}, v{T0} offset:64
    ds_write_b16 v{P_WH2}, v{T1} offset:192
    v_bfe_u32 v{T0}, v{V_LANE}, 1, 1
    v_lshl_add_u32 v{T0}, v{T0}, 7, v{P_A64R}
    ds_read_b128 v[{V_A}:{V_A+3}], v{T0} offset:64
    s_waitcnt lgkmcnt(0)
    """)
    for t in range(8):
        e(f"v_mfma_f32_16x16x32_bf16 v[{32+4*t}:{32+4*t+3}], v[{V_A}:{V_A+3}], v[{W2+4*t}:{W2+4*t+3}], 0")
    for t in range(8):
        e(f"v_mfma_f32_16x16x32_bf16 v[{64+4*t}:{64+4*t+3}], v[{V_A}:{V_A+3}], v[{W3+4*t}:{W3+4*t+3}], 0")
    e(f"s_mul_i32 s91, s3, 16384\ns_add_u32 s91, s91, {L_STG}\nv_lshl_add_u32 v{T0}, v{V_LANE}, 5, s91")
    for k, (D, r0) in enumerate(((32, 0), (32, 2), (64, 0), (64, 2))):
        for half in range(2):
            for t in range(4):
                tt = 4 * half + t
                e(f"v_add_f32_dpp v{28+t}, v{D+4*tt+r0+1}, v{D+4*tt+r0} row_shl:8 row_mask:0xf bank_mask:0xf")
            e(f"s_mov_b64 exec, 0xff\nds_write_b128 v{T0}, v[28:31] offset:{256*k + 16*half}\ns_mov_b64 exec, -1\ns_nop 1")
    e(f"v_lshlrev_b32 v{T0}, 2, v{V_LANE}\nv_add_u32 v{T0}, {L_STG}, v{T0}\nv_add_u32 v{T1}, 65536, v{T0}")
    e(f"v_mov_b32 v30, {L_STA2}\nv_mov_b32 v28, 0\nv_mov_b32 v29, 0\nds_write_b64 v30, v[28:29]\ns_waitcnt lgkmcnt(0)\ns_barrier")
    for k, U in enumerate((U1G, U2G, U1U, U2U)):
        for v in range(8):
            e(f"ds_read_b32 v{32+v}, v{T0} offset:{(16384*v + 256*k) % 65536}" if 16384*v + 256*k < 65536 else f"ds_read_b32 v{32+v}, v{T1} offset:{16384*v + 256*k - 65536}")
        if k == 0: pass
        e("s_waitcnt lgkmcnt(0)")
        e(f"v_add_f32 v{U}, v32, v33")
        for v in range(2, 8): e(f"v_add_f32 v{U}, v{U}, v{32+v}")

def down_transpose(e):
    UR = 44
    e(f"s_mul_i32 s91, s3, 16384\ns_add_u32 s91, s91, {L_STG}\nv_lshl_add_u32 v{T0}, v{V_LANE}, 4, s91")
    e.wait_vm("wd7")
    for ee in range(8): e(f"ds_read_b128 v[{UR+4*ee}:{UR+4*ee+3}], v{T0} offset:{8192 + ee*1024}")
    e("s_waitcnt lgkmcnt(0)")
    transpose_unit(e, UR, W4)

def post_chain(e, cfg):
    Z = 76
    WS = f"s[{S_WS}:{S_WS+3}]"
    U1G, U2G, U1U, U2U = 2, 3, 7, 18
    DT, ML = 28, ML_BASE
    for r in range(4): e(f"v_mov_b32 v{DT+12+r}, s{S_TAU}")
    sp = e.label("L_ml"); ok = e.label("L_mlok")
    e.wait_vm("ML3")
    check(e, T0, range(ML, ML + 16), T1)
    e(f"s_cbranch_vccz {ok}\n{sp}:\ns_sleep 4")
    ml_loads(e, False)
    e("s_waitcnt vmcnt(0)")
    check(e, T0, range(ML, ML + 16), T1)
    e(f"s_cbranch_vccz {ok}")
    spin_guard(e, sp)
    e(f"{ok}:")
    m = [ML + 4 * i for i in range(4)]
    e(f"""
    v_max3_f32 v{T0}, v{m[0]}, v{m[1]}, v{m[2]}
    v_max_f32 v{T0}, v{T0}, v{m[3]}
    v_max_f32_dpp v{T0}, v{T0}, v{T0} row_ror:8 row_mask:0xf bank_mask:0xf
    """)
    xrow(e, "v_max_f32", T0, T1, 16)
    xrow(e, "v_max_f32", T0, T1, 32)
    for i in range(4): e(f"v_sub_f32 v{m[i]}, v{m[i]}, v{T0}")
    for i in range(4): e(f"v_exp_f32 v{m[i]}, v{m[i]}")
    e(f"v_mul_f32 v{T2}, v{m[0]}, v{m[0]+1}")
    for i in range(1, 4): e(f"v_fmac_f32 v{T2}, v{m[i]}, v{m[i]+1}")
    e(f"v_add_f32_dpp v{T2}, v{T2}, v{T2} row_ror:8 row_mask:0xf bank_mask:0xf")
    xrow(e, "v_add_f32", T2, T1, 16)
    xrow(e, "v_add_f32", T2, T1, 32)
    e(f"v_rcp_f32 v{T2}, v{T2}")
    for i in range(4): e(f"v_mul_f32 v{m[i]}, v{m[i]}, v{T2}")
    e("s_waitcnt vmcnt(0)")
    e.vm = []
    sts(e, cfg, 5)
    sp = e.label("L_hopA"); ok = e.label("L_hopAok")
    e(f"{sp}:")
    for i, sb in enumerate(("s62", "s63", "s89")):
        e(f"buffer_load_dwordx4 v[{DT+4*i}:{DT+4*i+3}], v{P_PV}, {WS}, {sb} offen {cfg.LPOL}")
    e(f"""
    s_mov_b32 exec_hi, 0
    buffer_load_dwordx4 v[{DT+12}:{DT+15}], v{P_PV}, {WS}, s90 offen {cfg.LPOL}
    s_mov_b32 exec_hi, -1
    s_waitcnt vmcnt(0)
    """)
    check(e, T0, range(DT, DT + 16, 4))
    e(f"s_cbranch_vccz {ok}")
    if cfg.SLEEP_A: e(f"s_sleep {cfg.SLEEP_A}")
    spin_guard(e, sp)
    e(f"{ok}:")
    sts(e, cfg, 6)
    AC = 60
    for r in range(4): e(f"v_mul_f32 v{AC+r}, v{m[0]}, v{DT+r}")
    for i in range(1, 4):
        for r in range(4): e(f"v_fmac_f32 v{AC+r}, v{m[i]}, v{DT+4*i+r}")
    rs4(e, AC)
    e(f"""
    v_add_f32_dpp v{AC}, v{AC}, v{AC} row_ror:8 row_mask:0xf bank_mask:0xf
    v_cvt_pk_bf16_f32 v{AC}, v{AC}, v{AC}
    ds_write_b16 v{P_WLW1}, v{AC}
    ds_read_b128 v[{V_A}:{V_A+3}], v{P_A128R}
    v_lshl_add_u32 v{T0}, v{V_LANE}, 5, s8
    s_waitcnt lgkmcnt(0)
    """)
    DP = 32
    for cb in range(2):
        for t in range(8):
            d = DP + 4 * (8 * cb + t); b = W0 + 32 * cb + 4 * t
            e(f"v_mfma_f32_16x16x32_bf16 v[{d}:{d+3}], v[{V_A}:{V_A+3}], v[{b}:{b+3}], 0")
    e("s_mov_b64 exec, 0xffff")
    for cb in range(2):
        for u in range(4):
            d = DP + 4 * (8 * cb + 2 * u)
            e(f"ds_write2_b32 v{T0}, v{d}, v{d+4} offset0:{128*cb+2*u} offset1:{128*cb+2*u+1}")
    e(f"""
    s_mov_b64 exec, -1
    v_lshrrev_b32 v{T0}, 3, v{V_LANE}
    v_and_b32 v{T1}, 7, v{V_LANE}
    v_lshlrev_b32 v{T1}, 4, v{T1}
    v_lshl_add_u32 v{T0}, v{T0}, 10, v{T1}
    s_lshl_b32 s91, s3, 7
    v_add_u32 v{T0}, s91, v{T0}
    v_lshrrev_b32 v{T2}, 4, v{V_LANE}
    v_and_b32 v29, 1, v{T2}
    v_lshlrev_b32 v29, 3, v29
    v_lshrrev_b32 v{T2}, 1, v{T2}
    v_lshl_add_u32 v{T2}, v{T2}, 2, v29
    v_add3_u32 v{T2}, v{T2}, v{T1}, s91
    s_waitcnt lgkmcnt(0)
    s_barrier
    ds_read_b128 v[28:31], v{T0} offset:{L_RP1}
    s_waitcnt lgkmcnt(0)
    """)
    rs4(e, 28)
    e(f"v_add_f32_dpp v28, v28, v28 row_ror:8 row_mask:0xf bank_mask:0xf")
    tag(e, 28)
    store_mode(e, f"buffer_store_dword v28, v{T2}, {WS}, s9 offen {{pol}}")
    sts(e, cfg, 7)
    if cfg.LATE_DOWN:
        down_transpose(e)
    if cfg.DELAY:
        for _ in range(cfg.DELAY // 64): e("s_nop 15\ns_nop 15\ns_nop 15\ns_nop 15")
    XD = 28
    sp = e.label("L_hopB"); ok = e.label("L_hopBok")
    e(f"{sp}:")
    for i, sb in enumerate(("s13", "s17", "s18", "s19")):
        e(f"buffer_load_dwordx4 v[{XD+4*i}:{XD+4*i+3}], v{P_XV}, {WS}, {sb} offen sc1")
    e("s_waitcnt vmcnt(0)")
    check(e, T0, range(XD, XD + 16, 4))
    e(f"s_cbranch_vccz {ok}")
    if cfg.SLEEP_B: e(f"s_sleep {cfg.SLEEP_B}")
    spin_guard(e, sp)
    e(f"{ok}:")
    e.vm = []
    sts(e, cfg, 8)
    for r in (0, 2):
        e(f"v_pk_add_f32 v[{XD+r}:{XD+r+1}], v[{XD+r}:{XD+r+1}], v[{XD+4+r}:{XD+5+r}]")
        e(f"v_pk_add_f32 v[{XD+8+r}:{XD+9+r}], v[{XD+8+r}:{XD+9+r}], v[{XD+12+r}:{XD+13+r}]")
    for r in (0, 2):
        e(f"v_pk_add_f32 v[{XD+r}:{XD+r+1}], v[{XD+r}:{XD+r+1}], v[{XD+8+r}:{XD+9+r}]")
    rs4(e, XD)
    X1 = 44
    e(f"""
    v_fma_f32 v{X1}, v{P_GA}, v{XD}, v{P_X}
    v_mul_f32 v{T2}, v{X1}, v{P_CB1}
    v_mov_b32 v{T0}, v{X1}
    v_mul_f32 v{T1}, v{X1}, v{X1}
    v_cvt_pk_bf16_f32 v{T2}, v{T2}, v{T2}
    ds_write_b16 v{P_WH2}, v{T2} offset:64
    ds_read_b128 v[{V_A}:{V_A+3}], v{P_A64R} offset:64
    ds_write_b32 v{P_COL4}, v{X1} offset:{L_X1}
    v_permlane32_swap_b32 v{T0}, v{T1}
    v_add_f32 v{T0}, v{T0}, v{T1}
    """)
    xrow(e, "v_add_f32", T0, T1, 16)
    e("s_waitcnt lgkmcnt(1)")
    mf = [f"v_mfma_f32_16x16x32_bf16 v[{32+4*t}:{32+4*t+3}], v[{V_A}:{V_A+3}], v[{W2+4*t}:{W2+4*t+3}], 0" for t in range(8)] + \
         [f"v_mfma_f32_16x16x32_bf16 v[{64+4*t}:{64+4*t+3}], v[{V_A}:{V_A+3}], v[{W3+4*t}:{W3+4*t+3}], 0" for t in range(8)]
    for n, steps in enumerate((1, 2, 4, 8)):
        e(mf[2 * n]); e(mf[2 * n + 1])
        e(f"v_add_f32_dpp v{T0}, v{T0}, v{T0} row_ror:{steps} row_mask:0xf bank_mask:0xf")
    for n in range(8, 16): e(mf[n])
    e(f"""
    v_lshrrev_b32 v{T1}, 5, v{V_LANE}
    v_lshlrev_b32 v{T1}, 2, v{T1}
    s_mov_b32 exec_lo, 1
    s_mov_b32 exec_hi, 1
    ds_add_f32 v{T1}, v{T0} offset:{L_STA2}
    s_mov_b64 exec, -1
    v_lshl_add_u32 v{T0}, v{V_LANE}, 5, s11
    """)
    zsum64(e, 32, 32)
    zsum64(e, 64, 64)
    e(f"""
    s_mov_b64 exec, 0xff
    ds_write_b128 v{T0}, v[32:35]
    ds_write_b128 v{T0}, v[36:39] offset:16
    ds_write_b128 v{T0}, v[64:67] offset:256
    ds_write_b128 v{T0}, v[68:71] offset:272
    s_mov_b64 exec, -1
    v_lshlrev_b32 v{T0}, 2, v{V_LANE}
    v_add_u32 v{T0}, {L_RGU}, v{T0}
    v_mov_b32 v{T2}, 0
    s_waitcnt lgkmcnt(0)
    s_barrier
    """)
    SZ, GU = 28, 48
    e(f"ds_read_b64 v[{SZ}:{SZ+1}], v{T2} offset:{L_STA2}")
    for v in range(8):
        e(f"ds_read2st64_b32 v[{GU+2*v}:{GU+2*v+1}], v{T0} offset0:{2*v} offset1:{2*v+1}")
    e(f"ds_read_b32 v44, v{P_COLF4} offset:{L_X1}")
    e(f"v_lshlrev_b32 v{T1}, 1, v{V_LANE}\nv_add_u32 v{T1}, s16, v{T1}")
    e("s_waitcnt lgkmcnt(9)")
    e(f"""
    v_mul_f32 v{T0}, {f32(1/512)}, v{SZ}
    v_mul_f32 v{T2}, {f32(1/512)}, v{SZ+1}
    v_fma_f32 v{T2}, -v{T0}, v{T0}, v{T2}
    v_add_f32 v{T2}, {f32(1e-5)}, v{T2}
    v_rsq_f32 v{T2}, v{T2}
    s_waitcnt lgkmcnt(1)
    """)
    for v in range(0, 8, 2):
        e(f"v_pk_add_f32 v[{GU+2*v}:{GU+2*v+1}], v[{GU+2*v}:{GU+2*v+1}], v[{GU+2*v+2}:{GU+2*v+3}]")
    e(f"v_pk_add_f32 v[{GU}:{GU+1}], v[{GU}:{GU+1}], v[{GU+4}:{GU+5}]")
    e(f"v_pk_add_f32 v[{GU+8}:{GU+9}], v[{GU+8}:{GU+9}], v[{GU+12}:{GU+13}]")
    e(f"v_pk_add_f32 v[{GU}:{GU+1}], v[{GU}:{GU+1}], v[{GU+8}:{GU+9}]")
    e(f"""
    v_fma_f32 v{GU}, -v{T0}, v{U1G}, v{GU}
    v_fma_f32 v{GU+1}, -v{T0}, v{U1U}, v{GU+1}
    v_fma_f32 v{GU}, v{GU}, v{T2}, v{U2G}
    v_fma_f32 v{GU+1}, v{GU+1}, v{T2}, v{U2U}
    v_mul_f32 v{T0}, {f32(-LOG2E)}, v{GU}
    v_exp_f32 v{T0}, v{T0}
    v_mul_f32 v{GU}, v{GU}, v{GU+1}
    v_add_f32 v{T0}, 1.0, v{T0}
    v_rcp_f32 v{T0}, v{T0}
    v_mul_f32 v{T0}, v{GU}, v{T0}
    v_cvt_pk_bf16_f32 v{T0}, v{T0}, v{T0}
    ds_write_b16 v{T1}, v{T0} offset:320
    ds_read_b128 v[{V_A}:{V_A+3}], v{P_A64R} offset:320
    v_lshrrev_b32 v{T0}, 3, v{V_LANE}
    v_and_b32 v{T1}, 7, v{V_LANE}
    v_lshlrev_b32 v{T1}, 5, v{T1}
    v_lshl_add_u32 v{T0}, v{T0}, 4, v{T1}
    s_waitcnt lgkmcnt(0)
    """)
    DD = 64
    for t in range(8):
        e(f"v_mfma_f32_16x16x32_bf16 v[{DD+4*t}:{DD+4*t+3}], v[{V_A}:{V_A+3}], v[{W4+4*t}:{W4+4*t+3}], 0")
    zsum64(e, DD, DD)
    for r in range(4):
        e(f"v_mov_b32_dpp v{DD+r}, v{DD+4+r} row_shr:8 row_mask:0xf bank_mask:0xc")
    for r in range(4): tag(e, DD + r)
    e("s_mov_b64 exec, 0xffff")
    store_mode(e, f"buffer_store_dwordx4 v[{DD}:{DD+3}], v{T0}, {WS}, s12 offen {{pol}}")
    e("s_mov_b64 exec, -1")
    e("L_final:")
    e("s_waitcnt lgkmcnt(0)")
    sts(e, cfg, 9)
    lab_end = e.label("L_svc_end")
    e(f"s_cmp_lg_u32 s3, 0\ns_cbranch_scc1 {lab_end}")
    FD = 28
    for r in range(4): e(f"v_mov_b32 v{FD+4+r}, s{S_TAU}")
    sp = e.label("L_hopC"); ok = e.label("L_hopCok")
    e(f"""
    {sp}:
    buffer_load_dwordx4 v[{FD}:{FD+3}], v{P_FV}, {WS}, s14 offen sc1
    s_mov_b32 exec_hi, 0xffff
    buffer_load_dwordx4 v[{FD+4}:{FD+7}], v{P_FV}, {WS}, s15 offen sc1
    s_mov_b32 exec_hi, -1
    s_waitcnt vmcnt(0)
    """)
    check(e, T0, range(FD, FD + 8, 4))
    e(f"s_cbranch_vccz {ok}")
    if cfg.SLEEP_C: e(f"s_sleep {cfg.SLEEP_C}")
    spin_guard(e, sp)
    e(f"{ok}:")
    sts(e, cfg, 10)
    for r in range(4): e(f"v_add_f32 v{FD+r}, v{FD+r}, v{FD+4+r}")
    rs4(e, FD)
    e(f"""
    v_add_f32_dpp v{FD}, v{FD}, v{FD} row_ror:4 row_mask:0xf bank_mask:0xf
    v_add_f32_dpp v{FD}, v{FD}, v{FD} row_ror:8 row_mask:0xf bank_mask:0xf
    v_fma_f32 v{FD}, v{P_GB}, v{FD}, v44
    v_cvt_pk_bf16_f32 v{FD}, v{FD}, v{FD}
    buffer_store_short v{FD}, v{P_OUTV}, s[{S_OUT}:{S_OUT+3}], 0 offen
    """)
    sts(e, cfg, 11)
    if getattr(cfg, "DBGT", 0):
        e(f"""
        s_waitcnt vmcnt(0)
        s_memrealtime s[96:97]
        s_waitcnt lgkmcnt(0)
        s_sub_u32 s96, s96, s101
        v_mov_b32 v4, s96
        s_lshl_b32 s91, s81, 2
        v_mov_b32 v5, s91
        v_cmp_gt_u32 vcc, 32, v5
        s_mov_b64 exec, 1
        s_cmp_ge_u32 s81, 6
        s_cbranch_scc1 {lab_end}
        buffer_store_dword v4, v5, s[{S_DBG}:{S_DBG+3}], 0 offen sc1
        """)
    e(f"{lab_end}:")
    if cfg.TS:
        e(f"""
        s_lshl_b32 s91, s81, 3
        s_add_u32 s91, s91, s3
        s_lshl_b32 s91, s91, 7
        s_add_u32 s91, s91, {WS_TS + 0x10000}
        v_lshlrev_b32 v{T0}, 2, v{V_LANE}
        s_mov_b32 exec_hi, 0
        buffer_store_dword v0, v{T0}, {WS}, s91 offen
        """)
    e("s_endpgm")
```

```python
from kern import *

S_WS, S_DBG, S_X, S_C, S_WMOD, S_WQ, S_WO, S_WG, S_WU, S_WD, S_OUT = 36, 40, 44, 48, 52, 56, 4, 64, 68, 72, 84
L_SVA  = 0
L_CNT  = 1024
L_STAT = 2048
L_STA2 = 2176
L_RA1  = 2304
L_RQ   = 4352
L_RB   = 8448
L_RP1  = 10496
L_RGU  = 18688
L_X1   = 22784
L_WL   = 24832
L_STG  = 24832 + 4096
SVC_LDS = L_STG + 8 * 16384

V_LANE, V_TAU2, V_N = 1, 2, 3
T0, T1, T2, T3 = 4, 5, 6, 7
V_A = 8
P_WLW1, P_WH2, P_COL4, P_COLF4 = 12, 13, 14, 15
P_GA, P_CB1, P_SB, P_X, P_GB = 16, 17, 18, 19, 20
P_PV, P_MV, P_XV, P_FV, P_A64R, P_A128R, P_OUTV = 21, 22, 23, 24, 25, 26, 27
SC = 28
W0, W1, W2, W3, W4 = 96, 128, 160, 192, 224

def unit64_voff(e, dst, stride_bytes, t0, t1):
    e(f"""
    v_lshrrev_b32 v{t0}, 4, v{V_LANE}
    v_lshlrev_b32 v{t0}, 3, v{t0}
    v_bfe_u32 v{t1}, v{V_LANE}, 3, 1
    v_lshlrev_b32 v{t1}, 5, v{t1}
    v_add_u32 v{t0}, v{t0}, v{t1}
    v_mul_u32_u24 v{t0}, {stride_bytes}, v{t0}
    v_and_b32 v{t1}, 7, v{V_LANE}
    v_lshlrev_b32 v{t1}, 4, v{t1}
    v_add_u32 v{dst}, v{t0}, v{t1}
    """)

def unit128_voff(e, dst, stride_bytes, t0, t1):
    e(f"""
    v_lshrrev_b32 v{t0}, 4, v{V_LANE}
    v_mul_u32_u24 v{t0}, {8*stride_bytes}, v{t0}
    v_and_b32 v{t1}, 15, v{V_LANE}
    v_lshlrev_b32 v{t1}, 4, v{t1}
    v_add_u32 v{dst}, v{t0}, v{t1}
    """)

class Stream:
    def __init__(self, e, depth): self.e, self.d = e, depth
    def load(self, dst, voff, srdq, sbase, byte_off, tag):
        e = self.e
        e.wait_vm_n(self.d - 1)
        if byte_off < 4096:
            e.vmem(f"buffer_load_dwordx4 v[{dst}:{dst+3}], v{voff}, s[{srdq}:{srdq+3}], {sbase} offen offset:{byte_off} nt", tag)
        else:
            e(f"s_add_u32 s93, {sbase}, {byte_off}")
            e.vmem(f"buffer_load_dwordx4 v[{dst}:{dst+3}], v{voff}, s[{srdq}:{srdq+3}], s93 offen nt", tag)

def zsum64(e, D, Z):
    for t in range(8):
        e(f"v_add_f32_dpp v{Z+t}, v{D+4*t+1}, v{D+4*t} row_shl:8 row_mask:0xf bank_mask:0xf")

def rs4(e, a):
    e(f"v_permlane32_swap_b32 v{a}, v{a+1}")
    e(f"v_permlane32_swap_b32 v{a+2}, v{a+3}")
    e(f"v_add_f32 v{a}, v{a}, v{a+1}")
    e(f"v_add_f32 v{a+2}, v{a+2}, v{a+3}")
    e(f"v_permlane16_swap_b32 v{a}, v{a+2}")
    e(f"v_add_f32 v{a}, v{a}, v{a+2}")

def store_mode(e, text):
    lf = e.label("L_fast"); le = e.label("L_stend")
    e(f"s_cmp_eq_u32 s98, 1\ns_cbranch_scc1 {lf}")
    e(text.format(pol="sc1"))
    e(f"s_branch {le}\n{lf}:")
    e(text.format(pol=""))
    e(f"{le}:")
    e.vm.append("st")

def sts(e, cfg, k):
    if cfg.TS:
        e(f"s_memrealtime s[96:97]\ns_waitcnt lgkmcnt(0)\nv_writelane_b32 v0, s96, {k}")

def silu(e, dst, src, t):
    e(f"""
    v_mul_f32 v{t}, {f32(-LOG2E)}, v{src}
    v_exp_f32 v{t}, v{t}
    v_add_f32 v{t}, 1.0, v{t}
    v_rcp_f32 v{t}, v{t}
    v_mul_f32 v{dst}, v{src}, v{t}
    """)

DBG_OFF = [0]
def persist_setup(e, cfg):
    DBG_OFF[0] = 128 if getattr(cfg, 'DBGT', 0) else 0
    WS = f"s[{S_WS}:{S_WS+3}]"
    e(f"""
    v_lshrrev_b32 v{T0}, 4, v{V_LANE}
    v_and_b32 v{T1}, 1, v{T0}
    v_lshlrev_b32 v{T1}, 1, v{T1}
    v_lshrrev_b32 v{T2}, 1, v{T0}
    v_or_b32 v{T2}, v{T2}, v{T1}
    s_lshl_b32 s16, s3, 9
    s_add_u32 s16, s16, {L_WL}
    v_lshlrev_b32 v{P_A128R}, 4, v{T0}
    v_add_u32 v{P_A128R}, s16, v{P_A128R}
    v_and_b32 v{P_A64R}, 1, v{V_LANE}
    v_lshlrev_b32 v{P_A64R}, 6, v{P_A64R}
    v_add3_u32 v{P_A64R}, v{P_A64R}, v{P_A128R}, 0
    v_and_b32 v{T1}, 7, v{V_LANE}
    v_lshl_add_u32 v{T1}, v{T1}, 2, v{T2}
    v_lshlrev_b32 v{T1}, 1, v{T1}
    v_add_u32 v{P_WLW1}, s16, v{T1}
    v_and_b32 v{T1}, 15, v{V_LANE}
    v_lshl_add_u32 v{T1}, v{T1}, 2, v{T2}
    v_lshlrev_b32 v{T3}, 1, v{T1}
    v_add_u32 v{P_WH2}, s16, v{T3}
    s_lshl_b32 s91, s3, 6
    v_add_u32 v{T1}, s91, v{T1}
    v_lshlrev_b32 v{P_COL4}, 2, v{T1}
    v_lshlrev_b32 v{T3}, 1, v{T1}
    v_and_b32 v{T1}, 3, v{V_LANE}
    v_lshl_add_u32 v{T1}, v{T1}, 2, v{T2}
    s_lshl_b32 s91, s81, 4
    v_add_u32 v{T1}, s91, v{T1}
    v_lshlrev_b32 v{P_COLF4}, 2, v{T1}
    v_lshlrev_b32 v{T1}, 1, v{T1}
    v_and_b32 v{T0}, 12, v{V_LANE}
    v_cmp_eq_u32 vcc, 0, v{T0}
    v_mov_b32 v{P_OUTV}, {OOB}
    v_cndmask_b32 v{P_OUTV}, v{P_OUTV}, v{T1}, vcc
    s_mov_b32 s8, {WS_MODB}
    s_mov_b32 s9, {WS_MODB + 4096}
    v_mov_b32 v2, v{T3}
    v_and_b32 v92, 31, v{V_LANE}
    v_lshlrev_b32 v92, 2, v92
    """)

def modb_loads(e, track):
    WS = f"s[{S_WS}:{S_WS+3}]"
    L = [f"buffer_load_dword v{P_GA}, v{P_COL4}, {WS}, s8 offen sc1",
         f"buffer_load_dword v{P_SB}, v{P_COL4}, {WS}, s8 offen offset:2048 sc1",
         f"buffer_load_dword v{P_CB1}, v{P_COL4}, {WS}, s9 offen sc1",
         f"buffer_load_dword v{P_GB}, v{P_COLF4}, {WS}, s9 offen offset:2048 sc1",
         f"buffer_load_ushort v{P_X}, v2, s[{S_X}:{S_X+3}], 0 offen",
         f"buffer_load_dword v3, v92, s[{S_DBG}:{S_DBG+3}], 0 offen offset:{DBG_OFF[0]} sc1"]
    for k, t in enumerate(L):
        if track: e.vmem(t, f"MB{k}")
        else: e(t)

def counter_last(e, off, n, lab):
    e(f"""
    s_mov_b64 exec, 1
    v_mov_b32 v{T1}, {L_CNT + off}
    v_mov_b32 v{T2}, 1
    s_waitcnt lgkmcnt(0)
    ds_add_rtn_u32 v{T3}, v{T1}, v{T2}
    s_waitcnt lgkmcnt(0)
    v_readfirstlane_b32 s91, v{T3}
    s_mov_b64 exec, -1
    s_cmp_lg_u32 s91, {n}
    s_cbranch_scc1 {lab}
    """)

def service(e, cfg):
    Dd = [cfg.D_SVC]
    WS = f"s[{S_WS}:{S_WS+3}]"
    Z = 76
    pend = []
    def pump(upto_tag):
        while True:
            tag_, fn = pend.pop(0)
            e.wait_vm_n(Dd[0] - 1)
            fn()
            if tag_ == upto_tag: break
    def rload(dst, voff, srdq, sbase, byte_off, tag_):
        def fn():
            if byte_off < 4096:
                e.vmem(f"buffer_load_dwordx4 v[{dst}:{dst+3}], v{voff}, s[{srdq}:{srdq+3}], {sbase} offen offset:{byte_off} nt", tag_)
            else:
                e(f"s_add_u32 s93, {sbase}, {byte_off}")
                e.vmem(f"buffer_load_dwordx4 v[{dst}:{dst+3}], v{voff}, s[{srdq}:{srdq+3}], s93 offen nt", tag_)
        pend.append((tag_, fn))
    def dma(voff, srdq, sbase, byte_off, lds_off, tag_):
        def fn():
            e(f"s_add_u32 s93, {sbase}, {byte_off}\ns_add_u32 s92, s63, {lds_off}\ns_mov_b32 m0, s92\ns_nop 0")
            e.vmem(f"buffer_load_dwordx4 v{voff}, s[{srdq}:{srdq+3}], s93 offen nt lds", tag_)
        pend.append((tag_, fn))
    e(f"""
    v_mov_b32 v4, {L_CNT}
    v_mov_b32 v6, 0
    v_mov_b32 v7, 0
    ds_write_b64 v4, v[6:7]
    ds_write_b64 v4, v[6:7] offset:8
    s_waitcnt lgkmcnt(0)
    """)
    tag_setup(e)
    e("s_barrier")
    e(f"s_mov_b32 s99, {cfg.SPIN}")
    srd(e, S_C, 26, 27, 1024)
    srd(e, S_WMOD, 28, 29, 512 * 3072 * 2)
    srd(e, S_WS, 34, 35, WS_SIZE)
    srd(e, S_X, 8, 9, 1024)
    srd(e, S_WQ, 14, 15, 512 * 4096 * 2)
    sts(e, cfg, 0)
    e(f"""
    s_and_b32 s83, s81, 15
    s_lshr_b32 s60, s81, 4
    s_lshl_b32 s88, s60, 12
    s_lshl_b32 s89, s83, 8
    s_add_u32 s88, s88, s89
    s_lshl_b32 s82, s3, 9
    s_add_u32 s82, s82, {L_WL}
    s_mov_b32 s94, 0x05040100
    s_mov_b32 s95, 0x07060302
    """)
    lab_noa1 = e.label("L_noa1i")
    e(f"s_cmp_ge_u32 s3, 4\ns_cbranch_scc1 {lab_noa1}")
    e(f"""
    s_lshl_b32 s61, s60, 8
    s_lshl_b32 s62, s3, 6
    s_add_u32 s61, s61, s62
    v_lshlrev_b32 v{T0}, 1, v{V_LANE}
    s_lshl_b32 s91, s61, 1
    buffer_load_ushort v22, v{T0}, s[{S_C}:{S_C+3}], s91 offen
    """)
    unit64_voff(e, 19, 6144, T1, T2)
    e(f"""
    s_mul_i32 s63, s61, 6144
    s_lshl_b32 s62, s83, 7
    s_add_u32 s63, s63, s62
    """)
    AR = 96
    for ee in range(8):
        if ee: e(f"s_add_u32 s63, s63, 6144")
        e(f"buffer_load_dwordx4 v[{AR+4*ee}:{AR+4*ee+3}], v19, s[{S_WMOD}:{S_WMOD+3}], s63 offen nt")
    sts(e, cfg, 16)
    e(f"{lab_noa1}:")
    sts(e, cfg, 18)
    c, x, XA = 16, 17, 32
    V_OQ, V_OB, V_OG, V_ODN, V_OW, FO = 18, 19, 21, 23, 24, 20
    e(f"""
    v_lshlrev_b32 v{T3}, 4, v{V_LANE}
    s_lshl_b32 s91, s3, 7
    v_lshlrev_b32 v{V_TAU2}, 1, v{V_LANE}
    v_add_u32 v{V_TAU2}, s91, v{V_TAU2}
    """)
    unit128_voff(e, V_OQ, 8192, T0, T1)
    e(f"""
    s_lshr_b32 s90, s81, 3
    s_lshl_b32 s90, s90, 7
    s_lshr_b32 s91, s3, 1
    s_lshl_b32 s91, s91, 5
    s_add_u32 s91, s91, s90
    v_and_b32 v{FO}, 31, v{V_LANE}
    v_add_u32 v{FO}, s91, v{FO}
    v_lshlrev_b32 v{FO}, 1, v{FO}
    s_lshl_b32 s90, s91, 13
    s_and_b32 s91, s81, 7
    s_lshl_b32 s91, s91, 10
    s_add_u32 s90, s90, s91
    s_and_b32 s91, s3, 1
    s_lshl_b32 s91, s91, 9
    s_add_u32 s90, s90, s91
    """)
    e.vmem(f"buffer_load_dwordx4 v[{XA}:{XA+3}], v{T3}, s[{S_X}:{S_X+3}], 0 offen", "xa")
    e.vmem(f"buffer_load_ushort v{x}, v{FO}, s[{S_X}:{S_X+3}], 0 offen", "x")
    e.vmem(f"buffer_load_ushort v{c}, v{V_TAU2}, s[{S_C}:{S_C+3}], 0 offen", "c")
    for i in range(16):
        ee, ci = divmod(i, 2)
        rload(W3 + 32 * ci + 4 * ee, V_OQ, S_WQ, "s90", ee * 8192 + ci * 256, f"wq{i}")
    pump("wq3")
    sts(e, cfg, 14)
    lab = e.label("L_a1done")
    e(f"s_cmp_ge_u32 s3, 4\ns_cbranch_scc1 {lab}")
    e("s_waitcnt vmcnt(7)")
    sts(e, cfg, 17)
    e("v_lshlrev_b32 v22, 16, v22")
    silu(e, 22, 22, T1)
    e(f"""
    v_cvt_pk_bf16_f32 v22, v22, v22
    v_lshl_add_u32 v{T0}, v{V_LANE}, 1, s82
    ds_write_b16 v{T0}, v22
    v_and_b32 v{T1}, 1, v{V_LANE}
    v_lshlrev_b32 v{T1}, 6, v{T1}
    v_lshrrev_b32 v{T2}, 4, v{V_LANE}
    v_lshl_add_u32 v{T1}, v{T2}, 4, v{T1}
    v_add_u32 v{T1}, s82, v{T1}
    ds_read_b128 v[{V_A}:{V_A+3}], v{T1}
    """)
    TB, DA = 44, 128
    transpose_unit(e, AR, TB)
    e("s_waitcnt lgkmcnt(0)")
    for t in range(8):
        e(f"v_mfma_f32_16x16x32_bf16 v[{DA+4*t}:{DA+4*t+3}], v[{V_A}:{V_A+3}], v[{TB+4*t}:{TB+4*t+3}], 0")
    zsum64(e, DA, Z)
    e(f"""
    s_lshl_b32 s91, s3, 8
    v_lshlrev_b32 v{T0}, 5, v{V_LANE}
    v_add_u32 v{T0}, s91, v{T0}
    s_mov_b64 exec, 0xff
    ds_write_b128 v{T0}, v[{Z}:{Z+3}] offset:{L_RA1}
    ds_write_b128 v{T0}, v[{Z+4}:{Z+7}] offset:{L_RA1+16}
    """)
    counter_last(e, 0, 3, lab)
    e(f"v_lshlrev_b32 v{T0}, 2, v{V_LANE}")
    for v in range(4):
        e(f"ds_read_b32 v{Z+v}, v{T0} offset:{L_RA1 + 256*v}")
    e("s_waitcnt lgkmcnt(0)")
    tag_finish(e)
    e(f"""
    v_add_f32 v{Z}, v{Z}, v{Z+1}
    v_add_f32 v{Z+2}, v{Z+2}, v{Z+3}
    v_add_f32 v{Z}, v{Z}, v{Z+2}
    """)
    tag(e, Z)
    e(f"buffer_store_dword v{Z}, v{T0}, {WS}, s88 offen sc1")
    e(f"s_sub_u32 s{S_TAU}, s{S_TAU}, 1")
    sts(e, cfg, 1)
    e(f"{lab}:")
    pump("wq7")
    srd(e, S_DBG, 32, 33, 256)
    srd(e, S_WO, 16, 17, 4096 * 512 * 2)
    srd(e, S_WG, 20, 21, 512 * 1792 * 2)
    srd(e, S_WU, 22, 23, 512 * 1792 * 2)
    srd(e, S_WD, 24, 25, 1792 * 512 * 2)
    srd(e, S_OUT, 30, 31, 1024)
    e("s_waitcnt lgkmcnt(0)")
    tag_finish(e)
    lab = e.label("L_xcc")
    e(f"""
    s_cmp_lg_u32 s3, 0
    s_cbranch_scc1 {lab}
    s_getreg_b32 s91, hwreg(HW_REG_XCC_ID)
    s_and_b32 s91, s91, 15
    s_add_u32 s91, s91, 1
    v_mov_b32 v{T1}, s91
    s_lshl_b32 s92, s81, 2
    v_mov_b32 v{T2}, s92
    s_mov_b64 exec, 1
    buffer_store_dword v{T1}, v{T2}, s[{S_DBG}:{S_DBG+3}], 0 offen offset:{128 if getattr(cfg, "DBGT", 0) else 0} sc1
    s_mov_b64 exec, -1
    {lab}:
    """)
    e.wait_vm("c")
    U = 36
    for k in range(4):
        e(f"v_lshlrev_b32 v{U+2*k}, 16, v{XA+k}\nv_and_b32 v{U+2*k+1}, 0xffff0000, v{XA+k}")
    e(f"v_add_f32 v{V_A}, v{U}, v{U+1}\nv_mul_f32 v{V_A+1}, v{U}, v{U}\nv_fmac_f32 v{V_A+1}, v{U+1}, v{U+1}")
    for k in range(2, 8):
        e(f"v_add_f32 v{V_A}, v{V_A}, v{U+k}\nv_fmac_f32 v{V_A+1}, v{U+k}, v{U+k}")
    e(f"v_permlane32_swap_b32 v{V_A}, v{V_A+1}\nv_add_f32 v{V_A}, v{V_A}, v{V_A+1}")
    xrow(e, "v_add_f32", V_A, T0, 16)
    allreduce16(e, "v_add_f32", V_A)
    e(f"""
    v_lshlrev_b32 v{c}, 16, v{c}
    v_lshlrev_b32 v{x}, 16, v{x}
    v_readlane_b32 s91, v{V_A}, 0
    v_readlane_b32 s92, v{V_A}, 32
    """)
    silu(e, c, c, T0)
    e(f"""
    v_mov_b32 v{T0}, {f32(1/512)}
    v_mul_f32 v{T1}, s91, v{T0}
    v_mul_f32 v{T2}, s92, v{T0}
    v_fma_f32 v{T2}, -v{T1}, v{T1}, v{T2}
    v_add_f32 v{T2}, {f32(1e-5)}, v{T2}
    v_rsq_f32 v{T2}, v{T2}
    v_sub_f32 v{V_N}, v{x}, v{T1}
    v_mul_f32 v{V_N}, v{V_N}, v{T2}
    v_cvt_pk_bf16_f32 v{c}, v{c}, v{c}
    v_lshl_add_u32 v{T0}, v{V_LANE}, 1, s82
    ds_write_b16 v{T0}, v{c} offset:128
    """)
    pump("wq15")
    sts(e, cfg, 15)
    e(f"v_lshlrev_b32 v{FO}, 1, v{FO}\ns_mov_b32 s89, 4096")
    def moda_loads(track):
        for k, (so, im) in enumerate((("0", 0), ("s89", 0), ("0", 2048), ("s89", 2048))):
            t = f"buffer_load_dword v{Z+k}, v{FO}, {WS}, {so} offen offset:{im} sc1"
            if track: e.vmem(t, f"MA{k}")
            else: e(t)
    e.wait_vm_n(Dd[0] - 4)
    moda_loads(True)
    unit64_voff(e, V_OB, 6144, T0, T1)
    unit64_voff(e, V_OG, 3584, T0, T1)
    unit64_voff(e, V_ODN, 1024, T0, T1)
    unit128_voff(e, V_OW, 1024, T0, T1)
    e(f"""
    s_mul_i32 s90, s3, {64*6144}
    s_lshl_b32 s91, s81, 7
    s_add_u32 s90, s90, s91
    s_add_u32 s90, s90, 2048
    s_mul_i32 s61, s3, {64*3584}
    s_add_u32 s61, s61, s91
    s_lshl_b32 s62, s81, 16
    s_lshl_b32 s91, s3, 7
    s_add_u32 s62, s62, s91
    s_cmp_lt_u32 s81, 28
    s_cselect_b32 s61, s61, {OOB}
    s_cselect_b32 s62, s62, {OOB}
    s_lshr_b32 s60, s81, 1
    s_lshl_b32 s10, s60, 8
    s_lshl_b32 s63, s3, 5
    s_add_u32 s10, s10, s63
    s_lshl_b32 s10, s10, 10
    s_and_b32 s11, s81, 1
    s_lshl_b32 s63, s11, 9
    s_add_u32 s10, s10, s63
    s_mul_i32 s63, s3, 16384
    s_add_u32 s63, s63, {L_STG}
    """)
    if getattr(cfg, "NOBULK", 0):
        e(f"s_mov_b32 s61, {OOB}\ns_mov_b32 s62, {OOB}\ns_mov_b32 s10, {OOB}")
    for ee in range(8): rload(W1 + 4 * ee, V_OB, S_WMOD, "s90", ee * 6144, f"wb{ee}")
    for ee in range(8):
        for cb in range(2): rload(W2 + 32 * cb + 4 * ee, V_OW, S_WO, "s10", cb * 256 + ee * 1024, f"wo{cb}_{ee}")
    for ee in range(8): rload(W4 + 4 * ee, V_OG, S_WG, "s61", ee * 3584, f"wg{ee}")
    for ee in range(8): dma(V_OG, S_WU, "s61", ee * 3584, ee * 1024, f"wu{ee}")
    for ee in range(8): dma(V_ODN, S_WD, "s62", ee * 1024, 8192 + ee * 1024, f"wd{ee}")
    pump("wb2")
    e.wait_vm("wq15")
    sts(e, cfg, 19)
    transpose_unit(e, W3, W2)
    transpose_unit(e, W4, W3)
    e.wait_vm("MA3")
    sp = e.label("L_moda"); ok = e.label("L_modaok")
    check(e, T1, range(Z, Z + 4))
    e(f"s_cbranch_vccz {ok}\n{sp}:\ns_sleep 2")
    moda_loads(False)
    e("s_waitcnt vmcnt(0)")
    check(e, T1, range(Z, Z + 4))
    e(f"s_cbranch_vccz {ok}")
    spin_guard(e, sp)
    e(f"{ok}:")
    sts(e, cfg, 13)
    e(f"""
    v_add_f32 v{Z}, v{Z}, v{Z+1}
    v_add_f32 v{Z+2}, v{Z+2}, v{Z+3}
    v_add_f32 v{Z+2}, 1.0, v{Z+2}
    v_fma_f32 v{Z}, v{V_N}, v{Z+2}, v{Z}
    v_cvt_pk_bf16_f32 v{Z}, v{Z}, v{Z}
    v_lshl_add_u32 v{T0}, v{V_LANE}, 1, s82
    ds_write_b16 v{T0}, v{Z}
    v_lshrrev_b32 v{T0}, 4, v{V_LANE}
    v_lshl_add_u32 v{T0}, v{T0}, 4, s82
    ds_read_b128 v[{V_A}:{V_A+3}], v{T0}
    s_waitcnt lgkmcnt(0)
    """)
    DQ, DQ2 = 44, W0
    for t in range(8):
        e(f"v_mfma_f32_16x16x32_bf16 v[{DQ+4*t}:{DQ+4*t+3}], v[{V_A}:{V_A+3}], v[{W2+4*t}:{W2+4*t+3}], 0")
    for t in range(8):
        e(f"v_mfma_f32_16x16x32_bf16 v[{DQ2+4*t}:{DQ2+4*t+3}], v[{V_A}:{V_A+3}], v[{W3+4*t}:{W3+4*t+3}], 0")
    pump("wb5")
    e(f"""
    s_lshl_b32 s91, s3, 10
    s_add_u32 s91, s91, {L_RP1}
    v_lshlrev_b32 v{T0}, 5, v{V_LANE}
    v_add_u32 v{T0}, s91, v{T0}
    s_mov_b64 exec, 0xffff
    """)
    for ci, D_ in enumerate((DQ, DQ2)):
        for u in range(4):
            e(f"ds_write2_b32 v{T0}, v{D_+8*u}, v{D_+8*u+4} offset0:{128*ci+2*u} offset1:{128*ci+2*u+1}")
    for _ in range(getattr(cfg, "DELAY_QP", 0) // 64): e("s_nop 15")
    lab = e.label("L_qpub")
    counter_last(e, 4, 7, lab)
    e(f"v_lshlrev_b32 v{T0}, 5, v{V_LANE}")
    for ks in range(4):
        e(f"ds_read_b128 v[{44+8*ks}:{44+8*ks+3}], v{T0} offset:{L_RP1 + 2048*ks}")
        e(f"ds_read_b128 v[{48+8*ks}:{48+8*ks+3}], v{T0} offset:{L_RP1 + 2048*ks + 16}")
    e("s_waitcnt lgkmcnt(0)")
    for ks in range(1, 4):
        for r in range(0, 8, 2):
            e(f"v_pk_add_f32 v[{44+r}:{45+r}], v[{44+r}:{45+r}], v[{44+8*ks+r}:{45+8*ks+r}]")
    for r in range(8): tag(e, 44 + r)
    e(f"""
    s_lshr_b32 s91, s81, 3
    s_lshl_b32 s91, s91, 14
    s_and_b32 s92, s81, 7
    s_lshl_b32 s92, s92, 11
    s_add_u32 s91, s91, s92
    s_add_u32 s91, s91, {WS_Q}
    buffer_store_dwordx4 v[44:47], v{T0}, {WS}, s91 offen sc1
    buffer_store_dwordx4 v[48:51], v{T0}, {WS}, s91 offen offset:16 sc1
    {lab}:
    """)
    sts(e, cfg, 3)
    Dd[0] = cfg.D_SVC2
    persist_setup(e, cfg)
    pump("wo0_3")
    e.wait_vm("wb7")
    transpose_unit(e, W1, W0)
    e(f"""
    ds_read_b128 v[{V_A}:{V_A+3}], v{P_A64R} offset:128
    s_waitcnt lgkmcnt(0)
    """)
    DB = 44
    for t in range(8):
        e(f"v_mfma_f32_16x16x32_bf16 v[{DB+4*t}:{DB+4*t+3}], v[{V_A}:{V_A+3}], v[{W0+4*t}:{W0+4*t+3}], 0")
    pump("wo0_5")
    zsum64(e, DB, Z)
    e(f"""
    s_lshl_b32 s91, s3, 8
    v_lshlrev_b32 v{T0}, 5, v{V_LANE}
    v_add_u32 v{T0}, s91, v{T0}
    s_mov_b64 exec, 0xff
    ds_write_b128 v{T0}, v[{Z}:{Z+3}] offset:{L_RB}
    ds_write_b128 v{T0}, v[{Z+4}:{Z+7}] offset:{L_RB+16}
    """)
    lab = e.label("L_bpub")
    counter_last(e, 8, 7, lab)
    e(f"v_lshlrev_b32 v{T0}, 2, v{V_LANE}")
    for v in range(8):
        e(f"ds_read_b32 v{Z+v}, v{T0} offset:{L_RB + 256*v}")
    e("s_waitcnt lgkmcnt(0)")
    e(f"v_add_f32 v{Z}, v{Z}, v{Z+1}")
    for v in range(2, 8): e(f"v_add_f32 v{Z}, v{Z}, v{Z+v}")
    tag(e, Z)
    e(f"""
    s_lshl_b32 s91, s81, 8
    s_add_u32 s91, s91, {WS_MODB}
    buffer_store_dword v{Z}, v{T0}, {WS}, s91 offen sc1
    {lab}:
    """)
    UR = 44
    pump("wg6")
    e.wait_vm("wo1_7")
    transpose_unit(e, W2, W0)
    transpose_unit(e, W3, W1)
    pump("wg7")
    e.wait_vm_n(max(Dd[0] - 6, 0))
    modb_loads(e, True)
    pump("wu5")
    e.wait_vm("wg7")
    transpose_unit(e, W4, W2)
    pump("wd7")
    modb_check(e, cfg)
    e(f"s_mul_i32 s91, s3, 16384\ns_add_u32 s91, s91, {L_STG}\nv_lshl_add_u32 v{T0}, v{V_LANE}, 4, s91")
    e.wait_vm("wu7")
    for ee in range(8): e(f"ds_read_b128 v[{UR+4*ee}:{UR+4*ee+3}], v{T0} offset:{ee*1024}")
    e("s_waitcnt lgkmcnt(0)")
    transpose_unit(e, UR, W3)
    e("s_mov_b32 s61, s11")
    post_addresses(e, cfg)
    u_stage(e, cfg)
    ml_first(e, cfg)
    if cfg.WARM:
        for sb in ("s13", "s17", "s18", "s19"):
            e.vmem(f"buffer_load_dword v92, v{P_XV}, {WS}, {sb} offen sc1", "warm")
        e.vmem(f"buffer_load_dword v92, v{P_FV}, {WS}, s14 offen sc1", "warm")
        e.vmem(f"buffer_load_dword v92, v{P_FV}, {WS}, s15 offen sc1", "warm")
        e.vmem(f"buffer_load_ushort v92, v{P_OUTV}, s[{S_OUT}:{S_OUT+3}], 0 offen", "warm")
    for _ in range(getattr(cfg, "DELAY_SVC", 0) // 64): e("s_nop 15")
    if not cfg.LATE_DOWN:
        down_transpose(e)
    sts(e, cfg, 4)
    post_chain(e, cfg)
    yield "done"

ML_BASE = 76
def ml_loads(e, track):
    WS = f"s[{S_WS}:{S_WS+3}]"
    ML = ML_BASE
    L = [f"buffer_load_dwordx4 v[{ML+4*i}:{ML+4*i+3}], v{P_MV}, {WS}, s88 offen offset:{1024*i} sc1" for i in range(3)]
    for k, t in enumerate(L):
        if track: e.vmem(t, f"ML{k}")
        else: e(t)
    e("s_mov_b32 exec_hi, 0")
    t = f"buffer_load_dwordx4 v[{ML+12}:{ML+15}], v{P_MV}, {WS}, s88 offen offset:3072 sc1"
    if track: e.vmem(t, "ML3")
    else: e(t)
    e("s_mov_b32 exec_hi, -1")

def ml_first(e, cfg):
    ML = ML_BASE
    e(f"v_mov_b32 v{ML+12}, 0xff7fff00\nv_mov_b32 v{ML+13}, s{S_TAU}\nv_mov_b32 v{ML+14}, s{S_TAU}\nv_mov_b32 v{ML+15}, s{S_TAU}")
    tag(e, ML + 12)
    ml_loads(e, True)

def modb_check(e, cfg):
    sp = e.label("L_modb"); ok = e.label("L_modbok")
    e.wait_vm("MB5")
    check(e, T0, [P_GA, P_SB, P_CB1, P_GB])
    e(f"v_cmp_eq_u32 s[82:83], 0, v3\ns_or_b64 vcc, vcc, s[82:83]\ns_cbranch_vccz {ok}\n{sp}:\ns_sleep 2")
    modb_loads(e, False)
    e("s_waitcnt vmcnt(0)")
    check(e, T0, [P_GA, P_SB, P_CB1, P_GB])
    e(f"v_cmp_eq_u32 s[82:83], 0, v3\ns_or_b64 vcc, vcc, s[82:83]\ns_cbranch_vccz {ok}")
    spin_guard(e, sp)
    e(f"{ok}:")
    e(f"""
    v_readfirstlane_b32 s91, v3
    s_nop 1
    v_cmp_ne_u32 vcc, s91, v3
    s_nop 1
    s_cmp_eq_u64 vcc, 0
    s_cselect_b32 s98, {0 if cfg.FORCE_SLOW else 1}, 0
    """)
    e(f"v_add_f32 v{P_CB1}, 1.0, v{P_CB1}\nv_lshlrev_b32 v{P_X}, 16, v{P_X}")

def post_addresses(e, cfg):
    WS = f"s[{S_WS}:{S_WS+3}]"
    e(f"""
    s_lshr_b32 s62, s60, 1
    s_mul_i32 s62, s62, 112
    s_and_b32 s63, s60, 1
    s_lshl_b32 s63, s63, 1
    s_add_u32 s62, s62, s63
    s_lshr_b32 s63, s3, 2
    s_add_u32 s62, s62, s63
    s_lshr_b32 s88, s60, 1
    s_mul_i32 s88, s88, {28*128}
    s_and_b32 s63, s60, 1
    s_lshl_b32 s63, s63, 1
    s_lshr_b32 s89, s3, 2
    s_add_u32 s63, s63, s89
    s_lshl_b32 s63, s63, 4
    s_add_u32 s88, s88, s63
    s_add_u32 s88, s88, {WS_ML}
    s_lshl_b32 s62, s62, 9
    s_and_b32 s63, s3, 3
    s_lshl_b32 s63, s63, 7
    s_add_u32 s62, s62, s63
    s_add_u32 s62, s62, {WS_PART}
    s_add_u32 s63, s62, 16384
    s_add_u32 s89, s62, 32768
    s_add_u32 s90, s62, 49152
    v_lshrrev_b32 v{T0}, 3, v{V_LANE}
    v_and_b32 v{T1}, 7, v{V_LANE}
    v_lshlrev_b32 v{T1}, 4, v{T1}
    v_lshl_add_u32 v{P_PV}, v{T0}, 11, v{T1}
    v_lshlrev_b32 v{P_MV}, 7, v{T0}
    v_lshrrev_b32 v{T0}, 4, v{V_LANE}
    v_and_b32 v{T1}, 15, v{V_LANE}
    v_lshlrev_b32 v{T1}, 4, v{T1}
    v_lshl_add_u32 v{P_XV}, v{T0}, 11, v{T1}
    s_lshl_b32 s91, s3, 8
    v_add_u32 v{P_XV}, s91, v{P_XV}
    v_lshrrev_b32 v{T0}, 2, v{V_LANE}
    v_and_b32 v{T1}, 3, v{V_LANE}
    v_lshlrev_b32 v{T1}, 4, v{T1}
    s_lshl_b32 s91, s81, 6
    v_add_u32 v{T1}, s91, v{T1}
    v_lshl_add_u32 v{P_FV}, v{T0}, 11, v{T1}
    s_lshl_b32 s8, s3, 10
    s_add_u32 s8, s8, {L_RP1}
    s_lshl_b32 s9, s60, 11
    s_lshl_b32 s91, s61, 10
    s_add_u32 s9, s9, s91
    s_add_u32 s9, s9, {WS_X1P}
    s_lshl_b32 s10, s3, 3
    s_add_u32 s10, s10, {L_STA2}
    s_lshl_b32 s11, s3, 9
    s_add_u32 s11, s11, {L_RGU}
    s_lshl_b32 s12, s81, 11
    s_lshl_b32 s91, s3, 8
    s_add_u32 s12, s12, s91
    s_add_u32 s12, s12, {WS_FFP}
    s_cmp_lt_u32 s81, 28
    s_cselect_b32 s12, s12, {OOB}
    s_mov_b32 s13, {WS_X1P}
    s_mov_b32 s17, {WS_X1P + 8192}
    s_mov_b32 s18, {WS_X1P + 16384}
    s_mov_b32 s19, {WS_X1P + 24576}
    s_mov_b32 s14, {WS_FFP}
    s_mov_b32 s15, {WS_FFP + 32768}
    """)

def u_stage(e, cfg):
    U1G, U2G, U1U, U2U = 2, 3, 7, 18
    e(f"""
    v_cvt_pk_bf16_f32 v{T0}, v{P_CB1}, v{P_CB1}
    v_cvt_pk_bf16_f32 v{T1}, v{P_SB}, v{P_SB}
    ds_write_b16 v{P_WH2}, v{T0} offset:64
    ds_write_b16 v{P_WH2}, v{T1} offset:192
    v_bfe_u32 v{T0}, v{V_LANE}, 1, 1
    v_lshl_add_u32 v{T0}, v{T0}, 7, v{P_A64R}
    ds_read_b128 v[{V_A}:{V_A+3}], v{T0} offset:64
    s_waitcnt lgkmcnt(0)
    """)
    for t in range(8):
        e(f"v_mfma_f32_16x16x32_bf16 v[{32+4*t}:{32+4*t+3}], v[{V_A}:{V_A+3}], v[{W2+4*t}:{W2+4*t+3}], 0")
    for t in range(8):
        e(f"v_mfma_f32_16x16x32_bf16 v[{64+4*t}:{64+4*t+3}], v[{V_A}:{V_A+3}], v[{W3+4*t}:{W3+4*t+3}], 0")
    e(f"s_mul_i32 s91, s3, 16384\ns_add_u32 s91, s91, {L_STG}\nv_lshl_add_u32 v{T0}, v{V_LANE}, 5, s91")
    for k, (D, r0) in enumerate(((32, 0), (32, 2), (64, 0), (64, 2))):
        for half in range(2):
            for t in range(4):
                tt = 4 * half + t
                e(f"v_add_f32_dpp v{28+t}, v{D+4*tt+r0+1}, v{D+4*tt+r0} row_shl:8 row_mask:0xf bank_mask:0xf")
            e(f"s_mov_b64 exec, 0xff\nds_write_b128 v{T0}, v[28:31] offset:{256*k + 16*half}\ns_mov_b64 exec, -1\ns_nop 1")
    e(f"v_lshlrev_b32 v{T0}, 2, v{V_LANE}\nv_add_u32 v{T0}, {L_STG}, v{T0}\nv_add_u32 v{T1}, 65536, v{T0}")
    e(f"v_mov_b32 v30, {L_STA2}\nv_mov_b32 v28, 0\nv_mov_b32 v29, 0\nds_write_b64 v30, v[28:29]\ns_waitcnt lgkmcnt(0)\ns_barrier")
    for k, U in enumerate((U1G, U2G, U1U, U2U)):
        for v in range(8):
            e(f"ds_read_b32 v{32+v}, v{T0} offset:{(16384*v + 256*k) % 65536}" if 16384*v + 256*k < 65536 else f"ds_read_b32 v{32+v}, v{T1} offset:{16384*v + 256*k - 65536}")
        if k == 0: pass
        e("s_waitcnt lgkmcnt(0)")
        e(f"v_add_f32 v{U}, v32, v33")
        for v in range(2, 8): e(f"v_add_f32 v{U}, v{U}, v{32+v}")

def down_transpose(e):
    UR = 44
    e(f"s_mul_i32 s91, s3, 16384\ns_add_u32 s91, s91, {L_STG}\nv_lshl_add_u32 v{T0}, v{V_LANE}, 4, s91")
    e.wait_vm("wd7")
    for ee in range(8): e(f"ds_read_b128 v[{UR+4*ee}:{UR+4*ee+3}], v{T0} offset:{8192 + ee*1024}")
    e("s_waitcnt lgkmcnt(0)")
    transpose_unit(e, UR, W4)

def post_chain(e, cfg):
    Z = 76
    WS = f"s[{S_WS}:{S_WS+3}]"
    U1G, U2G, U1U, U2U = 2, 3, 7, 18
    DT, ML = 28, ML_BASE
    for r in range(4): e(f"v_mov_b32 v{DT+12+r}, s{S_TAU}")
    sp = e.label("L_ml"); ok = e.label("L_mlok")
    e.wait_vm("ML3")
    check(e, T0, range(ML, ML + 16), T1)
    e(f"s_cbranch_vccz {ok}\n{sp}:\ns_sleep 4")
    ml_loads(e, False)
    e("s_waitcnt vmcnt(0)")
    check(e, T0, range(ML, ML + 16), T1)
    e(f"s_cbranch_vccz {ok}")
    spin_guard(e, sp)
    e(f"{ok}:")
    m = [ML + 4 * i for i in range(4)]
    e(f"""
    v_max3_f32 v{T0}, v{m[0]}, v{m[1]}, v{m[2]}
    v_max_f32 v{T0}, v{T0}, v{m[3]}
    v_max_f32_dpp v{T0}, v{T0}, v{T0} row_ror:8 row_mask:0xf bank_mask:0xf
    """)
    xrow(e, "v_max_f32", T0, T1, 16)
    xrow(e, "v_max_f32", T0, T1, 32)
    for i in range(4): e(f"v_sub_f32 v{m[i]}, v{m[i]}, v{T0}")
    for i in range(4): e(f"v_exp_f32 v{m[i]}, v{m[i]}")
    e(f"v_mul_f32 v{T2}, v{m[0]}, v{m[0]+1}")
    for i in range(1, 4): e(f"v_fmac_f32 v{T2}, v{m[i]}, v{m[i]+1}")
    e(f"v_add_f32_dpp v{T2}, v{T2}, v{T2} row_ror:8 row_mask:0xf bank_mask:0xf")
    xrow(e, "v_add_f32", T2, T1, 16)
    xrow(e, "v_add_f32", T2, T1, 32)
    e(f"v_rcp_f32 v{T2}, v{T2}")
    for i in range(4): e(f"v_mul_f32 v{m[i]}, v{m[i]}, v{T2}")
    e("s_waitcnt vmcnt(0)")
    e.vm = []
    sts(e, cfg, 5)
    sp = e.label("L_hopA"); ok = e.label("L_hopAok")
    e(f"{sp}:")
    for i, sb in enumerate(("s62", "s63", "s89")):
        e(f"buffer_load_dwordx4 v[{DT+4*i}:{DT+4*i+3}], v{P_PV}, {WS}, {sb} offen {cfg.LPOL}")
    e(f"""
    s_mov_b32 exec_hi, 0
    buffer_load_dwordx4 v[{DT+12}:{DT+15}], v{P_PV}, {WS}, s90 offen {cfg.LPOL}
    s_mov_b32 exec_hi, -1
    s_waitcnt vmcnt(0)
    """)
    check(e, T0, range(DT, DT + 16, 4))
    e(f"s_cbranch_vccz {ok}")
    if cfg.SLEEP_A: e(f"s_sleep {cfg.SLEEP_A}")
    spin_guard(e, sp)
    e(f"{ok}:")
    sts(e, cfg, 6)
    AC = 60
    for r in range(4): e(f"v_mul_f32 v{AC+r}, v{m[0]}, v{DT+r}")
    for i in range(1, 4):
        for r in range(4): e(f"v_fmac_f32 v{AC+r}, v{m[i]}, v{DT+4*i+r}")
    rs4(e, AC)
    e(f"""
    v_add_f32_dpp v{AC}, v{AC}, v{AC} row_ror:8 row_mask:0xf bank_mask:0xf
    v_cvt_pk_bf16_f32 v{AC}, v{AC}, v{AC}
    ds_write_b16 v{P_WLW1}, v{AC}
    ds_read_b128 v[{V_A}:{V_A+3}], v{P_A128R}
    v_lshl_add_u32 v{T0}, v{V_LANE}, 5, s8
    s_waitcnt lgkmcnt(0)
    """)
    DP = 32
    for cb in range(2):
        for t in range(8):
            d = DP + 4 * (8 * cb + t); b = W0 + 32 * cb + 4 * t
            e(f"v_mfma_f32_16x16x32_bf16 v[{d}:{d+3}], v[{V_A}:{V_A+3}], v[{b}:{b+3}], 0")
    e("s_mov_b64 exec, 0xffff")
    for cb in range(2):
        for u in range(4):
            d = DP + 4 * (8 * cb + 2 * u)
            e(f"ds_write2_b32 v{T0}, v{d}, v{d+4} offset0:{128*cb+2*u} offset1:{128*cb+2*u+1}")
    e(f"""
    s_mov_b64 exec, -1
    v_lshrrev_b32 v{T0}, 3, v{V_LANE}
    v_and_b32 v{T1}, 7, v{V_LANE}
    v_lshlrev_b32 v{T1}, 4, v{T1}
    v_lshl_add_u32 v{T0}, v{T0}, 10, v{T1}
    s_lshl_b32 s91, s3, 7
    v_add_u32 v{T0}, s91, v{T0}
    v_lshrrev_b32 v{T2}, 4, v{V_LANE}
    v_and_b32 v29, 1, v{T2}
    v_lshlrev_b32 v29, 3, v29
    v_lshrrev_b32 v{T2}, 1, v{T2}
    v_lshl_add_u32 v{T2}, v{T2}, 2, v29
    v_add3_u32 v{T2}, v{T2}, v{T1}, s91
    s_waitcnt lgkmcnt(0)
    s_barrier
    ds_read_b128 v[28:31], v{T0} offset:{L_RP1}
    s_waitcnt lgkmcnt(0)
    """)
    rs4(e, 28)
    e(f"v_add_f32_dpp v28, v28, v28 row_ror:8 row_mask:0xf bank_mask:0xf")
    tag(e, 28)
    store_mode(e, f"buffer_store_dword v28, v{T2}, {WS}, s9 offen {{pol}}")
    sts(e, cfg, 7)
    XD = 28
    XA, XB = W0, W0 + 16
    def xloads(R):
        for i, sb in enumerate(("s13", "s17", "s18", "s19")):
            e(f"buffer_load_dwordx4 v[{R+4*i}:{R+4*i+3}], v{P_XV}, {WS}, {sb} offen sc1")
    def xsum(R):
        for r in (0, 2):
            e(f"v_pk_add_f32 v[{R+r}:{R+r+1}], v[{R+r}:{R+r+1}], v[{R+4+r}:{R+5+r}]")
            e(f"v_pk_add_f32 v[{R+8+r}:{R+9+r}], v[{R+8+r}:{R+9+r}], v[{R+12+r}:{R+13+r}]")
        for r in (0, 2):
            e(f"v_pk_add_f32 v[{XD+r}:{XD+r+1}], v[{R+r}:{R+r+1}], v[{R+8+r}:{R+9+r}]")
    xloads(XA)
    if cfg.LATE_DOWN:
        down_transpose(e)
    for _ in range(cfg.DELAY // 64): e("s_nop 15")
    sp = e.label("L_hopB"); okA = e.label("L_hopBokA"); okB = e.label("L_hopBokB"); jn = e.label("L_hopBj")
    e(f"{sp}:")
    xloads(XB)
    e("s_waitcnt vmcnt(4)")
    check(e, T0, range(XA, XA + 16, 4))
    e(f"s_cbranch_vccz {okA}")
    xloads(XA)
    e("s_waitcnt vmcnt(4)")
    check(e, T0, range(XB, XB + 16, 4))
    e(f"s_cbranch_vccz {okB}")
    spin_guard(e, sp)
    e(f"{okB}:")
    xsum(XB)
    e(f"s_branch {jn}\n{okA}:")
    xsum(XA)
    e(f"{jn}:")
    e.vm = []
    sts(e, cfg, 8)
    rs4(e, XD)
    X1 = 44
    e(f"""
    v_fma_f32 v{X1}, v{P_GA}, v{XD}, v{P_X}
    v_mul_f32 v{T2}, v{X1}, v{P_CB1}
    v_mov_b32 v{T0}, v{X1}
    v_mul_f32 v{T1}, v{X1}, v{X1}
    v_cvt_pk_bf16_f32 v{T2}, v{T2}, v{T2}
    ds_write_b16 v{P_WH2}, v{T2} offset:64
    ds_read_b128 v[{V_A}:{V_A+3}], v{P_A64R} offset:64
    ds_write_b32 v{P_COL4}, v{X1} offset:{L_X1}
    v_permlane32_swap_b32 v{T0}, v{T1}
    v_add_f32 v{T0}, v{T0}, v{T1}
    """)
    xrow(e, "v_add_f32", T0, T1, 16)
    e("s_waitcnt lgkmcnt(1)")
    mf = [f"v_mfma_f32_16x16x32_bf16 v[{32+4*t}:{32+4*t+3}], v[{V_A}:{V_A+3}], v[{W2+4*t}:{W2+4*t+3}], 0" for t in range(8)] + \
         [f"v_mfma_f32_16x16x32_bf16 v[{64+4*t}:{64+4*t+3}], v[{V_A}:{V_A+3}], v[{W3+4*t}:{W3+4*t+3}], 0" for t in range(8)]
    for n, steps in enumerate((1, 2, 4, 8)):
        e(mf[2 * n]); e(mf[2 * n + 1])
        e(f"v_add_f32_dpp v{T0}, v{T0}, v{T0} row_ror:{steps} row_mask:0xf bank_mask:0xf")
    for n in range(8, 16): e(mf[n])
    e(f"""
    v_lshrrev_b32 v{T1}, 5, v{V_LANE}
    v_lshlrev_b32 v{T1}, 2, v{T1}
    s_mov_b32 exec_lo, 1
    s_mov_b32 exec_hi, 1
    ds_add_f32 v{T1}, v{T0} offset:{L_STA2}
    s_mov_b64 exec, -1
    v_lshl_add_u32 v{T0}, v{V_LANE}, 5, s11
    """)
    zsum64(e, 32, 32)
    zsum64(e, 64, 64)
    e(f"""
    s_mov_b64 exec, 0xff
    ds_write_b128 v{T0}, v[32:35]
    ds_write_b128 v{T0}, v[36:39] offset:16
    ds_write_b128 v{T0}, v[64:67] offset:256
    ds_write_b128 v{T0}, v[68:71] offset:272
    s_mov_b64 exec, -1
    v_lshlrev_b32 v{T0}, 2, v{V_LANE}
    v_add_u32 v{T0}, {L_RGU}, v{T0}
    v_mov_b32 v{T2}, 0
    s_waitcnt lgkmcnt(0)
    s_barrier
    """)
    SZ, GU = 28, 48
    e(f"ds_read_b64 v[{SZ}:{SZ+1}], v{T2} offset:{L_STA2}")
    for v in range(8):
        e(f"ds_read2st64_b32 v[{GU+2*v}:{GU+2*v+1}], v{T0} offset0:{2*v} offset1:{2*v+1}")
    e(f"ds_read_b32 v44, v{P_COLF4} offset:{L_X1}")
    e(f"v_lshlrev_b32 v{T1}, 1, v{V_LANE}\nv_add_u32 v{T1}, s16, v{T1}")
    e("s_waitcnt lgkmcnt(9)")
    e(f"""
    v_mul_f32 v{T0}, {f32(1/512)}, v{SZ}
    v_mul_f32 v{T2}, {f32(1/512)}, v{SZ+1}
    v_fma_f32 v{T2}, -v{T0}, v{T0}, v{T2}
    v_add_f32 v{T2}, {f32(1e-5)}, v{T2}
    v_rsq_f32 v{T2}, v{T2}
    s_waitcnt lgkmcnt(1)
    """)
    for v in range(0, 8, 2):
        e(f"v_pk_add_f32 v[{GU+2*v}:{GU+2*v+1}], v[{GU+2*v}:{GU+2*v+1}], v[{GU+2*v+2}:{GU+2*v+3}]")
    e(f"v_pk_add_f32 v[{GU}:{GU+1}], v[{GU}:{GU+1}], v[{GU+4}:{GU+5}]")
    e(f"v_pk_add_f32 v[{GU+8}:{GU+9}], v[{GU+8}:{GU+9}], v[{GU+12}:{GU+13}]")
    e(f"v_pk_add_f32 v[{GU}:{GU+1}], v[{GU}:{GU+1}], v[{GU+8}:{GU+9}]")
    e(f"""
    v_fma_f32 v{GU}, -v{T0}, v{U1G}, v{GU}
    v_fma_f32 v{GU+1}, -v{T0}, v{U1U}, v{GU+1}
    v_fma_f32 v{GU}, v{GU}, v{T2}, v{U2G}
    v_fma_f32 v{GU+1}, v{GU+1}, v{T2}, v{U2U}
    v_mul_f32 v{T0}, {f32(-LOG2E)}, v{GU}
    v_exp_f32 v{T0}, v{T0}
    v_mul_f32 v{GU}, v{GU}, v{GU+1}
    v_add_f32 v{T0}, 1.0, v{T0}
    v_rcp_f32 v{T0}, v{T0}
    v_mul_f32 v{T0}, v{GU}, v{T0}
    v_cvt_pk_bf16_f32 v{T0}, v{T0}, v{T0}
    ds_write_b16 v{T1}, v{T0} offset:320
    ds_read_b128 v[{V_A}:{V_A+3}], v{P_A64R} offset:320
    v_lshrrev_b32 v{T0}, 3, v{V_LANE}
    v_and_b32 v{T1}, 7, v{V_LANE}
    v_lshlrev_b32 v{T1}, 5, v{T1}
    v_lshl_add_u32 v{T0}, v{T0}, 4, v{T1}
    s_waitcnt lgkmcnt(0)
    """)
    DD = 64
    for t in range(8):
        e(f"v_mfma_f32_16x16x32_bf16 v[{DD+4*t}:{DD+4*t+3}], v[{V_A}:{V_A+3}], v[{W4+4*t}:{W4+4*t+3}], 0")
    zsum64(e, DD, DD)
    for r in range(4):
        e(f"v_mov_b32_dpp v{DD+r}, v{DD+4+r} row_shr:8 row_mask:0xf bank_mask:0xc")
    for r in range(4): tag(e, DD + r)
    e("s_mov_b64 exec, 0xffff")
    store_mode(e, f"buffer_store_dwordx4 v[{DD}:{DD+3}], v{T0}, {WS}, s12 offen {{pol}}")
    e("s_mov_b64 exec, -1")
    e("L_final:")
    e("s_waitcnt lgkmcnt(0)")
    sts(e, cfg, 9)
    lab_end = e.label("L_svc_end")
    e(f"s_cmp_lg_u32 s3, 0\ns_cbranch_scc1 {lab_end}")
    FD = 28
    FA, FB = W1, W1 + 8
    for R in (FA, FB):
        for r in range(4): e(f"v_mov_b32 v{R+4+r}, s{S_TAU}")
    def floads(R):
        e(f"""
        buffer_load_dwordx4 v[{R}:{R+3}], v{P_FV}, {WS}, s14 offen sc1
        s_mov_b32 exec_hi, 0xffff
        buffer_load_dwordx4 v[{R+4}:{R+7}], v{P_FV}, {WS}, s15 offen sc1
        s_mov_b32 exec_hi, -1
        """)
    def fsum(R):
        for r in (0, 2): e(f"v_pk_add_f32 v[{FD+r}:{FD+r+1}], v[{R+r}:{R+r+1}], v[{R+4+r}:{R+5+r}]")
    sp = e.label("L_hopC"); okA = e.label("L_hopCokA"); okB = e.label("L_hopCokB"); jn = e.label("L_hopCj")
    floads(FA)
    e(f"{sp}:")
    floads(FB)
    e("s_waitcnt vmcnt(2)")
    check(e, T0, range(FA, FA + 8, 4))
    e(f"s_cbranch_vccz {okA}")
    floads(FA)
    e("s_waitcnt vmcnt(2)")
    check(e, T0, range(FB, FB + 8, 4))
    e(f"s_cbranch_vccz {okB}")
    spin_guard(e, sp)
    e(f"{okB}:")
    fsum(FB)
    e(f"s_branch {jn}\n{okA}:")
    fsum(FA)
    e(f"{jn}:")
    sts(e, cfg, 10)
    rs4(e, FD)
    e(f"""
    v_add_f32_dpp v{FD}, v{FD}, v{FD} row_ror:4 row_mask:0xf bank_mask:0xf
    v_add_f32_dpp v{FD}, v{FD}, v{FD} row_ror:8 row_mask:0xf bank_mask:0xf
    v_fma_f32 v{FD}, v{P_GB}, v{FD}, v44
    v_cvt_pk_bf16_f32 v{FD}, v{FD}, v{FD}
    buffer_store_short v{FD}, v{P_OUTV}, s[{S_OUT}:{S_OUT+3}], 0 offen
    """)
    sts(e, cfg, 11)
    if getattr(cfg, "DBGT", 0):
        e(f"""
        s_waitcnt vmcnt(0)
        s_memrealtime s[96:97]
        s_waitcnt lgkmcnt(0)
        s_sub_u32 s96, s96, s101
        v_mov_b32 v4, s96
        s_lshl_b32 s91, s81, 2
        v_mov_b32 v5, s91
        v_cmp_gt_u32 vcc, 32, v5
        s_mov_b64 exec, 1
        s_cmp_ge_u32 s81, 6
        s_cbranch_scc1 {lab_end}
        buffer_store_dword v4, v5, s[{S_DBG}:{S_DBG+3}], 0 offen sc1
        """)
    e(f"{lab_end}:")
    if cfg.TS:
        e(f"""
        s_lshl_b32 s91, s81, 3
        s_add_u32 s91, s91, s3
        s_lshl_b32 s91, s91, 7
        s_add_u32 s91, s91, {WS_TS + 0x10000}
        v_lshlrev_b32 v{T0}, 2, v{V_LANE}
        s_mov_b32 exec_hi, 0
        buffer_store_dword v0, v{T0}, {WS}, s91 offen
        """)
    e("s_endpgm")
```

```python
NAME = "adaLN_cond__gqa_block_cached__swiglu_ffn__decode"
REF = f"cdna_kernels/{NAME}.s.ref"

def header_comments():
    out = []
    for l in open(REF).read().split("\n"):
        if l.startswith("; @launch"):
            break
        if l.startswith(";") and "@launch" not in l and "Override launch" not in l and "grid=ceil" not in l:
            out.append(l)
    return out

class Asm:
    def __init__(self):
        self.L = []
        self.nlabel = 0
    def __call__(self, s):
        for l in s.split("\n"):
            l = l.strip()
            if not l: continue
            if l.endswith(":"):
                self.L.append(l)
            else:
                self.L.append("    " + l)
    def label(self, base="L"):
        self.nlabel += 1
        return f"{base}_{self.nlabel}"
    def text(self):
        return "\n".join(self.L)

DESIGN = """; ---------------------------------------------------------------------------------------------------------
;  * workgroups with id%8 == 0 ("service", 32 of them): adaLN modulation, q = h @ wq, wo / gate / up / down matvecs.
; ---------------------------------------------------------------------------------------------------------
"""

def wrap_single(body, grid, block, lds, vgpr, sgpr=102, accum=None):
    if accum is None: accum = min(256, (vgpr + 3) // 4 * 4)
    h = header_comments()
    s = "\n".join(h) + f"\n; @launch grid=({grid},1,1) block=({block},1,1) lds={lds}\n"
    s += DESIGN
    s += f""".amdgcn_target "amdgcn-amd-amdhsa--gfx950"
.text
.globl {NAME}_kernel
.p2align 8
.type {NAME}_kernel,@function
{NAME}_kernel:
{body}
.section .rodata,"a"
.p2align 6
.amdhsa_kernel {NAME}_kernel
  .amdhsa_next_free_vgpr {vgpr}
  .amdhsa_next_free_sgpr {sgpr}
  .amdhsa_accum_offset {accum}
  .amdhsa_group_segment_fixed_size 0
  .amdhsa_kernarg_size 112
  .amdhsa_user_sgpr_count 2
  .amdhsa_user_sgpr_kernarg_segment_ptr 1
  .amdhsa_system_sgpr_workgroup_id_x 1
.end_amdhsa_kernel
"""
    return s
```

```python
from kern import *

S_WS, S_DBG, S_X, S_C, S_WMOD, S_WQ, S_WO, S_WG, S_WU, S_WD, S_OUT = 36, 40, 44, 48, 52, 56, 4, 64, 68, 72, 84
L_SVA  = 0
L_CNT  = 1024
L_STAT = 2048
L_STA2 = 2176
L_RA1  = 2304
L_RQ   = 4352
L_RB   = 8448
L_RP1  = 10496
L_RGU  = 18688
L_X1   = 22784
L_WL   = 24832
L_STG  = 24832 + 4096
SVC_LDS = L_STG + 8 * 16384

V_LANE, V_TAU2, V_N = 1, 2, 3
T0, T1, T2, T3 = 4, 5, 6, 7
V_A = 8
P_WLW1, P_WH2, P_COL4, P_COLF4 = 12, 13, 14, 15
P_GA, P_CB1, P_SB, P_X, P_GB = 16, 17, 18, 19, 20
P_PV, P_MV, P_XV, P_FV, P_A64R, P_A128R, P_OUTV = 21, 22, 23, 24, 25, 26, 27
SC = 28
W0, W1, W2, W3, W4 = 96, 128, 160, 192, 224

def unit64_voff(e, dst, stride_bytes, t0, t1):
    e(f"""
    v_lshrrev_b32 v{t0}, 4, v{V_LANE}
    v_lshlrev_b32 v{t0}, 3, v{t0}
    v_bfe_u32 v{t1}, v{V_LANE}, 3, 1
    v_lshlrev_b32 v{t1}, 5, v{t1}
    v_add_u32 v{t0}, v{t0}, v{t1}
    v_mul_u32_u24 v{t0}, {stride_bytes}, v{t0}
    v_and_b32 v{t1}, 7, v{V_LANE}
    v_lshlrev_b32 v{t1}, 4, v{t1}
    v_add_u32 v{dst}, v{t0}, v{t1}
    """)

def unit128_voff(e, dst, stride_bytes, t0, t1):
    e(f"""
    v_lshrrev_b32 v{t0}, 4, v{V_LANE}
    v_mul_u32_u24 v{t0}, {8*stride_bytes}, v{t0}
    v_and_b32 v{t1}, 15, v{V_LANE}
    v_lshlrev_b32 v{t1}, 4, v{t1}
    v_add_u32 v{dst}, v{t0}, v{t1}
    """)

class Stream:
    def __init__(self, e, depth): self.e, self.d = e, depth
    def load(self, dst, voff, srdq, sbase, byte_off, tag):
        e = self.e
        e.wait_vm_n(self.d - 1)
        if byte_off < 4096:
            e.vmem(f"buffer_load_dwordx4 v[{dst}:{dst+3}], v{voff}, s[{srdq}:{srdq+3}], {sbase} offen offset:{byte_off} nt", tag)
        else:
            e(f"s_add_u32 s93, {sbase}, {byte_off}")
            e.vmem(f"buffer_load_dwordx4 v[{dst}:{dst+3}], v{voff}, s[{srdq}:{srdq+3}], s93 offen nt", tag)

def zsum64(e, D, Z):
    for t in range(8):
        e(f"v_add_f32_dpp v{Z+t}, v{D+4*t+1}, v{D+4*t} row_shl:8 row_mask:0xf bank_mask:0xf")

def rs4(e, a):
    e(f"v_permlane32_swap_b32 v{a}, v{a+1}")
    e(f"v_permlane32_swap_b32 v{a+2}, v{a+3}")
    e(f"v_add_f32 v{a}, v{a}, v{a+1}")
    e(f"v_add_f32 v{a+2}, v{a+2}, v{a+3}")
    e(f"v_permlane16_swap_b32 v{a}, v{a+2}")
    e(f"v_add_f32 v{a}, v{a}, v{a+2}")

def store_mode(e, text):
    lf = e.label("L_fast"); le = e.label("L_stend")
    e(f"s_cmp_eq_u32 s98, 1\ns_cbranch_scc1 {lf}")
    e(text.format(pol="sc1"))
    e(f"s_branch {le}\n{lf}:")
    e(text.format(pol=""))
    e(f"{le}:")
    e.vm.append("st")

def sts(e, cfg, k):
    if cfg.TS:
        e(f"s_memrealtime s[96:97]\ns_waitcnt lgkmcnt(0)\nv_writelane_b32 v0, s96, {k}")

def silu(e, dst, src, t):
    e(f"""
    v_mul_f32 v{t}, {f32(-LOG2E)}, v{src}
    v_exp_f32 v{t}, v{t}
    v_add_f32 v{t}, 1.0, v{t}
    v_rcp_f32 v{t}, v{t}
    v_mul_f32 v{dst}, v{src}, v{t}
    """)

DBG_OFF = [0]
def persist_setup(e, cfg):
    DBG_OFF[0] = 128 if getattr(cfg, 'DBGT', 0) else 0
    WS = f"s[{S_WS}:{S_WS+3}]"
    e(f"""
    v_lshrrev_b32 v{T0}, 4, v{V_LANE}
    v_and_b32 v{T1}, 1, v{T0}
    v_lshlrev_b32 v{T1}, 1, v{T1}
    v_lshrrev_b32 v{T2}, 1, v{T0}
    v_or_b32 v{T2}, v{T2}, v{T1}
    s_lshl_b32 s16, s3, 9
    s_add_u32 s16, s16, {L_WL}
    v_lshlrev_b32 v{P_A128R}, 4, v{T0}
    v_add_u32 v{P_A128R}, s16, v{P_A128R}
    v_and_b32 v{P_A64R}, 1, v{V_LANE}
    v_lshlrev_b32 v{P_A64R}, 6, v{P_A64R}
    v_add3_u32 v{P_A64R}, v{P_A64R}, v{P_A128R}, 0
    v_and_b32 v{T1}, 7, v{V_LANE}
    v_lshl_add_u32 v{T1}, v{T1}, 2, v{T2}
    v_lshlrev_b32 v{T1}, 1, v{T1}
    v_add_u32 v{P_WLW1}, s16, v{T1}
    v_and_b32 v{T1}, 15, v{V_LANE}
    v_lshl_add_u32 v{T1}, v{T1}, 2, v{T2}
    v_lshlrev_b32 v{T3}, 1, v{T1}
    v_add_u32 v{P_WH2}, s16, v{T3}
    s_lshl_b32 s91, s3, 6
    v_add_u32 v{T1}, s91, v{T1}
    v_lshlrev_b32 v{P_COL4}, 2, v{T1}
    v_lshlrev_b32 v{T3}, 1, v{T1}
    v_and_b32 v{T1}, 3, v{V_LANE}
    v_lshl_add_u32 v{T1}, v{T1}, 2, v{T2}
    s_lshl_b32 s91, s81, 4
    v_add_u32 v{T1}, s91, v{T1}
    v_lshlrev_b32 v{P_COLF4}, 2, v{T1}
    v_lshlrev_b32 v{T1}, 1, v{T1}
    v_and_b32 v{T0}, 12, v{V_LANE}
    v_cmp_eq_u32 vcc, 0, v{T0}
    v_mov_b32 v{P_OUTV}, {OOB}
    v_cndmask_b32 v{P_OUTV}, v{P_OUTV}, v{T1}, vcc
    s_mov_b32 s8, {WS_MODB}
    s_mov_b32 s9, {WS_MODB + 4096}
    v_mov_b32 v2, v{T3}
    v_and_b32 v92, 31, v{V_LANE}
    v_lshlrev_b32 v92, 2, v92
    """)

def modb_loads(e, track):
    WS = f"s[{S_WS}:{S_WS+3}]"
    L = [f"buffer_load_dword v{P_GA}, v{P_COL4}, {WS}, s8 offen sc1",
         f"buffer_load_dword v{P_SB}, v{P_COL4}, {WS}, s8 offen offset:2048 sc1",
         f"buffer_load_dword v{P_CB1}, v{P_COL4}, {WS}, s9 offen sc1",
         f"buffer_load_dword v{P_GB}, v{P_COLF4}, {WS}, s9 offen offset:2048 sc1",
         f"buffer_load_ushort v{P_X}, v2, s[{S_X}:{S_X+3}], 0 offen",
         f"buffer_load_dword v3, v92, s[{S_DBG}:{S_DBG+3}], 0 offen offset:{DBG_OFF[0]} sc1"]
    for k, t in enumerate(L):
        if track: e.vmem(t, f"MB{k}")
        else: e(t)

def counter_last(e, off, n, lab):
    e(f"""
    s_mov_b64 exec, 1
    v_mov_b32 v{T1}, {L_CNT + off}
    v_mov_b32 v{T2}, 1
    s_waitcnt lgkmcnt(0)
    ds_add_rtn_u32 v{T3}, v{T1}, v{T2}
    s_waitcnt lgkmcnt(0)
    v_readfirstlane_b32 s91, v{T3}
    s_mov_b64 exec, -1
    s_cmp_lg_u32 s91, {n}
    s_cbranch_scc1 {lab}
    """)

def service(e, cfg):
    Dd = [cfg.D_SVC]
    WS = f"s[{S_WS}:{S_WS+3}]"
    Z = 76
    pend = []
    def pump(upto_tag):
        while True:
            tag_, fn = pend.pop(0)
            e.wait_vm_n(Dd[0] - 1)
            fn()
            if tag_ == upto_tag: break
    def rload(dst, voff, srdq, sbase, byte_off, tag_):
        def fn():
            if byte_off < 4096:
                e.vmem(f"buffer_load_dwordx4 v[{dst}:{dst+3}], v{voff}, s[{srdq}:{srdq+3}], {sbase} offen offset:{byte_off} nt", tag_)
            else:
                e(f"s_add_u32 s93, {sbase}, {byte_off}")
                e.vmem(f"buffer_load_dwordx4 v[{dst}:{dst+3}], v{voff}, s[{srdq}:{srdq+3}], s93 offen nt", tag_)
        pend.append((tag_, fn))
    def dma(voff, srdq, sbase, byte_off, lds_off, tag_):
        def fn():
            e(f"s_add_u32 s93, {sbase}, {byte_off}\ns_add_u32 s92, s63, {lds_off}\ns_mov_b32 m0, s92\ns_nop 0")
            e.vmem(f"buffer_load_dwordx4 v{voff}, s[{srdq}:{srdq+3}], s93 offen nt lds", tag_)
        pend.append((tag_, fn))
    e(f"""
    v_mov_b32 v4, {L_CNT}
    v_mov_b32 v6, 0
    v_mov_b32 v7, 0
    ds_write_b64 v4, v[6:7]
    ds_write_b64 v4, v[6:7] offset:8
    s_waitcnt lgkmcnt(0)
    """)
    tag_setup(e)
    e("s_barrier")
    e(f"s_mov_b32 s99, {cfg.SPIN}")
    srd(e, S_C, 26, 27, 1024)
    srd(e, S_WMOD, 28, 29, 512 * 3072 * 2)
    srd(e, S_WS, 34, 35, WS_SIZE)
    srd(e, S_X, 8, 9, 1024)
    srd(e, S_WQ, 14, 15, 512 * 4096 * 2)
    sts(e, cfg, 0)
    e(f"""
    s_and_b32 s83, s81, 15
    s_lshr_b32 s60, s81, 4
    s_lshl_b32 s88, s60, 12
    s_lshl_b32 s89, s83, 8
    s_add_u32 s88, s88, s89
    s_lshl_b32 s82, s3, 9
    s_add_u32 s82, s82, {L_WL}
    s_mov_b32 s94, 0x05040100
    s_mov_b32 s95, 0x07060302
    """)
    lab_noa1 = e.label("L_noa1i")
    e(f"s_cmp_ge_u32 s3, 4\ns_cbranch_scc1 {lab_noa1}")
    e(f"""
    s_lshl_b32 s61, s60, 8
    s_lshl_b32 s62, s3, 6
    s_add_u32 s61, s61, s62
    v_lshlrev_b32 v{T0}, 1, v{V_LANE}
    s_lshl_b32 s91, s61, 1
    buffer_load_ushort v22, v{T0}, s[{S_C}:{S_C+3}], s91 offen
    """)
    unit64_voff(e, 19, 6144, T1, T2)
    e(f"""
    s_mul_i32 s63, s61, 6144
    s_lshl_b32 s62, s83, 7
    s_add_u32 s63, s63, s62
    """)
    AR = 96
    for ee in range(8):
        if ee: e(f"s_add_u32 s63, s63, 6144")
        e(f"buffer_load_dwordx4 v[{AR+4*ee}:{AR+4*ee+3}], v19, s[{S_WMOD}:{S_WMOD+3}], s63 offen nt")
    sts(e, cfg, 16)
    e(f"{lab_noa1}:")
    sts(e, cfg, 18)
    c, x, XA = 16, 17, 32
    V_OQ, V_OB, V_OG, V_ODN, V_OW, FO = 18, 19, 21, 23, 24, 20
    e(f"""
    v_lshlrev_b32 v{T3}, 4, v{V_LANE}
    s_lshl_b32 s91, s3, 7
    v_lshlrev_b32 v{V_TAU2}, 1, v{V_LANE}
    v_add_u32 v{V_TAU2}, s91, v{V_TAU2}
    """)
    unit128_voff(e, V_OQ, 8192, T0, T1)
    e(f"""
    s_lshr_b32 s90, s81, 3
    s_lshl_b32 s90, s90, 7
    s_lshr_b32 s91, s3, 1
    s_lshl_b32 s91, s91, 5
    s_add_u32 s91, s91, s90
    v_and_b32 v{FO}, 31, v{V_LANE}
    v_add_u32 v{FO}, s91, v{FO}
    v_lshlrev_b32 v{FO}, 1, v{FO}
    s_lshl_b32 s90, s91, 13
    s_and_b32 s91, s81, 7
    s_lshl_b32 s91, s91, 10
    s_add_u32 s90, s90, s91
    s_and_b32 s91, s3, 1
    s_lshl_b32 s91, s91, 9
    s_add_u32 s90, s90, s91
    """)
    e.vmem(f"buffer_load_dwordx4 v[{XA}:{XA+3}], v{T3}, s[{S_X}:{S_X+3}], 0 offen", "xa")
    e.vmem(f"buffer_load_ushort v{x}, v{FO}, s[{S_X}:{S_X+3}], 0 offen", "x")
    e.vmem(f"buffer_load_ushort v{c}, v{V_TAU2}, s[{S_C}:{S_C+3}], 0 offen", "c")
    for i in range(16):
        ee, ci = divmod(i, 2)
        rload(W3 + 32 * ci + 4 * ee, V_OQ, S_WQ, "s90", ee * 8192 + ci * 256, f"wq{i}")
    pump("wq3")
    if getattr(cfg, "PRE2", 0):
        e(f"""
        v_mov_b32 v28, 0
        v_mov_b32 v29, 0
        v_mov_b32 v30, 0
        v_mov_b32 v31, 0
        s_lshl_b32 s91, s81, 3
        s_add_u32 s91, s91, s3
        s_lshl_b32 s92, s91, 10
        s_add_u32 s92, s92, {WS_ML}
        buffer_store_dwordx4 v[28:31], v{T3}, {WS}, s92 offen sc1
        s_add_u32 s92, s92, {256*1024}
        s_cmp_lt_u32 s91, {(WS_END - WS_ML)//1024 - 256}
        s_cselect_b32 s92, s92, {OOB}
        buffer_store_dwordx4 v[28:31], v{T3}, {WS}, s92 offen sc1
        """)
    sts(e, cfg, 14)
    lab = e.label("L_a1done")
    e(f"s_cmp_ge_u32 s3, 4\ns_cbranch_scc1 {lab}")
    e("s_waitcnt vmcnt(7)")
    sts(e, cfg, 17)
    e("v_lshlrev_b32 v22, 16, v22")
    silu(e, 22, 22, T1)
    e(f"""
    v_cvt_pk_bf16_f32 v22, v22, v22
    v_lshl_add_u32 v{T0}, v{V_LANE}, 1, s82
    ds_write_b16 v{T0}, v22
    v_and_b32 v{T1}, 1, v{V_LANE}
    v_lshlrev_b32 v{T1}, 6, v{T1}
    v_lshrrev_b32 v{T2}, 4, v{V_LANE}
    v_lshl_add_u32 v{T1}, v{T2}, 4, v{T1}
    v_add_u32 v{T1}, s82, v{T1}
    ds_read_b128 v[{V_A}:{V_A+3}], v{T1}
    """)
    TB, DA = 44, 128
    transpose_unit(e, AR, TB)
    e("s_waitcnt lgkmcnt(0)")
    for t in range(8):
        e(f"v_mfma_f32_16x16x32_bf16 v[{DA+4*t}:{DA+4*t+3}], v[{V_A}:{V_A+3}], v[{TB+4*t}:{TB+4*t+3}], 0")
    zsum64(e, DA, Z)
    e(f"""
    s_lshl_b32 s91, s3, 8
    v_lshlrev_b32 v{T0}, 5, v{V_LANE}
    v_add_u32 v{T0}, s91, v{T0}
    s_mov_b64 exec, 0xff
    ds_write_b128 v{T0}, v[{Z}:{Z+3}] offset:{L_RA1}
    ds_write_b128 v{T0}, v[{Z+4}:{Z+7}] offset:{L_RA1+16}
    """)
    counter_last(e, 0, 3, lab)
    e(f"v_lshlrev_b32 v{T0}, 2, v{V_LANE}")
    for v in range(4):
        e(f"ds_read_b32 v{Z+v}, v{T0} offset:{L_RA1 + 256*v}")
    e("s_waitcnt lgkmcnt(0)")
    tag_finish(e)
    e(f"""
    v_add_f32 v{Z}, v{Z}, v{Z+1}
    v_add_f32 v{Z+2}, v{Z+2}, v{Z+3}
    v_add_f32 v{Z}, v{Z}, v{Z+2}
    """)
    tag(e, Z)
    e(f"buffer_store_dword v{Z}, v{T0}, {WS}, s88 offen sc1")
    e(f"s_sub_u32 s{S_TAU}, s{S_TAU}, 1")
    sts(e, cfg, 1)
    e(f"{lab}:")
    pump("wq7")
    srd(e, S_DBG, 32, 33, 256)
    srd(e, S_WO, 16, 17, 4096 * 512 * 2)
    srd(e, S_WG, 20, 21, 512 * 1792 * 2)
    srd(e, S_WU, 22, 23, 512 * 1792 * 2)
    srd(e, S_WD, 24, 25, 1792 * 512 * 2)
    srd(e, S_OUT, 30, 31, 1024)
    e("s_waitcnt lgkmcnt(0)")
    tag_finish(e)
    lab = e.label("L_xcc")
    e(f"""
    s_cmp_lg_u32 s3, 0
    s_cbranch_scc1 {lab}
    s_getreg_b32 s91, hwreg(HW_REG_XCC_ID)
    s_and_b32 s91, s91, 15
    s_add_u32 s91, s91, 1
    v_mov_b32 v{T1}, s91
    s_lshl_b32 s92, s81, 2
    v_mov_b32 v{T2}, s92
    s_mov_b64 exec, 1
    buffer_store_dword v{T1}, v{T2}, s[{S_DBG}:{S_DBG+3}], 0 offen offset:{128 if getattr(cfg, "DBGT", 0) else 0} sc1
    s_mov_b64 exec, -1
    {lab}:
    """)
    e.wait_vm("c")
    U = 36
    for k in range(4):
        e(f"v_lshlrev_b32 v{U+2*k}, 16, v{XA+k}\nv_and_b32 v{U+2*k+1}, 0xffff0000, v{XA+k}")
    e(f"v_add_f32 v{V_A}, v{U}, v{U+1}\nv_mul_f32 v{V_A+1}, v{U}, v{U}\nv_fmac_f32 v{V_A+1}, v{U+1}, v{U+1}")
    for k in range(2, 8):
        e(f"v_add_f32 v{V_A}, v{V_A}, v{U+k}\nv_fmac_f32 v{V_A+1}, v{U+k}, v{U+k}")
    e(f"v_permlane32_swap_b32 v{V_A}, v{V_A+1}\nv_add_f32 v{V_A}, v{V_A}, v{V_A+1}")
    xrow(e, "v_add_f32", V_A, T0, 16)
    allreduce16(e, "v_add_f32", V_A)
    e(f"""
    v_lshlrev_b32 v{c}, 16, v{c}
    v_lshlrev_b32 v{x}, 16, v{x}
    v_readlane_b32 s91, v{V_A}, 0
    v_readlane_b32 s92, v{V_A}, 32
    """)
    silu(e, c, c, T0)
    e(f"""
    v_mov_b32 v{T0}, {f32(1/512)}
    v_mul_f32 v{T1}, s91, v{T0}
    v_mul_f32 v{T2}, s92, v{T0}
    v_fma_f32 v{T2}, -v{T1}, v{T1}, v{T2}
    v_add_f32 v{T2}, {f32(1e-5)}, v{T2}
    v_rsq_f32 v{T2}, v{T2}
    v_sub_f32 v{V_N}, v{x}, v{T1}
    v_mul_f32 v{V_N}, v{V_N}, v{T2}
    v_cvt_pk_bf16_f32 v{c}, v{c}, v{c}
    v_lshl_add_u32 v{T0}, v{V_LANE}, 1, s82
    ds_write_b16 v{T0}, v{c} offset:128
    """)
    pump("wq15")
    sts(e, cfg, 15)
    e(f"v_lshlrev_b32 v{FO}, 1, v{FO}\ns_mov_b32 s89, 4096")
    def moda_loads(track):
        for k, (so, im) in enumerate((("0", 0), ("s89", 0), ("0", 2048), ("s89", 2048))):
            t = f"buffer_load_dword v{Z+k}, v{FO}, {WS}, {so} offen offset:{im} sc1"
            if track: e.vmem(t, f"MA{k}")
            else: e(t)
    e.wait_vm_n(Dd[0] - 4)
    moda_loads(True)
    unit64_voff(e, V_OB, 6144, T0, T1)
    unit64_voff(e, V_OG, 3584, T0, T1)
    unit64_voff(e, V_ODN, 1024, T0, T1)
    unit128_voff(e, V_OW, 1024, T0, T1)
    e(f"""
    s_mul_i32 s90, s3, {64*6144}
    s_lshl_b32 s91, s81, 7
    s_add_u32 s90, s90, s91
    s_add_u32 s90, s90, 2048
    s_mul_i32 s61, s3, {64*3584}
    s_add_u32 s61, s61, s91
    s_lshl_b32 s62, s81, 16
    s_lshl_b32 s91, s3, 7
    s_add_u32 s62, s62, s91
    s_cmp_lt_u32 s81, 28
    s_cselect_b32 s61, s61, {OOB}
    s_cselect_b32 s62, s62, {OOB}
    s_lshr_b32 s60, s81, 1
    s_lshl_b32 s10, s60, 8
    s_lshl_b32 s63, s3, 5
    s_add_u32 s10, s10, s63
    s_lshl_b32 s10, s10, 10
    s_and_b32 s11, s81, 1
    s_lshl_b32 s63, s11, 9
    s_add_u32 s10, s10, s63
    s_mul_i32 s63, s3, 16384
    s_add_u32 s63, s63, {L_STG}
    """)
    if getattr(cfg, "NOBULK", 0):
        e(f"s_mov_b32 s61, {OOB}\ns_mov_b32 s62, {OOB}\ns_mov_b32 s10, {OOB}")
    for ee in range(8): rload(W1 + 4 * ee, V_OB, S_WMOD, "s90", ee * 6144, f"wb{ee}")
    for ee in range(8):
        for cb in range(2): rload(W2 + 32 * cb + 4 * ee, V_OW, S_WO, "s10", cb * 256 + ee * 1024, f"wo{cb}_{ee}")
    for ee in range(8): rload(W4 + 4 * ee, V_OG, S_WG, "s61", ee * 3584, f"wg{ee}")
    for ee in range(8): dma(V_OG, S_WU, "s61", ee * 3584, ee * 1024, f"wu{ee}")
    for ee in range(8): dma(V_ODN, S_WD, "s62", ee * 1024, 8192 + ee * 1024, f"wd{ee}")
    pump("wb2")
    e.wait_vm("wq15")
    sts(e, cfg, 19)
    transpose_unit(e, W3, W2)
    transpose_unit(e, W4, W3)
    e.wait_vm("MA3")
    sp = e.label("L_moda"); ok = e.label("L_modaok")
    check(e, T1, range(Z, Z + 4))
    e(f"s_cbranch_vccz {ok}\n{sp}:\ns_sleep 2")
    moda_loads(False)
    e("s_waitcnt vmcnt(0)")
    check(e, T1, range(Z, Z + 4))
    e(f"s_cbranch_vccz {ok}")
    spin_guard(e, sp)
    e(f"{ok}:")
    sts(e, cfg, 13)
    e(f"""
    v_add_f32 v{Z}, v{Z}, v{Z+1}
    v_add_f32 v{Z+2}, v{Z+2}, v{Z+3}
    v_add_f32 v{Z+2}, 1.0, v{Z+2}
    v_fma_f32 v{Z}, v{V_N}, v{Z+2}, v{Z}
    v_cvt_pk_bf16_f32 v{Z}, v{Z}, v{Z}
    v_lshl_add_u32 v{T0}, v{V_LANE}, 1, s82
    ds_write_b16 v{T0}, v{Z}
    v_lshrrev_b32 v{T0}, 4, v{V_LANE}
    v_lshl_add_u32 v{T0}, v{T0}, 4, s82
    ds_read_b128 v[{V_A}:{V_A+3}], v{T0}
    s_waitcnt lgkmcnt(0)
    """)
    DQ, DQ2 = 44, W0
    for t in range(8):
        e(f"v_mfma_f32_16x16x32_bf16 v[{DQ+4*t}:{DQ+4*t+3}], v[{V_A}:{V_A+3}], v[{W2+4*t}:{W2+4*t+3}], 0")
    for t in range(8):
        e(f"v_mfma_f32_16x16x32_bf16 v[{DQ2+4*t}:{DQ2+4*t+3}], v[{V_A}:{V_A+3}], v[{W3+4*t}:{W3+4*t+3}], 0")
    pump("wb5")
    e(f"""
    s_lshl_b32 s91, s3, 10
    s_add_u32 s91, s91, {L_RP1}
    v_lshlrev_b32 v{T0}, 5, v{V_LANE}
    v_add_u32 v{T0}, s91, v{T0}
    s_mov_b64 exec, 0xffff
    """)
    for ci, D_ in enumerate((DQ, DQ2)):
        for u in range(4):
            e(f"ds_write2_b32 v{T0}, v{D_+8*u}, v{D_+8*u+4} offset0:{128*ci+2*u} offset1:{128*ci+2*u+1}")
    for _ in range(getattr(cfg, "DELAY_QP", 0) // 64): e("s_nop 15")
    lab = e.label("L_qpub")
    counter_last(e, 4, 7, lab)
    e(f"v_lshlrev_b32 v{T0}, 5, v{V_LANE}")
    for ks in range(4):
        e(f"ds_read_b128 v[{44+8*ks}:{44+8*ks+3}], v{T0} offset:{L_RP1 + 2048*ks}")
        e(f"ds_read_b128 v[{48+8*ks}:{48+8*ks+3}], v{T0} offset:{L_RP1 + 2048*ks + 16}")
    e("s_waitcnt lgkmcnt(0)")
    for ks in range(1, 4):
        for r in range(0, 8, 2):
            e(f"v_pk_add_f32 v[{44+r}:{45+r}], v[{44+r}:{45+r}], v[{44+8*ks+r}:{45+8*ks+r}]")
    for r in range(8): tag(e, 44 + r)
    e(f"""
    s_lshr_b32 s91, s81, 3
    s_lshl_b32 s91, s91, 14
    s_and_b32 s92, s81, 7
    s_lshl_b32 s92, s92, 11
    s_add_u32 s91, s91, s92
    s_add_u32 s91, s91, {WS_Q}
    buffer_store_dwordx4 v[44:47], v{T0}, {WS}, s91 offen sc1
    buffer_store_dwordx4 v[48:51], v{T0}, {WS}, s91 offen offset:16 sc1
    {lab}:
    """)
    sts(e, cfg, 3)
    Dd[0] = cfg.D_SVC2
    persist_setup(e, cfg)
    pump("wo0_3")
    e.wait_vm("wb7")
    transpose_unit(e, W1, W0)
    e(f"""
    ds_read_b128 v[{V_A}:{V_A+3}], v{P_A64R} offset:128
    s_waitcnt lgkmcnt(0)
    """)
    DB = 44
    for t in range(8):
        e(f"v_mfma_f32_16x16x32_bf16 v[{DB+4*t}:{DB+4*t+3}], v[{V_A}:{V_A+3}], v[{W0+4*t}:{W0+4*t+3}], 0")
    pump("wo0_5")
    zsum64(e, DB, Z)
    e(f"""
    s_lshl_b32 s91, s3, 8
    v_lshlrev_b32 v{T0}, 5, v{V_LANE}
    v_add_u32 v{T0}, s91, v{T0}
    s_mov_b64 exec, 0xff
    ds_write_b128 v{T0}, v[{Z}:{Z+3}] offset:{L_RB}
    ds_write_b128 v{T0}, v[{Z+4}:{Z+7}] offset:{L_RB+16}
    """)
    lab = e.label("L_bpub")
    counter_last(e, 8, 7, lab)
    e(f"v_lshlrev_b32 v{T0}, 2, v{V_LANE}")
    for v in range(8):
        e(f"ds_read_b32 v{Z+v}, v{T0} offset:{L_RB + 256*v}")
    e("s_waitcnt lgkmcnt(0)")
    e(f"v_add_f32 v{Z}, v{Z}, v{Z+1}")
    for v in range(2, 8): e(f"v_add_f32 v{Z}, v{Z}, v{Z+v}")
    tag(e, Z)
    e(f"""
    s_lshl_b32 s91, s81, 8
    s_add_u32 s91, s91, {WS_MODB}
    buffer_store_dword v{Z}, v{T0}, {WS}, s91 offen sc1
    {lab}:
    """)
    UR = 44
    pump("wg6")
    e.wait_vm("wo1_7")
    transpose_unit(e, W2, W0)
    transpose_unit(e, W3, W1)
    pump("wg7")
    e.wait_vm_n(max(Dd[0] - 6, 0))
    modb_loads(e, True)
    pump("wu5")
    e.wait_vm("wg7")
    transpose_unit(e, W4, W2)
    pump("wd7")
    modb_check(e, cfg)
    e(f"s_mul_i32 s91, s3, 16384\ns_add_u32 s91, s91, {L_STG}\nv_lshl_add_u32 v{T0}, v{V_LANE}, 4, s91")
    e.wait_vm("wu7")
    for ee in range(8): e(f"ds_read_b128 v[{UR+4*ee}:{UR+4*ee+3}], v{T0} offset:{ee*1024}")
    e("s_waitcnt lgkmcnt(0)")
    transpose_unit(e, UR, W3)
    e("s_mov_b32 s61, s11")
    post_addresses(e, cfg)
    u_stage(e, cfg)
    ml_first(e, cfg)
    if cfg.WARM:
        for sb in ("s13", "s17", "s18", "s19"):
            e.vmem(f"buffer_load_dword v92, v{P_XV}, {WS}, {sb} offen sc1", "warm")
        e.vmem(f"buffer_load_dword v92, v{P_FV}, {WS}, s14 offen sc1", "warm")
        e.vmem(f"buffer_load_dword v92, v{P_FV}, {WS}, s15 offen sc1", "warm")
        e.vmem(f"buffer_load_ushort v92, v{P_OUTV}, s[{S_OUT}:{S_OUT+3}], 0 offen", "warm")
    for _ in range(getattr(cfg, "DELAY_SVC", 0) // 64): e("s_nop 15")
    if not cfg.LATE_DOWN:
        down_transpose(e)
    sts(e, cfg, 4)
    post_chain(e, cfg)
    yield "done"

ML_BASE = 76
def ml_loads(e, track):
    WS = f"s[{S_WS}:{S_WS+3}]"
    ML = ML_BASE
    L = [f"buffer_load_dwordx4 v[{ML+4*i}:{ML+4*i+3}], v{P_MV}, {WS}, s88 offen offset:{1024*i} sc1" for i in range(3)]
    for k, t in enumerate(L):
        if track: e.vmem(t, f"ML{k}")
        else: e(t)
    e("s_mov_b32 exec_hi, 0")
    t = f"buffer_load_dwordx4 v[{ML+12}:{ML+15}], v{P_MV}, {WS}, s88 offen offset:3072 sc1"
    if track: e.vmem(t, "ML3")
    else: e(t)
    e("s_mov_b32 exec_hi, -1")

def ml_first(e, cfg):
    ML = ML_BASE
    e(f"v_mov_b32 v{ML+12}, 0xff7fff00\nv_mov_b32 v{ML+13}, s{S_TAU}\nv_mov_b32 v{ML+14}, s{S_TAU}\nv_mov_b32 v{ML+15}, s{S_TAU}")
    tag(e, ML + 12)
    ml_loads(e, True)

def modb_check(e, cfg):
    sp = e.label("L_modb"); ok = e.label("L_modbok")
    e.wait_vm("MB5")
    check(e, T0, [P_GA, P_SB, P_CB1, P_GB])
    e(f"v_cmp_eq_u32 s[82:83], 0, v3\ns_or_b64 vcc, vcc, s[82:83]\ns_cbranch_vccz {ok}\n{sp}:\ns_sleep 2")
    modb_loads(e, False)
    e("s_waitcnt vmcnt(0)")
    check(e, T0, [P_GA, P_SB, P_CB1, P_GB])
    e(f"v_cmp_eq_u32 s[82:83], 0, v3\ns_or_b64 vcc, vcc, s[82:83]\ns_cbranch_vccz {ok}")
    spin_guard(e, sp)
    e(f"{ok}:")
    e(f"""
    v_readfirstlane_b32 s91, v3
    s_nop 1
    v_cmp_ne_u32 vcc, s91, v3
    s_nop 1
    s_cmp_eq_u64 vcc, 0
    s_cselect_b32 s98, {0 if cfg.FORCE_SLOW else 1}, 0
    """)
    e(f"v_add_f32 v{P_CB1}, 1.0, v{P_CB1}\nv_lshlrev_b32 v{P_X}, 16, v{P_X}")

def post_addresses(e, cfg):
    WS = f"s[{S_WS}:{S_WS+3}]"
    e(f"""
    s_lshr_b32 s62, s60, 1
    s_mul_i32 s62, s62, 112
    s_and_b32 s63, s60, 1
    s_lshl_b32 s63, s63, 1
    s_add_u32 s62, s62, s63
    s_lshr_b32 s63, s3, 2
    s_add_u32 s62, s62, s63
    s_lshr_b32 s88, s60, 1
    s_mul_i32 s88, s88, {28*128}
    s_and_b32 s63, s60, 1
    s_lshl_b32 s63, s63, 1
    s_lshr_b32 s89, s3, 2
    s_add_u32 s63, s63, s89
    s_lshl_b32 s63, s63, 4
    s_add_u32 s88, s88, s63
    s_add_u32 s88, s88, {WS_ML}
    s_lshl_b32 s62, s62, 9
    s_and_b32 s63, s3, 3
    s_lshl_b32 s63, s63, 7
    s_add_u32 s62, s62, s63
    s_add_u32 s62, s62, {WS_PART}
    s_add_u32 s63, s62, 16384
    s_add_u32 s89, s62, 32768
    s_add_u32 s90, s62, 49152
    v_lshrrev_b32 v{T0}, 3, v{V_LANE}
    v_and_b32 v{T1}, 7, v{V_LANE}
    v_lshlrev_b32 v{T1}, 4, v{T1}
    v_lshl_add_u32 v{P_PV}, v{T0}, 11, v{T1}
    v_lshlrev_b32 v{P_MV}, 7, v{T0}
    v_lshrrev_b32 v{T0}, 4, v{V_LANE}
    v_and_b32 v{T1}, 15, v{V_LANE}
    v_lshlrev_b32 v{T1}, 4, v{T1}
    v_lshl_add_u32 v{P_XV}, v{T0}, 11, v{T1}
    s_lshl_b32 s91, s3, 8
    v_add_u32 v{P_XV}, s91, v{P_XV}
    v_lshrrev_b32 v{T0}, 2, v{V_LANE}
    v_and_b32 v{T1}, 3, v{V_LANE}
    v_lshlrev_b32 v{T1}, 4, v{T1}
    s_lshl_b32 s91, s81, 6
    v_add_u32 v{T1}, s91, v{T1}
    v_lshl_add_u32 v{P_FV}, v{T0}, 11, v{T1}
    s_lshl_b32 s8, s3, 10
    s_add_u32 s8, s8, {L_RP1}
    s_lshl_b32 s9, s60, 11
    s_lshl_b32 s91, s61, 10
    s_add_u32 s9, s9, s91
    s_add_u32 s9, s9, {WS_X1P}
    s_lshl_b32 s10, s3, 3
    s_add_u32 s10, s10, {L_STA2}
    s_lshl_b32 s11, s3, 9
    s_add_u32 s11, s11, {L_RGU}
    s_lshl_b32 s12, s81, 11
    s_lshl_b32 s91, s3, 8
    s_add_u32 s12, s12, s91
    s_add_u32 s12, s12, {WS_FFP}
    s_cmp_lt_u32 s81, 28
    s_cselect_b32 s12, s12, {OOB}
    s_mov_b32 s13, {WS_X1P}
    s_mov_b32 s17, {WS_X1P + 8192}
    s_mov_b32 s18, {WS_X1P + 16384}
    s_mov_b32 s19, {WS_X1P + 24576}
    s_mov_b32 s14, {WS_FFP}
    s_mov_b32 s15, {WS_FFP + 32768}
    """)

def u_stage(e, cfg):
    U1G, U2G, U1U, U2U = 2, 3, 7, 18
    e(f"""
    v_cvt_pk_bf16_f32 v{T0}, v{P_CB1}, v{P_CB1}
    v_cvt_pk_bf16_f32 v{T1}, v{P_SB}, v{P_SB}
    ds_write_b16 v{P_WH2}, v{T0} offset:64
    ds_write_b16 v{P_WH2}, v{T1} offset:192
    v_bfe_u32 v{T0}, v{V_LANE}, 1, 1
    v_lshl_add_u32 v{T0}, v{T0}, 7, v{P_A64R}
    ds_read_b128 v[{V_A}:{V_A+3}], v{T0} offset:64
    s_waitcnt lgkmcnt(0)
    """)
    for t in range(8):
        e(f"v_mfma_f32_16x16x32_bf16 v[{32+4*t}:{32+4*t+3}], v[{V_A}:{V_A+3}], v[{W2+4*t}:{W2+4*t+3}], 0")
    for t in range(8):
        e(f"v_mfma_f32_16x16x32_bf16 v[{64+4*t}:{64+4*t+3}], v[{V_A}:{V_A+3}], v[{W3+4*t}:{W3+4*t+3}], 0")
    e(f"s_mul_i32 s91, s3, 16384\ns_add_u32 s91, s91, {L_STG}\nv_lshl_add_u32 v{T0}, v{V_LANE}, 5, s91")
    for k, (D, r0) in enumerate(((32, 0), (32, 2), (64, 0), (64, 2))):
        for half in range(2):
            for t in range(4):
                tt = 4 * half + t
                e(f"v_add_f32_dpp v{28+t}, v{D+4*tt+r0+1}, v{D+4*tt+r0} row_shl:8 row_mask:0xf bank_mask:0xf")
            e(f"s_mov_b64 exec, 0xff\nds_write_b128 v{T0}, v[28:31] offset:{256*k + 16*half}\ns_mov_b64 exec, -1\ns_nop 1")
    e(f"v_lshlrev_b32 v{T0}, 2, v{V_LANE}\nv_add_u32 v{T0}, {L_STG}, v{T0}\nv_add_u32 v{T1}, 65536, v{T0}")
    e(f"v_mov_b32 v30, {L_STA2}\nv_mov_b32 v28, 0\nv_mov_b32 v29, 0\nds_write_b64 v30, v[28:29]\ns_waitcnt lgkmcnt(0)\ns_barrier")
    for k, U in enumerate((U1G, U2G, U1U, U2U)):
        for v in range(8):
            e(f"ds_read_b32 v{32+v}, v{T0} offset:{(16384*v + 256*k) % 65536}" if 16384*v + 256*k < 65536 else f"ds_read_b32 v{32+v}, v{T1} offset:{16384*v + 256*k - 65536}")
        if k == 0: pass
        e("s_waitcnt lgkmcnt(0)")
        e(f"v_add_f32 v{U}, v32, v33")
        for v in range(2, 8): e(f"v_add_f32 v{U}, v{U}, v{32+v}")

def down_transpose(e):
    UR = 44
    e(f"s_mul_i32 s91, s3, 16384\ns_add_u32 s91, s91, {L_STG}\nv_lshl_add_u32 v{T0}, v{V_LANE}, 4, s91")
    e.wait_vm("wd7")
    for ee in range(8): e(f"ds_read_b128 v[{UR+4*ee}:{UR+4*ee+3}], v{T0} offset:{8192 + ee*1024}")
    e("s_waitcnt lgkmcnt(0)")
    transpose_unit(e, UR, W4)

def post_chain(e, cfg):
    Z = 76
    WS = f"s[{S_WS}:{S_WS+3}]"
    U1G, U2G, U1U, U2U = 2, 3, 7, 18
    DT, ML = 28, ML_BASE
    for r in range(4): e(f"v_mov_b32 v{DT+12+r}, s{S_TAU}")
    sp = e.label("L_ml"); ok = e.label("L_mlok")
    e.wait_vm("ML3")
    check(e, T0, range(ML, ML + 16), T1)
    e(f"s_cbranch_vccz {ok}\n{sp}:\ns_sleep 4")
    ml_loads(e, False)
    e("s_waitcnt vmcnt(0)")
    check(e, T0, range(ML, ML + 16), T1)
    e(f"s_cbranch_vccz {ok}")
    spin_guard(e, sp)
    e(f"{ok}:")
    m = [ML + 4 * i for i in range(4)]
    e(f"""
    v_max3_f32 v{T0}, v{m[0]}, v{m[1]}, v{m[2]}
    v_max_f32 v{T0}, v{T0}, v{m[3]}
    v_max_f32_dpp v{T0}, v{T0}, v{T0} row_ror:8 row_mask:0xf bank_mask:0xf
    """)
    xrow(e, "v_max_f32", T0, T1, 16)
    xrow(e, "v_max_f32", T0, T1, 32)
    for i in range(4): e(f"v_sub_f32 v{m[i]}, v{m[i]}, v{T0}")
    for i in range(4): e(f"v_exp_f32 v{m[i]}, v{m[i]}")
    e(f"v_mul_f32 v{T2}, v{m[0]}, v{m[0]+1}")
    for i in range(1, 4): e(f"v_fmac_f32 v{T2}, v{m[i]}, v{m[i]+1}")
    e(f"v_add_f32_dpp v{T2}, v{T2}, v{T2} row_ror:8 row_mask:0xf bank_mask:0xf")
    xrow(e, "v_add_f32", T2, T1, 16)
    xrow(e, "v_add_f32", T2, T1, 32)
    e(f"v_rcp_f32 v{T2}, v{T2}")
    for i in range(4): e(f"v_mul_f32 v{m[i]}, v{m[i]}, v{T2}")
    e("s_waitcnt vmcnt(0)")
    e.vm = []
    sts(e, cfg, 5)
    sp = e.label("L_hopA"); ok = e.label("L_hopAok")
    e(f"{sp}:")
    for i, sb in enumerate(("s62", "s63", "s89")):
        e(f"buffer_load_dwordx4 v[{DT+4*i}:{DT+4*i+3}], v{P_PV}, {WS}, {sb} offen {cfg.LPOL}")
    e(f"""
    s_mov_b32 exec_hi, 0
    buffer_load_dwordx4 v[{DT+12}:{DT+15}], v{P_PV}, {WS}, s90 offen {cfg.LPOL}
    s_mov_b32 exec_hi, -1
    s_waitcnt vmcnt(0)
    """)
    check(e, T0, range(DT, DT + 16, 4))
    e(f"s_cbranch_vccz {ok}")
    if cfg.SLEEP_A: e(f"s_sleep {cfg.SLEEP_A}")
    spin_guard(e, sp)
    e(f"{ok}:")
    sts(e, cfg, 6)
    AC = 60
    for r in range(4): e(f"v_mul_f32 v{AC+r}, v{m[0]}, v{DT+r}")
    for i in range(1, 4):
        for r in range(4): e(f"v_fmac_f32 v{AC+r}, v{m[i]}, v{DT+4*i+r}")
    rs4(e, AC)
    e(f"""
    v_add_f32_dpp v{AC}, v{AC}, v{AC} row_ror:8 row_mask:0xf bank_mask:0xf
    v_cvt_pk_bf16_f32 v{AC}, v{AC}, v{AC}
    ds_write_b16 v{P_WLW1}, v{AC}
    ds_read_b128 v[{V_A}:{V_A+3}], v{P_A128R}
    v_lshl_add_u32 v{T0}, v{V_LANE}, 5, s8
    s_waitcnt lgkmcnt(0)
    """)
    DP = 32
    for cb in range(2):
        for t in range(8):
            d = DP + 4 * (8 * cb + t); b = W0 + 32 * cb + 4 * t
            e(f"v_mfma_f32_16x16x32_bf16 v[{d}:{d+3}], v[{V_A}:{V_A+3}], v[{b}:{b+3}], 0")
    e("s_mov_b64 exec, 0xffff")
    for cb in range(2):
        for u in range(4):
            d = DP + 4 * (8 * cb + 2 * u)
            e(f"ds_write2_b32 v{T0}, v{d}, v{d+4} offset0:{128*cb+2*u} offset1:{128*cb+2*u+1}")
    e(f"""
    s_mov_b64 exec, -1
    v_lshrrev_b32 v{T0}, 3, v{V_LANE}
    v_and_b32 v{T1}, 7, v{V_LANE}
    v_lshlrev_b32 v{T1}, 4, v{T1}
    v_lshl_add_u32 v{T0}, v{T0}, 10, v{T1}
    s_lshl_b32 s91, s3, 7
    v_add_u32 v{T0}, s91, v{T0}
    v_lshrrev_b32 v{T2}, 4, v{V_LANE}
    v_and_b32 v29, 1, v{T2}
    v_lshlrev_b32 v29, 3, v29
    v_lshrrev_b32 v{T2}, 1, v{T2}
    v_lshl_add_u32 v{T2}, v{T2}, 2, v29
    v_add3_u32 v{T2}, v{T2}, v{T1}, s91
    s_waitcnt lgkmcnt(0)
    s_barrier
    ds_read_b128 v[28:31], v{T0} offset:{L_RP1}
    s_waitcnt lgkmcnt(0)
    """)
    rs4(e, 28)
    e(f"v_add_f32_dpp v28, v28, v28 row_ror:8 row_mask:0xf bank_mask:0xf")
    tag(e, 28)
    store_mode(e, f"buffer_store_dword v28, v{T2}, {WS}, s9 offen {{pol}}")
    sts(e, cfg, 7)
    XD = 28
    XA, XB = W0, W0 + 16
    def xloads(R):
        for i, sb in enumerate(("s13", "s17", "s18", "s19")):
            e(f"buffer_load_dwordx4 v[{R+4*i}:{R+4*i+3}], v{P_XV}, {WS}, {sb} offen sc1")
    def xsum(R):
        for r in (0, 2):
            e(f"v_pk_add_f32 v[{R+r}:{R+r+1}], v[{R+r}:{R+r+1}], v[{R+4+r}:{R+5+r}]")
            e(f"v_pk_add_f32 v[{R+8+r}:{R+9+r}], v[{R+8+r}:{R+9+r}], v[{R+12+r}:{R+13+r}]")
        for r in (0, 2):
            e(f"v_pk_add_f32 v[{XD+r}:{XD+r+1}], v[{R+r}:{R+r+1}], v[{R+8+r}:{R+9+r}]")
    xloads(XA)
    if cfg.LATE_DOWN:
        down_transpose(e)
    for _ in range(cfg.DELAY // 64): e("s_nop 15")
    sp = e.label("L_hopB"); okA = e.label("L_hopBokA"); okB = e.label("L_hopBokB"); jn = e.label("L_hopBj")
    e(f"{sp}:")
    xloads(XB)
    e("s_waitcnt vmcnt(4)")
    check(e, T0, range(XA, XA + 16, 4))
    e(f"s_cbranch_vccz {okA}")
    xloads(XA)
    e("s_waitcnt vmcnt(4)")
    check(e, T0, range(XB, XB + 16, 4))
    e(f"s_cbranch_vccz {okB}")
    spin_guard(e, sp)
    e(f"{okB}:")
    xsum(XB)
    e(f"s_branch {jn}\n{okA}:")
    xsum(XA)
    e(f"{jn}:")
    e.vm = []
    sts(e, cfg, 8)
    rs4(e, XD)
    X1 = 44
    e(f"""
    v_fma_f32 v{X1}, v{P_GA}, v{XD}, v{P_X}
    v_mul_f32 v{T2}, v{X1}, v{P_CB1}
    v_mov_b32 v{T0}, v{X1}
    v_mul_f32 v{T1}, v{X1}, v{X1}
    v_cvt_pk_bf16_f32 v{T2}, v{T2}, v{T2}
    ds_write_b16 v{P_WH2}, v{T2} offset:64
    ds_read_b128 v[{V_A}:{V_A+3}], v{P_A64R} offset:64
    ds_write_b32 v{P_COL4}, v{X1} offset:{L_X1}
    v_permlane32_swap_b32 v{T0}, v{T1}
    v_add_f32 v{T0}, v{T0}, v{T1}
    """)
    xrow(e, "v_add_f32", T0, T1, 16)
    e("s_waitcnt lgkmcnt(1)")
    mf = [f"v_mfma_f32_16x16x32_bf16 v[{32+4*t}:{32+4*t+3}], v[{V_A}:{V_A+3}], v[{W2+4*t}:{W2+4*t+3}], 0" for t in range(8)] + \
         [f"v_mfma_f32_16x16x32_bf16 v[{64+4*t}:{64+4*t+3}], v[{V_A}:{V_A+3}], v[{W3+4*t}:{W3+4*t+3}], 0" for t in range(8)]
    for n, steps in enumerate((1, 2, 4, 8)):
        e(mf[2 * n]); e(mf[2 * n + 1])
        e(f"v_add_f32_dpp v{T0}, v{T0}, v{T0} row_ror:{steps} row_mask:0xf bank_mask:0xf")
    for n in range(8, 16): e(mf[n])
    e(f"""
    v_lshrrev_b32 v{T1}, 5, v{V_LANE}
    v_lshlrev_b32 v{T1}, 2, v{T1}
    s_mov_b32 exec_lo, 1
    s_mov_b32 exec_hi, 1
    ds_add_f32 v{T1}, v{T0} offset:{L_STA2}
    s_mov_b64 exec, -1
    v_lshl_add_u32 v{T0}, v{V_LANE}, 5, s11
    """)
    zsum64(e, 32, 32)
    zsum64(e, 64, 64)
    e(f"""
    s_mov_b64 exec, 0xff
    ds_write_b128 v{T0}, v[32:35]
    ds_write_b128 v{T0}, v[36:39] offset:16
    ds_write_b128 v{T0}, v[64:67] offset:256
    ds_write_b128 v{T0}, v[68:71] offset:272
    s_mov_b64 exec, -1
    v_lshlrev_b32 v{T0}, 2, v{V_LANE}
    v_add_u32 v{T0}, {L_RGU}, v{T0}
    v_mov_b32 v{T2}, 0
    s_waitcnt lgkmcnt(0)
    s_barrier
    """)
    SZ, GU = 28, 48
    e(f"ds_read_b64 v[{SZ}:{SZ+1}], v{T2} offset:{L_STA2}")
    for v in range(8):
        e(f"ds_read2st64_b32 v[{GU+2*v}:{GU+2*v+1}], v{T0} offset0:{2*v} offset1:{2*v+1}")
    e(f"ds_read_b32 v44, v{P_COLF4} offset:{L_X1}")
    e(f"v_lshlrev_b32 v{T1}, 1, v{V_LANE}\nv_add_u32 v{T1}, s16, v{T1}")
    e("s_waitcnt lgkmcnt(9)")
    e(f"""
    v_mul_f32 v{T0}, {f32(1/512)}, v{SZ}
    v_mul_f32 v{T2}, {f32(1/512)}, v{SZ+1}
    v_fma_f32 v{T2}, -v{T0}, v{T0}, v{T2}
    v_add_f32 v{T2}, {f32(1e-5)}, v{T2}
    v_rsq_f32 v{T2}, v{T2}
    s_waitcnt lgkmcnt(1)
    """)
    for v in range(0, 8, 2):
        e(f"v_pk_add_f32 v[{GU+2*v}:{GU+2*v+1}], v[{GU+2*v}:{GU+2*v+1}], v[{GU+2*v+2}:{GU+2*v+3}]")
    e(f"v_pk_add_f32 v[{GU}:{GU+1}], v[{GU}:{GU+1}], v[{GU+4}:{GU+5}]")
    e(f"v_pk_add_f32 v[{GU+8}:{GU+9}], v[{GU+8}:{GU+9}], v[{GU+12}:{GU+13}]")
    e(f"v_pk_add_f32 v[{GU}:{GU+1}], v[{GU}:{GU+1}], v[{GU+8}:{GU+9}]")
    e(f"""
    v_fma_f32 v{GU}, -v{T0}, v{U1G}, v{GU}
    v_fma_f32 v{GU+1}, -v{T0}, v{U1U}, v{GU+1}
    v_fma_f32 v{GU}, v{GU}, v{T2}, v{U2G}
    v_fma_f32 v{GU+1}, v{GU+1}, v{T2}, v{U2U}
    v_mul_f32 v{T0}, {f32(-LOG2E)}, v{GU}
    v_exp_f32 v{T0}, v{T0}
    v_mul_f32 v{GU}, v{GU}, v{GU+1}
    v_add_f32 v{T0}, 1.0, v{T0}
    v_rcp_f32 v{T0}, v{T0}
    v_mul_f32 v{T0}, v{GU}, v{T0}
    v_cvt_pk_bf16_f32 v{T0}, v{T0}, v{T0}
    ds_write_b16 v{T1}, v{T0} offset:320
    ds_read_b128 v[{V_A}:{V_A+3}], v{P_A64R} offset:320
    v_lshrrev_b32 v{T0}, 3, v{V_LANE}
    v_and_b32 v{T1}, 7, v{V_LANE}
    v_lshlrev_b32 v{T1}, 5, v{T1}
    v_lshl_add_u32 v{T0}, v{T0}, 4, v{T1}
    s_waitcnt lgkmcnt(0)
    """)
    DD = 64
    for t in range(8):
        e(f"v_mfma_f32_16x16x32_bf16 v[{DD+4*t}:{DD+4*t+3}], v[{V_A}:{V_A+3}], v[{W4+4*t}:{W4+4*t+3}], 0")
    zsum64(e, DD, DD)
    for r in range(4):
        e(f"v_mov_b32_dpp v{DD+r}, v{DD+4+r} row_shr:8 row_mask:0xf bank_mask:0xc")
    for r in range(4): tag(e, DD + r)
    e("s_mov_b64 exec, 0xffff")
    store_mode(e, f"buffer_store_dwordx4 v[{DD}:{DD+3}], v{T0}, {WS}, s12 offen {{pol}}")
    e("s_mov_b64 exec, -1")
    e("L_final:")
    e("s_waitcnt lgkmcnt(0)")
    sts(e, cfg, 9)
    lab_end = e.label("L_svc_end")
    e(f"s_cmp_lg_u32 s3, 0\ns_cbranch_scc1 {lab_end}")
    FD = 28
    FA, FB = W1, W1 + 8
    for R in (FA, FB):
        for r in range(4): e(f"v_mov_b32 v{R+4+r}, s{S_TAU}")
    def floads(R):
        e(f"""
        buffer_load_dwordx4 v[{R}:{R+3}], v{P_FV}, {WS}, s14 offen sc1
        s_mov_b32 exec_hi, 0xffff
        buffer_load_dwordx4 v[{R+4}:{R+7}], v{P_FV}, {WS}, s15 offen sc1
        s_mov_b32 exec_hi, -1
        """)
    def fsum(R):
        for r in (0, 2): e(f"v_pk_add_f32 v[{FD+r}:{FD+r+1}], v[{R+r}:{R+r+1}], v[{R+4+r}:{R+5+r}]")
    sp = e.label("L_hopC"); okA = e.label("L_hopCokA"); okB = e.label("L_hopCokB"); jn = e.label("L_hopCj")
    floads(FA)
    e(f"{sp}:")
    floads(FB)
    e("s_waitcnt vmcnt(2)")
    check(e, T0, range(FA, FA + 8, 4))
    e(f"s_cbranch_vccz {okA}")
    floads(FA)
    e("s_waitcnt vmcnt(2)")
    check(e, T0, range(FB, FB + 8, 4))
    e(f"s_cbranch_vccz {okB}")
    spin_guard(e, sp)
    e(f"{okB}:")
    fsum(FB)
    e(f"s_branch {jn}\n{okA}:")
    fsum(FA)
    e(f"{jn}:")
    sts(e, cfg, 10)
    rs4(e, FD)
    e(f"""
    v_add_f32_dpp v{FD}, v{FD}, v{FD} row_ror:4 row_mask:0xf bank_mask:0xf
    v_add_f32_dpp v{FD}, v{FD}, v{FD} row_ror:8 row_mask:0xf bank_mask:0xf
    v_fma_f32 v{FD}, v{P_GB}, v{FD}, v44
    v_cvt_pk_bf16_f32 v{FD}, v{FD}, v{FD}
    buffer_store_short v{FD}, v{P_OUTV}, s[{S_OUT}:{S_OUT+3}], 0 offen
    """)
    sts(e, cfg, 11)
    if getattr(cfg, "DBGT", 0):
        e(f"""
        s_waitcnt vmcnt(0)
        s_memrealtime s[96:97]
        s_waitcnt lgkmcnt(0)
        s_sub_u32 s96, s96, s101
        v_mov_b32 v4, s96
        s_lshl_b32 s91, s81, 2
        v_mov_b32 v5, s91
        v_cmp_gt_u32 vcc, 32, v5
        s_mov_b64 exec, 1
        s_cmp_ge_u32 s81, 6
        s_cbranch_scc1 {lab_end}
        buffer_store_dword v4, v5, s[{S_DBG}:{S_DBG+3}], 0 offen sc1
        """)
    e(f"{lab_end}:")
    if cfg.TS:
        e(f"""
        s_lshl_b32 s91, s81, 3
        s_add_u32 s91, s91, s3
        s_lshl_b32 s91, s91, 7
        s_add_u32 s91, s91, {WS_TS + 0x10000}
        v_lshlrev_b32 v{T0}, 2, v{V_LANE}
        s_mov_b32 exec_hi, 0
        buffer_store_dword v0, v{T0}, {WS}, s91 offen
        """)
    e("s_endpgm")
```

```python
from kern import *

V_LANE, V_KOFF, V_VOFF, V_QOFF, V_FO2, V_T0, V_T1 = 1, 2, 3, 4, 5, 6, 7
V_Q = 8
V_S = 12
V_M, V_L = 22, 23
V_D = [24, 40]
V_O = 56
V_STG = 88
V_POP = 104
V_KV = 108
NBLK = 37
LDS_OBUF = 0
LDS_MLW = 16384
LDS_FW = 16384 + 256
LDS_CNT = 16384 + 384
LDS_VL = 16384 + 512
def att_lds(cfg): return LDS_VL + 8 * cfg.NVL * 1024

def kv(i): return V_KV + 4 * i

def attention(e, cfg):
    e(f"""
    s_cmp_gt_u32 s80, {cfg.SVC_X}
    s_cselect_b32 s82, 1, 0
    s_sub_u32 s82, s80, s82
    s_lshl_b32 s82, s82, 5
    s_add_u32 s82, s82, s81
    s_mov_b32 s83, {(2**32 + 27) // 28}
    s_mul_hi_u32 s84, s82, s83
    s_mul_i32 s85, s84, 28
    s_sub_u32 s85, s82, s85
    s_lshl_b32 s86, s85, 3
    s_add_u32 s86, s86, s3
    s_lshl_b32 s87, s86, 8
    s_mov_b32 s83, {(2**32 + 6) // 7}
    s_mul_hi_u32 s88, s87, s83
    s_add_u32 s87, s87, 256
    s_mul_hi_u32 s89, s87, s83
    s_sub_u32 s89, s89, s88
    s_lshl_b32 s52, s88, 10
    s_lshl_b32 s90, s84, 23
    v_bfe_u32 v{V_KOFF}, v{V_LANE}, 2, 2
    v_lshlrev_b32 v{V_KOFF}, 8, v{V_KOFF}
    v_lshrrev_b32 v{V_T0}, 4, v{V_LANE}
    v_lshlrev_b32 v{V_T0}, 6, v{V_T0}
    v_and_b32 v{V_T1}, 3, v{V_LANE}
    v_lshlrev_b32 v{V_VOFF}, 4, v{V_T1}
    v_add3_u32 v{V_KOFF}, v{V_KOFF}, v{V_T0}, v{V_VOFF}
    """)
    e("s_waitcnt lgkmcnt(0)")
    tag_setup(e)
    srd(e, 36, 10, 11, 0x800000, add="s90")
    ts(e, cfg, 60)
    D = cfg.D_ATT
    DE = cfg.D_ATT_EVEN
    def throttle(dodd, deven):
        def nwait(d):
            big = [i for i, t_ in enumerate(e.vm) if not (t_ and t_.startswith("Q"))]
            if len(big) < d: return None
            idx = big[len(big) - d]
            return len(e.vm) - 1 - idx
        if deven < dodd:
            n = nwait(deven)
            if n is not None:
                lab = e.label("L_th")
                e(f"s_cbranch_vccz {lab}\ns_waitcnt vmcnt({n})\n{lab}:")
        n = nwait(dodd)
        if n is not None: e.wait_vm_n(n)
    def set_parity():
        e("s_getreg_b32 s51, hwreg(HW_REG_XCC_ID)\ns_bitcmp1_b32 s51, 0\ns_cselect_b64 vcc, 0, -1")
    cur = [None]
    def kload(i):
        hi = (i // 4) * 4096
        if i == NBLK - 1:
            e.vmem(f"buffer_load_dwordx4 v[{kv(i)}:{kv(i)+3}], v{V_KOFF}, s[36:39], s54 offen {cfg.KPOL}", f"K{i}")
            return
        if cur[0] != hi:
            if hi == 0: e("s_mov_b32 s53, s52")
            else: e("s_addk_i32 s53, 0x1000")
            cur[0] = hi
        e.vmem(f"buffer_load_dwordx4 v[{kv(i)}:{kv(i)+3}], v{V_KOFF}, s[36:39], s53 offen offset:{(i%4)*1024} {cfg.KPOL}", f"K{i}")
    D0 = cfg.BURST
    for i in range(D0):
        kload(i)
    e(f"v_mov_b32 v{V_S}, {LDS_CNT}\nv_mov_b32 v{V_S+1}, 0\nds_write_b32 v{V_S}, v{V_S+1}\ns_waitcnt lgkmcnt(0)\ns_barrier")
    srd(e, 40, 12, 13, 0x800000, add="s90")
    srd(e, 44, 34, 35, WS_SIZE)
    e(f"""
    s_add_u32 s54, s52, {(NBLK-1)*1024}
    s_cmp_eq_u32 s89, {NBLK}
    s_cselect_b32 s54, s54, {OOB}
    s_cselect_b32 s56, 0, 0xff800000
    s_lshl_b32 s55, s84, 11
    s_add_u32 s55, s55, {WS_Q}
    s_mov_b32 s57, {f32(SCALE_C)}
    s_mul_i32 s58, s84, 28
    s_add_u32 s58, s58, s85
    s_lshl_b32 s59, s58, 7
    s_add_u32 s59, s59, {WS_ML}
    s_lshl_b32 s58, s58, 11
    s_add_u32 s58, s58, {WS_PART}
    s_mov_b32 s94, 0x05040100
    s_mov_b32 s95, 0x07060302
    s_mov_b32 s99, {cfg.SPIN}
    v_lshlrev_b32 v{V_QOFF}, 9, v{V_T1}
    v_lshl_add_u32 v{V_QOFF}, v{V_T0}, 1, v{V_QOFF}
    v_bfe_u32 v{V_T0}, v{V_LANE}, 2, 2
    v_lshl_add_u32 v{V_QOFF}, v{V_T0}, 5, v{V_QOFF}
    v_lshlrev_b32 v{V_VOFF}, 4, v{V_LANE}
    v_mov_b32 v{V_S+9}, 0xff800000
    """)
    Q_AT = cfg.Q_AT
    NVL = cfg.NVL
    QR = V_D[0]
    def qloads(track):
        for kb in range(4):
            if kb: e(f"s_add_u32 s50, s55, {16384*kb}")
            so = "s50" if kb else "s55"
            for k in range(2):
                t = f"buffer_load_dwordx4 v[{QR+8*kb+4*k}:{QR+8*kb+4*k+3}], v{V_QOFF}, s[44:47], {so} offen offset:{16*k} sc1"
                if track: e.vmem(t, f"Q{2*kb+k}")
                else: e(t)
    e(f"s_mul_i32 s48, s3, {NVL*1024}\ns_add_u32 s48, s48, {LDS_VL}")
    def vdma(k):
        if k % 4 == 0:
            e(f"s_add_u32 s49, s52, {k*1024}\ns_add_u32 s50, s48, {k*1024}\ns_mov_b32 m0, s50\ns_nop 0")
        e.vmem(f"buffer_load_dwordx4 v{V_VOFF}, s[40:43], s49 offen offset:{(k%4)*1024} {cfg.KPOL} lds", f"L{k}")
    set_parity()
    for i in range(D0, NBLK + NVL):
        if i == Q_AT:
            throttle(D, DE)
            qloads(True)
        if i < cfg.RAMP_N: e.wait_vm_n(cfg.RAMP_D - 1)
        throttle(D, DE)
        if i < NBLK: kload(i)
        else: vdma(i - NBLK)
        if cfg.TS and getattr(cfg, "TSK", 0):
            if i == 8: ts(e, cfg, 67)
            if i == 20: ts(e, cfg, 68)
            if i == 36: ts(e, cfg, 69)
    ts(e, cfg, 61)
    for _ in range(getattr(cfg, "DELAY_Q", 0) // 64): e("s_nop 15")
    e("s_waitcnt lgkmcnt(0)")
    tag_finish(e)
    e.wait_vm("Q7")
    ok = e.label("L_qok"); sp = e.label("L_qspin")
    check(e, V_T0, range(QR, QR + 32, 4), V_T1)
    e(f"s_cbranch_vccz {ok}\n{sp}:\ns_sleep {cfg.QSLEEP}")
    qloads(False)
    e("s_waitcnt vmcnt(0)")
    check(e, V_T0, range(QR, QR + 32, 4), V_T1)
    e(f"s_cbranch_vccz {ok}")
    spin_guard(e, sp)
    e(f"{ok}:")
    for r in range(0, 8, 2):
        e(f"v_pk_add_f32 v[{QR+r}:{QR+r+1}], v[{QR+r}:{QR+r+1}], v[{QR+8+r}:{QR+9+r}]")
        e(f"v_pk_add_f32 v[{QR+16+r}:{QR+17+r}], v[{QR+16+r}:{QR+17+r}], v[{QR+24+r}:{QR+25+r}]")
    for r in range(0, 8, 2):
        e(f"v_pk_add_f32 v[{QR+r}:{QR+r+1}], v[{QR+r}:{QR+r+1}], v[{QR+16+r}:{QR+17+r}]")
    for k in range(4):
        e(f"v_cvt_pk_bf16_f32 v{V_Q+k}, v{QR+2*k}, v{QR+2*k+1}")
    ts(e, cfg, 62)
    curv = [None]
    def vload(i):
        hi = (i // 4) * 4096
        if i == NBLK - 1:
            e.vmem(f"buffer_load_dwordx4 v[{kv(i)}:{kv(i)+3}], v{V_VOFF}, s[40:43], s54 offen {cfg.KPOL}", f"V{i}")
            return
        if curv[0] != hi:
            if hi == 0: e("s_mov_b32 s53, s52")
            else: e(f"s_add_u32 s53, s52, {hi}")
            curv[0] = hi
        e.vmem(f"buffer_load_dwordx4 v[{kv(i)}:{kv(i)+3}], v{V_VOFF}, s[40:43], s53 offen offset:{(i%4)*1024} {cfg.KPOL}", f"V{i}")
    def tile_blocks(T): return list(range(4 * T, min(4 * T + 4, NBLK)))
    def reduce_tile(T, par):
        Db = V_D[par]
        S = V_S + T
        for t, blk in enumerate(tile_blocks(T)):
            for b in range(4):
                rot = (4 * (t - b)) % 16
                ctl = f"row_ror:{rot}" if rot else "quad_perm:[0,1,2,3]"
                if b == 0:
                    e(f"v_mov_b32_dpp v{S}, v{Db + 4*t + b} {ctl} row_mask:0xf bank_mask:0x{1 << t:x}")
                else:
                    e(f"v_add_f32_dpp v{S}, v{Db + 4*t + b}, v{S} {ctl} row_mask:0xf bank_mask:0x{1 << t:x}")
    NT = 10
    DV = cfg.D_V
    DVE = cfg.D_V_EVEN
    set_parity()
    NVT = NVL // 4
    order = list(range(NVT, NT)) + list(range(NVT))
    vnext = [NVL]
    def v_issue_upto(n):
        while vnext[0] < min(n, NBLK):
            throttle(DV, DVE)
            vload(vnext[0]); vnext[0] += 1
    e(f"v_lshl_add_u32 v{V_FO2}, v{V_LANE}, 4, s48")
    prev = None
    for n, T in enumerate(order):
        bl = tile_blocks(T)
        e.wait_vm(f"K{bl[-1]}")
        for t, blk in enumerate(bl):
            Dd = V_D[n & 1] + 4 * t
            e(f"v_mfma_f32_16x16x32_bf16 v[{Dd}:{Dd+3}], v[{kv(blk)}:{kv(blk)+3}], v[{V_Q}:{V_Q+3}], 0")
        if prev is not None: reduce_tile(prev, (n - 1) & 1)
        if n < cfg.V_EARLY_TILES and T >= NVT:
            for blk in bl:
                if blk == vnext[0]:
                    vload(blk); vnext[0] += 1
        if T < NVT:
            e.wait_vm(f"L{bl[-1]}")
            for blk in bl:
                e(f"ds_read_b128 v[{kv(blk)}:{kv(blk)+3}], v{V_FO2} offset:{blk*1024}")
        prev = T
    reduce_tile(prev, (NT - 1) & 1)
    e(f"v_add_f32 v{V_S+9}, s56, v{V_S+9}")
    ts(e, cfg, 63)
    e(f"v_max3_f32 v{V_M}, v{V_S}, v{V_S+1}, v{V_S+2}")
    for k in range(3, 9, 2):
        e(f"v_max3_f32 v{V_M}, v{V_M}, v{V_S+k}, v{V_S+k+1}")
    e(f"v_max_f32 v{V_M}, v{V_M}, v{V_S+9}")
    allreduce16(e, "v_max_f32", V_M, steps=(4, 8))
    xrow(e, "v_max_f32", V_M, V_T0, 16)
    xrow(e, "v_max_f32", V_M, V_T0, 32)
    e(f"v_mul_f32 v{V_M}, s57, v{V_M}")
    for T in range(NT):
        e(f"v_fma_f32 v{V_S+T}, v{V_S+T}, s57, -v{V_M}")
    for T in range(NT):
        e(f"v_exp_f32 v{V_S+T}, v{V_S+T}")
    v_issue_upto(vnext[0] + 2)
    e(f"v_add_f32 v{V_L}, v{V_S}, v{V_S+1}")
    for T in range(2, NT):
        e(f"v_add_f32 v{V_L}, v{V_L}, v{V_S+T}")
    for g in range(5):
        e(f"v_cvt_pk_bf16_f32 v{V_S+2*g}, v{V_S+2*g}, v{V_S+2*g+1}")
    allreduce16(e, "v_add_f32", V_L, steps=(4, 8))
    xrow(e, "v_add_f32", V_L, V_T0, 16)
    xrow(e, "v_add_f32", V_L, V_T0, 32)
    lab = e.label("L_mlpub")
    e("s_mov_b32 s74, 0")
    e(f"""
    s_lshl_b32 s91, s3, 5
    v_lshlrev_b32 v{V_T0}, 3, v{V_LANE}
    v_add_u32 v{V_T0}, s91, v{V_T0}
    s_mov_b64 exec, 0xf
    ds_write_b64 v{V_T0}, v[{V_M}:{V_M+1}] offset:{LDS_MLW}
    s_mov_b64 exec, 1
    v_mov_b32 v{V_T0}, {LDS_CNT}
    v_mov_b32 v{V_T1}, 1
    s_waitcnt lgkmcnt(0)
    ds_add_rtn_u32 v30, v{V_T0}, v{V_T1}
    s_waitcnt lgkmcnt(0)
    v_readfirstlane_b32 s91, v30
    s_mov_b64 exec, -1
    s_cmp_lg_u32 s91, 7
    s_cbranch_scc1 {lab}
    v_and_b32 v{V_T0}, 31, v{V_LANE}
    v_lshlrev_b32 v{V_T1}, 3, v{V_T0}
    ds_read_b64 v[30:31], v{V_T1} offset:{LDS_MLW}
    v_lshlrev_b32 v{V_T0}, 2, v{V_T0}
    s_waitcnt lgkmcnt(0)
    v_mov_b32 v36, v30
    """)
    allreduce16(e, "v_max_f32", 36, steps=(4, 8))
    xrow(e, "v_max_f32", 36, 32, 16)
    tag(e, 36)
    e(f"""
    v_sub_f32 v30, v30, v36
    v_exp_f32 v30, v30
    v_mul_f32 v37, v30, v31
    ds_write_b32 v{V_T0}, v30 offset:{LDS_FW}
    """)
    allreduce16(e, "v_add_f32", 37, steps=(4, 8))
    xrow(e, "v_add_f32", 37, 32, 16)
    tag(e, 37)
    e(f"""
    v_mov_b32 v38, v36
    v_mov_b32 v39, v37
    v_and_b32 v{V_T0}, 3, v{V_LANE}
    v_lshlrev_b32 v{V_T0}, 4, v{V_T0}
    v_bfe_u32 v{V_T1}, v{V_LANE}, 2, 1
    v_lshl_add_u32 v40, v{V_T1}, 6, v{V_T0}
    """)
    if cfg.ML_DEFER:
        e(f"s_mov_b32 s91, 1\ns_mov_b32 s74, 1\n{lab}:")
        e("s_cmp_eq_u32 s93, 1\ns_cselect_b32 s93, 1, 0") if False else None
    else:
        e(f"""
        s_mov_b64 exec, 0xff
        buffer_store_dwordx4 v[36:39], v40, s[44:47], s59 offen sc1
        s_mov_b64 exec, -1
        {lab}:
        """)
    A0, AF, AP, AW0, AW1 = 24, 25, 26, 27, 28
    e(f"""
    v_lshrrev_b32 v{V_T0}, 2, v{V_LANE}
    s_lshl_b32 s91, s3, 4
    v_add_u32 v{V_T0}, s91, v{V_T0}
    v_lshlrev_b32 v{V_T0}, 4, v{V_T0}
    v_and_b32 v{V_T1}, 3, v{V_LANE}
    v_lshl_add_u32 v{A0}, v{V_T1}, 12, v{V_T0}
    v_cmp_eq_u32 s[92:93], 0, v{V_T1}
    v_mov_b32 v{AP}, {OOB}
    v_cndmask_b32 v{AP}, v{AP}, v{V_T0}, s[92:93]
    s_lshr_b32 s91, s3, 1
    s_lshl_b32 s91, s91, 2
    s_add_u32 s91, s91, {LDS_FW}
    v_lshl_add_u32 v{AF}, v{V_T1}, 5, s91
    s_lshl_b32 s91, s3, 11
    v_lshl_add_u32 v{AW0}, v{V_LANE}, 5, s91
    v_add_u32 v{AW1}, 1024, v{AW0}
    """)
    if getattr(cfg, "PRETOUCH", 0):
        e(f"s_add_u32 s91, s{S_TAU}, 128\nv_mov_b32 v32, s91\nv_mov_b32 v33, s91\nv_mov_b32 v34, s91\nv_mov_b32 v35, s91")
        e.vmem(f"buffer_store_dwordx4 v[32:35], v{AP}, s[44:47], s58 offen sc1", "PT")
    for g in range(5):
        last_blk = tile_blocks(min(2 * g + 1, NT - 1))[-1]
        if last_blk < NVL:
            v_issue_upto(vnext[0] + cfg.V_PER_LDS_GROUP)
            e("s_waitcnt lgkmcnt(0)")
        else:
            v_issue_upto(last_blk + 1 + DV)
            if cfg.ML_DEFER and g == cfg.ML_DEFER:
                labm = e.label("L_mlst")
                e(f"""
                s_cmp_lg_u32 s74, 1
                s_cbranch_scc1 {labm}
                s_mov_b64 exec, 0xff
                buffer_store_dwordx4 v[36:39], v40, s[44:47], s59 offen sc1
                s_mov_b64 exec, -1
                {labm}:
                """)
            e.wait_vm(f"V{last_blk}")
        X = V_S + 2 * g
        e(f"v_mov_b32 v{V_POP}, v{X}")
        for m in range(1, 4):
            e(f"v_mov_b32_dpp v{V_POP+m}, v{X} row_shl:{4*m} row_mask:0xf bank_mask:0xf")
        for j in range(4):
            st = V_STG + 8 * (j & 1)
            for m in range(4):
                x = kv(8 * g + m) + j
                yb = 8 * g + 4 + m
                y = (kv(yb) if yb < NBLK else kv(8 * g + m)) + j
                e(f"v_perm_b32 v{st + m}, v{y}, v{x}, s94")
                e(f"v_perm_b32 v{st + 4 + m}, v{y}, v{x}, s95")
            for q in range(2):
                O = V_O + 4 * (2 * j + q)
                C = "0" if g == 0 else f"v[{O}:{O+3}]"
                e(f"v_mfma_f32_16x16x32_bf16 v[{O}:{O+3}], v[{V_POP}:{V_POP+3}], v[{st+4*q}:{st+4*q+3}], {C}")
    ts(e, cfg, 64)
    for _ in range(getattr(cfg, "DELAY_ATT", 0) // 64): e("s_nop 15")
    e("s_mov_b64 exec, 0xffff")
    for u in range(4):
        for r in range(4):
            a = AW0 if r < 2 else AW1
            o0 = (r & 1) * 128 + 2 * u
            e(f"ds_write2_b32 v{a}, v{V_O + 4*(2*u) + r}, v{V_O + 4*(2*u+1) + r} offset0:{o0} offset1:{o0+1}")
    e(f"""
    s_mov_b64 exec, -1
    s_waitcnt lgkmcnt(0)
    s_barrier
    ds_read2_b32 v[30:31], v{AF} offset0:0 offset1:4
    ds_read_b128 v[36:39], v{A0}
    ds_read_b128 v[40:43], v{A0} offset:2048
    s_waitcnt lgkmcnt(1)
    """)
    for r in range(4):
        e(f"v_mul_f32 v{36+r}, v30, v{36+r}")
    e("s_waitcnt lgkmcnt(0)")
    for r in range(4):
        e(f"v_fmac_f32 v{36+r}, v31, v{40+r}")
    for qp in ("[1,0,3,2]", "[2,3,0,1]"):
        for r in (36, 37, 38, 39):
            e(f"v_add_f32_dpp v{r}, v{r}, v{r} quad_perm:{qp} row_mask:0xf bank_mask:0xf")
    for r in (36, 37, 38, 39):
        tag(e, r)
    e.vmem(f"buffer_store_dwordx4 v[36:39], v{AP}, s[44:47], s58 offen {cfg.PPOL}", "PS")
    ts(e, cfg, 65)
    if getattr(cfg, "DBGT", 0):
        lab = e.label("L_dbgt")
        e(f"""
        s_cmp_lg_u32 s3, 0
        s_cbranch_scc1 {lab}
        s_cmp_lg_u32 s81, 31
        s_cbranch_scc1 {lab}
        s_waitcnt vmcnt(0)
        s_memrealtime s[96:97]
        s_waitcnt lgkmcnt(0)
        s_sub_u32 s96, s96, s101
        v_mov_b32 v4, s96
        s_add_u32 s91, s80, 6
        s_lshl_b32 s91, s91, 2
        v_mov_b32 v5, s91
        s_mov_b32 s48, s32
        s_mov_b32 s49, s33
        s_mov_b32 s50, 256
        s_mov_b32 s51, 0x20000
        s_mov_b64 exec, 1
        buffer_store_dword v4, v5, s[48:51], 0 offen sc1
        {lab}:
        """)
    if cfg.TS:
        e.wait_vm_all()
        ts(e, cfg, 66)
        e(f"""
        s_lshl_b32 s91, s2, 3
        s_add_u32 s91, s91, s3
        s_lshl_b32 s91, s91, 5
        s_add_u32 s91, s91, {WS_TS}
        v_mov_b32 v6, {OOB}
        v_cmp_eq_u32 vcc, 0, v{V_LANE}
        v_cndmask_b32 v6, v6, 0, vcc
        """)
        for k in range(7): e(f"v_mov_b32 v{36+k}, s{60+k}")
        e("v_mov_b32 v43, s89")
        if getattr(cfg, "TSK", 0):
            e("v_mov_b32 v41, s67\nv_mov_b32 v42, s68\nv_mov_b32 v43, s69")
            if getattr(cfg, "TSE", 0): e("v_mov_b32 v41, s70")
        e("buffer_store_dwordx4 v[36:39], v6, s[44:47], s91 offen")
        e("buffer_store_dwordx4 v[40:43], v6, s[44:47], s91 offen offset:16")
    e("s_endpgm")
```

```python
from kern import *

V_LANE, V_KOFF, V_VOFF, V_QOFF, V_FO2, V_T0, V_T1 = 1, 2, 3, 4, 5, 6, 7
V_Q = 8
V_S = 12
V_M, V_L = 22, 23
V_D = [24, 40]
V_O = 56
V_STG = 88
V_POP = 104
V_KV = 108
NBLK = 37
LDS_OBUF = 0
LDS_MLW = 16384
LDS_FW = 16384 + 256
LDS_CNT = 16384 + 384
LDS_VL = 16384 + 512
def att_lds(cfg): return LDS_VL + 8 * cfg.NVL * 1024

def kv(i): return V_KV + 4 * i

def attention(e, cfg):
    e(f"""
    s_cmp_gt_u32 s80, {cfg.SVC_X}
    s_cselect_b32 s82, 1, 0
    s_sub_u32 s82, s80, s82
    s_lshl_b32 s82, s82, 5
    s_add_u32 s82, s82, s81
    s_mov_b32 s83, {(2**32 + 27) // 28}
    s_mul_hi_u32 s84, s82, s83
    s_mul_i32 s85, s84, 28
    s_sub_u32 s85, s82, s85
    s_lshl_b32 s86, s85, 3
    s_add_u32 s86, s86, s3
    s_lshl_b32 s87, s86, 8
    s_mov_b32 s83, {(2**32 + 6) // 7}
    s_mul_hi_u32 s88, s87, s83
    s_add_u32 s87, s87, 256
    s_mul_hi_u32 s89, s87, s83
    s_sub_u32 s89, s89, s88
    s_lshl_b32 s52, s88, 10
    s_lshl_b32 s90, s84, 23
    v_bfe_u32 v{V_KOFF}, v{V_LANE}, 2, 2
    v_lshlrev_b32 v{V_KOFF}, 8, v{V_KOFF}
    v_lshrrev_b32 v{V_T0}, 4, v{V_LANE}
    v_lshlrev_b32 v{V_T0}, 6, v{V_T0}
    v_and_b32 v{V_T1}, 3, v{V_LANE}
    v_lshlrev_b32 v{V_VOFF}, 4, v{V_T1}
    v_add3_u32 v{V_KOFF}, v{V_KOFF}, v{V_T0}, v{V_VOFF}
    """)
    e("s_waitcnt lgkmcnt(0)")
    tag_setup(e)
    srd(e, 36, 10, 11, 0x800000, add="s90")
    ts(e, cfg, 60)
    D = cfg.D_ATT
    DE = cfg.D_ATT_EVEN
    def throttle(dodd, deven):
        def nwait(d):
            big = [i for i, t_ in enumerate(e.vm) if not (t_ and t_.startswith("Q"))]
            if len(big) < d: return None
            idx = big[len(big) - d]
            return len(e.vm) - 1 - idx
        if deven < dodd:
            n = nwait(deven)
            if n is not None:
                lab = e.label("L_th")
                e(f"s_cbranch_vccz {lab}\ns_waitcnt vmcnt({n})\n{lab}:")
        n = nwait(dodd)
        if n is not None: e.wait_vm_n(n)
    def set_parity():
        e("s_getreg_b32 s51, hwreg(HW_REG_XCC_ID)\ns_bitcmp1_b32 s51, 0\ns_cselect_b64 vcc, 0, -1")
    cur = [None]
    def kload(i):
        hi = (i // 4) * 4096
        if i == NBLK - 1:
            e.vmem(f"buffer_load_dwordx4 v[{kv(i)}:{kv(i)+3}], v{V_KOFF}, s[36:39], s54 offen {cfg.KPOL}", f"K{i}")
            return
        if cur[0] != hi:
            if hi == 0: e("s_mov_b32 s53, s52")
            else: e("s_addk_i32 s53, 0x1000")
            cur[0] = hi
        e.vmem(f"buffer_load_dwordx4 v[{kv(i)}:{kv(i)+3}], v{V_KOFF}, s[36:39], s53 offen offset:{(i%4)*1024} {cfg.KPOL}", f"K{i}")
    D0 = cfg.BURST
    for i in range(D0):
        kload(i)
    e(f"v_mov_b32 v{V_S}, {LDS_CNT}\nv_mov_b32 v{V_S+2}, 0\nv_mov_b32 v{V_S+3}, 0\nds_write_b64 v{V_S}, v[{V_S+2}:{V_S+3}]\nds_write_b64 v{V_S}, v[{V_S+2}:{V_S+3}] offset:8\ns_waitcnt lgkmcnt(0)\ns_barrier")
    srd(e, 40, 12, 13, 0x800000, add="s90")
    srd(e, 44, 34, 35, WS_SIZE)
    e(f"""
    s_add_u32 s54, s52, {(NBLK-1)*1024}
    s_cmp_eq_u32 s89, {NBLK}
    s_cselect_b32 s54, s54, {OOB}
    s_cselect_b32 s56, 0, 0xff800000
    s_lshl_b32 s55, s84, 11
    s_add_u32 s55, s55, {WS_Q}
    s_mov_b32 s57, {f32(SCALE_C)}
    s_mul_i32 s58, s84, 28
    s_add_u32 s58, s58, s85
    s_lshl_b32 s59, s58, 7
    s_add_u32 s59, s59, {WS_ML}
    s_lshl_b32 s58, s58, 11
    s_add_u32 s58, s58, {WS_PART}
    s_mov_b32 s94, 0x05040100
    s_mov_b32 s95, 0x07060302
    s_mov_b32 s99, {cfg.SPIN}
    v_lshlrev_b32 v{V_QOFF}, 9, v{V_T1}
    v_lshl_add_u32 v{V_QOFF}, v{V_T0}, 1, v{V_QOFF}
    v_bfe_u32 v{V_T0}, v{V_LANE}, 2, 2
    v_lshl_add_u32 v{V_QOFF}, v{V_T0}, 5, v{V_QOFF}
    v_lshlrev_b32 v{V_VOFF}, 4, v{V_LANE}
    v_mov_b32 v{V_S+9}, 0xff800000
    """)
    Q_AT = cfg.Q_AT
    NVL = cfg.NVL
    QR = V_D[0]
    def qloads(track):
        for kb in range(4):
            if kb: e(f"s_add_u32 s50, s55, {16384*kb}")
            so = "s50" if kb else "s55"
            for k in range(2):
                t = f"buffer_load_dwordx4 v[{QR+8*kb+4*k}:{QR+8*kb+4*k+3}], v{V_QOFF}, s[44:47], {so} offen offset:{16*k} sc1"
                if track: e.vmem(t, f"Q{2*kb+k}")
                else: e(t)
    e(f"s_mul_i32 s48, s3, {NVL*1024}\ns_add_u32 s48, s48, {LDS_VL}")
    def vdma(k):
        if k % 4 == 0:
            e(f"s_add_u32 s49, s52, {k*1024}\ns_add_u32 s50, s48, {k*1024}\ns_mov_b32 m0, s50\ns_nop 0")
        e.vmem(f"buffer_load_dwordx4 v{V_VOFF}, s[40:43], s49 offen offset:{(k%4)*1024} {cfg.KPOL} lds", f"L{k}")
    set_parity()
    for i in range(D0, NBLK + NVL):
        if i == Q_AT:
            throttle(D, DE)
            qloads(True)
        if i < cfg.RAMP_N: e.wait_vm_n(cfg.RAMP_D - 1)
        throttle(D, DE)
        if i < NBLK: kload(i)
        else: vdma(i - NBLK)
        if cfg.TS and getattr(cfg, "TSK", 0):
            if i == 8: ts(e, cfg, 67)
            if i == 20: ts(e, cfg, 68)
            if i == 36: ts(e, cfg, 69)
    ts(e, cfg, 61)
    for _ in range(getattr(cfg, "DELAY_Q", 0) // 64): e("s_nop 15")
    e("s_waitcnt lgkmcnt(0)")
    tag_finish(e)
    e.wait_vm("Q7")
    ok = e.label("L_qok"); sp = e.label("L_qspin")
    check(e, V_T0, range(QR, QR + 32, 4), V_T1)
    e(f"s_cbranch_vccz {ok}\n{sp}:\ns_sleep {cfg.QSLEEP}")
    qloads(False)
    e("s_waitcnt vmcnt(0)")
    check(e, V_T0, range(QR, QR + 32, 4), V_T1)
    e(f"s_cbranch_vccz {ok}")
    spin_guard(e, sp)
    e(f"{ok}:")
    for r in range(0, 8, 2):
        e(f"v_pk_add_f32 v[{QR+r}:{QR+r+1}], v[{QR+r}:{QR+r+1}], v[{QR+8+r}:{QR+9+r}]")
        e(f"v_pk_add_f32 v[{QR+16+r}:{QR+17+r}], v[{QR+16+r}:{QR+17+r}], v[{QR+24+r}:{QR+25+r}]")
    for r in range(0, 8, 2):
        e(f"v_pk_add_f32 v[{QR+r}:{QR+r+1}], v[{QR+r}:{QR+r+1}], v[{QR+16+r}:{QR+17+r}]")
    for k in range(4):
        e(f"v_cvt_pk_bf16_f32 v{V_Q+k}, v{QR+2*k}, v{QR+2*k+1}")
    ts(e, cfg, 62)
    curv = [None]
    def vload(i):
        hi = (i // 4) * 4096
        if i == NBLK - 1:
            e.vmem(f"buffer_load_dwordx4 v[{kv(i)}:{kv(i)+3}], v{V_VOFF}, s[40:43], s54 offen {cfg.KPOL}", f"V{i}")
            return
        if curv[0] != hi:
            if hi == 0: e("s_mov_b32 s53, s52")
            else: e(f"s_add_u32 s53, s52, {hi}")
            curv[0] = hi
        e.vmem(f"buffer_load_dwordx4 v[{kv(i)}:{kv(i)+3}], v{V_VOFF}, s[40:43], s53 offen offset:{(i%4)*1024} {cfg.KPOL}", f"V{i}")
    def tile_blocks(T): return list(range(4 * T, min(4 * T + 4, NBLK)))
    def reduce_tile(T, par):
        Db = V_D[par]
        S = V_S + T
        for t, blk in enumerate(tile_blocks(T)):
            for b in range(4):
                rot = (4 * (t - b)) % 16
                ctl = f"row_ror:{rot}" if rot else "quad_perm:[0,1,2,3]"
                if b == 0:
                    e(f"v_mov_b32_dpp v{S}, v{Db + 4*t + b} {ctl} row_mask:0xf bank_mask:0x{1 << t:x}")
                else:
                    e(f"v_add_f32_dpp v{S}, v{Db + 4*t + b}, v{S} {ctl} row_mask:0xf bank_mask:0x{1 << t:x}")
    NT = 10
    DV = cfg.D_V
    DVE = cfg.D_V_EVEN
    set_parity()
    NVT = NVL // 4
    order = list(range(NVT, NT)) + list(range(NVT))
    vnext = [NVL]
    def v_issue_upto(n):
        while vnext[0] < min(n, NBLK):
            throttle(DV, DVE)
            vload(vnext[0]); vnext[0] += 1
    e(f"v_lshl_add_u32 v{V_FO2}, v{V_LANE}, 4, s48")
    prev = None
    for n, T in enumerate(order):
        bl = tile_blocks(T)
        e.wait_vm(f"K{bl[-1]}")
        for t, blk in enumerate(bl):
            Dd = V_D[n & 1] + 4 * t
            e(f"v_mfma_f32_16x16x32_bf16 v[{Dd}:{Dd+3}], v[{kv(blk)}:{kv(blk)+3}], v[{V_Q}:{V_Q+3}], 0")
        if prev is not None: reduce_tile(prev, (n - 1) & 1)
        if n < cfg.V_EARLY_TILES and T >= NVT:
            for blk in bl:
                if blk == vnext[0]:
                    vload(blk); vnext[0] += 1
        if T < NVT:
            e.wait_vm(f"L{bl[-1]}")
            for blk in bl:
                e(f"ds_read_b128 v[{kv(blk)}:{kv(blk)+3}], v{V_FO2} offset:{blk*1024}")
        prev = T
    reduce_tile(prev, (NT - 1) & 1)
    e(f"v_add_f32 v{V_S+9}, s56, v{V_S+9}")
    ts(e, cfg, 63)
    e(f"v_max3_f32 v{V_M}, v{V_S}, v{V_S+1}, v{V_S+2}")
    for k in range(3, 9, 2):
        e(f"v_max3_f32 v{V_M}, v{V_M}, v{V_S+k}, v{V_S+k+1}")
    e(f"v_max_f32 v{V_M}, v{V_M}, v{V_S+9}")
    allreduce16(e, "v_max_f32", V_M, steps=(4, 8))
    xrow(e, "v_max_f32", V_M, V_T0, 16)
    xrow(e, "v_max_f32", V_M, V_T0, 32)
    e(f"v_mul_f32 v{V_M}, s57, v{V_M}")
    for T in range(NT):
        e(f"v_fma_f32 v{V_S+T}, v{V_S+T}, s57, -v{V_M}")
    for T in range(NT):
        e(f"v_exp_f32 v{V_S+T}, v{V_S+T}")
    v_issue_upto(vnext[0] + 2)
    e(f"v_add_f32 v{V_L}, v{V_S}, v{V_S+1}")
    for T in range(2, NT):
        e(f"v_add_f32 v{V_L}, v{V_L}, v{V_S+T}")
    for g in range(5):
        e(f"v_cvt_pk_bf16_f32 v{V_S+2*g}, v{V_S+2*g}, v{V_S+2*g+1}")
    allreduce16(e, "v_add_f32", V_L, steps=(4, 8))
    xrow(e, "v_add_f32", V_L, V_T0, 16)
    xrow(e, "v_add_f32", V_L, V_T0, 32)
    lab = e.label("L_mlpub")
    e("s_mov_b32 s74, 0")
    e(f"""
    s_lshl_b32 s91, s3, 5
    v_lshlrev_b32 v{V_T0}, 3, v{V_LANE}
    v_add_u32 v{V_T0}, s91, v{V_T0}
    s_mov_b64 exec, 0xf
    ds_write_b64 v{V_T0}, v[{V_M}:{V_M+1}] offset:{LDS_MLW}
    s_mov_b64 exec, 1
    v_mov_b32 v{V_T0}, {LDS_CNT}
    v_mov_b32 v{V_T1}, 1
    s_waitcnt lgkmcnt(0)
    ds_add_rtn_u32 v30, v{V_T0}, v{V_T1}
    s_waitcnt lgkmcnt(0)
    v_readfirstlane_b32 s91, v30
    s_mov_b64 exec, -1
    s_cmp_lg_u32 s91, 7
    s_cbranch_scc1 {lab}
    v_and_b32 v{V_T0}, 31, v{V_LANE}
    v_lshlrev_b32 v{V_T1}, 3, v{V_T0}
    ds_read_b64 v[30:31], v{V_T1} offset:{LDS_MLW}
    v_lshlrev_b32 v{V_T0}, 2, v{V_T0}
    s_waitcnt lgkmcnt(0)
    v_mov_b32 v36, v30
    """)
    allreduce16(e, "v_max_f32", 36, steps=(4, 8))
    xrow(e, "v_max_f32", 36, 32, 16)
    tag(e, 36)
    e(f"""
    v_sub_f32 v30, v30, v36
    v_exp_f32 v30, v30
    v_mul_f32 v37, v30, v31
    ds_write_b32 v{V_T0}, v30 offset:{LDS_FW}
    """)
    allreduce16(e, "v_add_f32", 37, steps=(4, 8))
    xrow(e, "v_add_f32", 37, 32, 16)
    tag(e, 37)
    e(f"""
    v_mov_b32 v38, v36
    v_mov_b32 v39, v37
    v_and_b32 v{V_T0}, 3, v{V_LANE}
    v_lshlrev_b32 v{V_T0}, 4, v{V_T0}
    v_bfe_u32 v{V_T1}, v{V_LANE}, 2, 1
    v_lshl_add_u32 v40, v{V_T1}, 6, v{V_T0}
    """)
    if cfg.ML_CHK:
        e(f"""
        v_and_b32 v{V_T0}, 3, v{V_LANE}
        v_lshlrev_b32 v{V_T0}, 4, v{V_T0}
        s_mov_b64 exec, 0xf
        ds_write_b128 v{V_T0}, v[36:39] offset:{LDS_CNT + 32}
        s_mov_b64 exec, 1
        v_mov_b32 v{V_T0}, {LDS_CNT}
        v_mov_b32 v{V_T1}, 1
        s_waitcnt lgkmcnt(0)
        ds_write_b32 v{V_T0}, v{V_T1} offset:4
        s_mov_b64 exec, -1
        {lab}:
        """)
    elif cfg.ML_DEFER:
        e(f"s_mov_b32 s91, 1\ns_mov_b32 s74, 1\n{lab}:")
        e("s_cmp_eq_u32 s93, 1\ns_cselect_b32 s93, 1, 0") if False else None
    else:
        e(f"""
        s_mov_b64 exec, 0xff
        buffer_store_dwordx4 v[36:39], v40, s[44:47], s59 offen sc1
        s_mov_b64 exec, -1
        {lab}:
        """)
    A0, AF, AP, AW0, AW1 = 24, 25, 26, 27, 28
    e(f"""
    v_lshrrev_b32 v{V_T0}, 2, v{V_LANE}
    s_lshl_b32 s91, s3, 4
    v_add_u32 v{V_T0}, s91, v{V_T0}
    v_lshlrev_b32 v{V_T0}, 4, v{V_T0}
    v_and_b32 v{V_T1}, 3, v{V_LANE}
    v_lshl_add_u32 v{A0}, v{V_T1}, 12, v{V_T0}
    v_cmp_eq_u32 s[92:93], 0, v{V_T1}
    v_mov_b32 v{AP}, {OOB}
    v_cndmask_b32 v{AP}, v{AP}, v{V_T0}, s[92:93]
    s_lshr_b32 s91, s3, 1
    s_lshl_b32 s91, s91, 2
    s_add_u32 s91, s91, {LDS_FW}
    v_lshl_add_u32 v{AF}, v{V_T1}, 5, s91
    s_lshl_b32 s91, s3, 11
    v_lshl_add_u32 v{AW0}, v{V_LANE}, 5, s91
    v_add_u32 v{AW1}, 1024, v{AW0}
    """)
    if getattr(cfg, "PRETOUCH", 0):
        e(f"s_add_u32 s91, s{S_TAU}, 128\nv_mov_b32 v32, s91\nv_mov_b32 v33, s91\nv_mov_b32 v34, s91\nv_mov_b32 v35, s91")
        e.vmem(f"buffer_store_dwordx4 v[32:35], v{AP}, s[44:47], s58 offen sc1", "PT")
    for g in range(5):
        last_blk = tile_blocks(min(2 * g + 1, NT - 1))[-1]
        if last_blk < NVL:
            v_issue_upto(vnext[0] + cfg.V_PER_LDS_GROUP)
            e("s_waitcnt lgkmcnt(0)")
        else:
            v_issue_upto(last_blk + 1 + DV)
            if cfg.ML_DEFER and g == cfg.ML_DEFER:
                labm = e.label("L_mlst")
                e(f"""
                s_cmp_lg_u32 s74, 1
                s_cbranch_scc1 {labm}
                s_mov_b64 exec, 0xff
                buffer_store_dwordx4 v[36:39], v40, s[44:47], s59 offen sc1
                s_mov_b64 exec, -1
                {labm}:
                """)
            e.wait_vm(f"V{last_blk}")
        X = V_S + 2 * g
        e(f"v_mov_b32 v{V_POP}, v{X}")
        for m in range(1, 4):
            e(f"v_mov_b32_dpp v{V_POP+m}, v{X} row_shl:{4*m} row_mask:0xf bank_mask:0xf")
        for j in range(4):
            st = V_STG + 8 * (j & 1)
            for m in range(4):
                x = kv(8 * g + m) + j
                yb = 8 * g + 4 + m
                y = (kv(yb) if yb < NBLK else kv(8 * g + m)) + j
                e(f"v_perm_b32 v{st + m}, v{y}, v{x}, s94")
                e(f"v_perm_b32 v{st + 4 + m}, v{y}, v{x}, s95")
            for q in range(2):
                O = V_O + 4 * (2 * j + q)
                C = "0" if g == 0 else f"v[{O}:{O+3}]"
                e(f"v_mfma_f32_16x16x32_bf16 v[{O}:{O+3}], v[{V_POP}:{V_POP+3}], v[{st+4*q}:{st+4*q+3}], {C}")
        if cfg.ML_CHK and g in (0, 1, 2):
            labc = e.label("L_mlchk")
            e(f"""
            v_mov_b32 v30, {LDS_CNT}
            ds_read_b32 v31, v30 offset:4
            s_waitcnt lgkmcnt(0)
            v_readfirstlane_b32 s91, v31
            s_cmp_lg_u32 s91, 1
            s_cbranch_scc1 {labc}
            s_mov_b64 exec, 1
            v_mov_b32 v31, 1
            ds_add_rtn_u32 v32, v30, v31 offset:8
            s_waitcnt lgkmcnt(0)
            v_readfirstlane_b32 s91, v32
            s_mov_b64 exec, -1
            s_cmp_lg_u32 s91, 0
            s_cbranch_scc1 {labc}
            v_and_b32 v30, 3, v{V_LANE}
            v_lshlrev_b32 v30, 4, v30
            ds_read_b128 v[36:39], v30 offset:{LDS_CNT + 32}
            v_bfe_u32 v31, v{V_LANE}, 2, 1
            v_lshl_add_u32 v31, v31, 6, v30
            s_waitcnt lgkmcnt(0)
            s_mov_b64 exec, 0xff
            buffer_store_dwordx4 v[36:39], v31, s[44:47], s59 offen sc1
            s_mov_b64 exec, -1
            {labc}:
            """)
    ts(e, cfg, 64)
    for _ in range(getattr(cfg, "DELAY_ATT", 0) // 64): e("s_nop 15")
    e("s_mov_b64 exec, 0xffff")
    for u in range(4):
        for r in range(4):
            a = AW0 if r < 2 else AW1
            o0 = (r & 1) * 128 + 2 * u
            e(f"ds_write2_b32 v{a}, v{V_O + 4*(2*u) + r}, v{V_O + 4*(2*u+1) + r} offset0:{o0} offset1:{o0+1}")
    e(f"""
    s_mov_b64 exec, -1
    s_waitcnt lgkmcnt(0)
    s_barrier
    ds_read2_b32 v[30:31], v{AF} offset0:0 offset1:4
    ds_read_b128 v[36:39], v{A0}
    ds_read_b128 v[40:43], v{A0} offset:2048
    s_waitcnt lgkmcnt(1)
    """)
    for r in range(4):
        e(f"v_mul_f32 v{36+r}, v30, v{36+r}")
    e("s_waitcnt lgkmcnt(0)")
    for r in range(4):
        e(f"v_fmac_f32 v{36+r}, v31, v{40+r}")
    for qp in ("[1,0,3,2]", "[2,3,0,1]"):
        for r in (36, 37, 38, 39):
            e(f"v_add_f32_dpp v{r}, v{r}, v{r} quad_perm:{qp} row_mask:0xf bank_mask:0xf")
    for r in (36, 37, 38, 39):
        tag(e, r)
    e.vmem(f"buffer_store_dwordx4 v[36:39], v{AP}, s[44:47], s58 offen {cfg.PPOL}", "PS")
    ts(e, cfg, 65)
    if getattr(cfg, "DBGT", 0):
        lab = e.label("L_dbgt")
        e(f"""
        s_cmp_lg_u32 s3, 0
        s_cbranch_scc1 {lab}
        s_cmp_lg_u32 s81, 31
        s_cbranch_scc1 {lab}
        s_waitcnt vmcnt(0)
        s_memrealtime s[96:97]
        s_waitcnt lgkmcnt(0)
        s_sub_u32 s96, s96, s101
        v_mov_b32 v4, s96
        s_add_u32 s91, s80, 6
        s_lshl_b32 s91, s91, 2
        v_mov_b32 v5, s91
        s_mov_b32 s48, s32
        s_mov_b32 s49, s33
        s_mov_b32 s50, 256
        s_mov_b32 s51, 0x20000
        s_mov_b64 exec, 1
        buffer_store_dword v4, v5, s[48:51], 0 offen sc1
        {lab}:
        """)
    if cfg.TS:
        e.wait_vm_all()
        ts(e, cfg, 66)
        e(f"""
        s_lshl_b32 s91, s2, 3
        s_add_u32 s91, s91, s3
        s_lshl_b32 s91, s91, 5
        s_add_u32 s91, s91, {WS_TS}
        v_mov_b32 v6, {OOB}
        v_cmp_eq_u32 vcc, 0, v{V_LANE}
        v_cndmask_b32 v6, v6, 0, vcc
        """)
        for k in range(7): e(f"v_mov_b32 v{36+k}, s{60+k}")
        e("v_mov_b32 v43, s89")
        if getattr(cfg, "TSK", 0):
            e("v_mov_b32 v41, s67\nv_mov_b32 v42, s68\nv_mov_b32 v43, s69")
            if getattr(cfg, "TSE", 0): e("v_mov_b32 v41, s70")
        e("buffer_store_dwordx4 v[36:39], v6, s[44:47], s91 offen")
        e("buffer_store_dwordx4 v[40:43], v6, s[44:47], s91 offen offset:16")
    e("s_endpgm")
```
